```python
import torch

def _softmax(x, axis=-1):
    return torch.softmax(x, dim=axis)
def _gelu(x):
    return torch.nn.functional.gelu(x, approximate="tanh")
def _silu(x):
    return torch.nn.functional.silu(x)
def _sigmoid(x):
    return torch.sigmoid(x)
def _layernorm(x, axis=-1, eps=1e-5):
    m = x.mean(dim=axis, keepdim=True)
    v = x.var(dim=axis, keepdim=True, unbiased=False)
    return (x - m) / torch.sqrt(v + eps)
def _scatter_add(tgt, idx, src, axis=0):
    return tgt.clone().index_add_(axis, idx, src)
def _segment_sum(src, seg, n):
    out = torch.zeros((n,) + src.shape[1:], dtype=src.dtype)
    return out.index_add_(0, seg, src)
def _pad(x, pw):
    flat = tuple(v for pair in reversed(pw) for v in pair)
    return torch.nn.functional.pad(x, flat)

kernel_name = 'standalone__edge_featured_mpnn_gatedgcn__graph'

def setup_inputs():

    _w = (lambda a: (lambda t: t.to(torch.bfloat16) if t.is_floating_point() else t)(torch.as_tensor(a)))
    N, deg, D, De = 10000, 32, 128, max(4, 1)
    E = N * deg
    return {
        "x": _w((lambda *s: torch.randn(*s, dtype=torch.bfloat16) * 0.4)(N, D)),
        "e_attr": _w((lambda *s: torch.randn(*s, dtype=torch.bfloat16) * 0.8)(E, De)),
        "src": _w((lambda lo, hi, *s: torch.randint(lo, hi, s))(0, N, E).to(torch.int64)),
        "dst": _w((lambda lo, hi, *s: torch.randint(lo, hi, s))(0, N, E).to(torch.int64)),
        "w_a": _w((lambda *s: torch.randn(*s, dtype=torch.bfloat16) * 0.4)(D, D)),
        "w_b": _w((lambda *s: torch.randn(*s, dtype=torch.bfloat16) * 0.4)(D, D)),
        "w_c": _w((lambda *s: torch.randn(*s, dtype=torch.bfloat16) * 0.8)(De, D)),
        "w_u": _w((lambda *s: torch.randn(*s, dtype=torch.bfloat16) * 0.05)(D, D)),
        "w_v": _w((lambda *s: torch.randn(*s, dtype=torch.bfloat16) * 0.05)(D, D)),
    }

def reference(x, e_attr, src, dst, w_a, w_b, w_c, w_u, w_v):
    N, D = x.shape
    hv = x @ w_v
    g = x[dst] @ w_a + x[src] @ w_b + e_attr @ w_c
    eta = _sigmoid(g)
    denom = _segment_sum(eta, dst, N) + 1e-6
    eta_n = eta / denom[dst]
    agg = _segment_sum(eta_n * hv[src], dst, N)
    z = x @ w_u + agg
    relu_z = torch.where(z > 0, z, 0 * z)
    return x + relu_z
```

```python
import sys

N = 10000; E = 320000
TABH = 10016 * 256
HDRO = 2 * TABH
RECO = HDRO + 0x10000
CH = 2560
STAMPO = 0x1000000
MAGIC = 214749
NLOG2E = 0xbfb8aa3b
C60 = 0x21800000
EPS60 = 0x538637bd
M60 = 0xc2700000

class Asm:
    def __init__(self): self.L = []
    def __call__(self, s):
        for x in s.strip('\n').split('\n'): self.L.append('    ' + x.strip() if not x.strip().endswith(':') else x.strip())
    def text(self): return '\n'.join(self.L)

def srd(A, d, lo, hi, size, stride=0):
    A(f's_mov_b32 s{d}, s{lo}')
    if stride:
        A(f's_and_b32 s{d+1}, s{hi}, 0xffff')
        A(f's_or_b32 s{d+1}, s{d+1}, {hex(stride << 16)}')
    else:
        A(f's_mov_b32 s{d+1}, s{hi}')
    A(f's_mov_b32 s{d+2}, {size}')
    A(f's_mov_b32 s{d+3}, 0x00020000')

def srd_off(A, d, lo, hi, off, size, stride=0):
    A(f's_add_u32 s{d}, s{lo}, {off}')
    A(f's_addc_u32 s{d+1}, s{hi}, 0')
    if stride:
        A(f's_and_b32 s{d+1}, s{d+1}, 0xffff')
        A(f's_or_b32 s{d+1}, s{d+1}, {hex(stride << 16)}')
    A(f's_mov_b32 s{d+2}, {size}')
    A(f's_mov_b32 s{d+3}, 0x00020000')

def scan64(A, v):
    for sh in (1, 2, 4, 8):
        A('s_nop 1')
        A(f'v_add_u32_dpp v{v}, v{v}, v{v} row_shr:{sh} row_mask:0xf bank_mask:0xf bound_ctrl:0')
    A('s_nop 1')
    A(f'v_add_u32_dpp v{v}, v{v}, v{v} row_bcast:15 row_mask:0xa bank_mask:0xf')
    A('s_nop 1')
    A(f'v_add_u32_dpp v{v}, v{v}, v{v} row_bcast:31 row_mask:0xc bank_mask:0xf')

def stamp(A, prof, k, sb=90):
    if not prof: return
    A(f's_memtime s[{sb}:{sb+1}]')
    A('s_waitcnt lgkmcnt(0)')
    A(f'v_writelane_b32 v127, s{sb}, {k}')

def stamp_out(A, prof, wslo, wshi, slot_expr_sgpr, kernel_id):
    if not prof: return
    A('s_mov_b64 exec, 0xffff')
    A(f's_add_u32 s92, s{wslo}, {STAMPO + kernel_id * 0x80000}')
    A(f's_addc_u32 s93, s{wshi}, 0')
    A('s_mov_b32 s94, 0x80000')
    A('s_mov_b32 s95, 0x00020000')
    A(f's_lshl_b32 s96, s2, 4')
    A(f's_add_u32 s96, s96, s{slot_expr_sgpr}')
    A('s_lshl_b32 s96, s96, 6')
    A('s_getreg_b32 s90, hwreg(HW_REG_HW_ID)')
    A('s_getreg_b32 s91, hwreg(HW_REG_XCC_ID)')
    A('v_writelane_b32 v127, s90, 14')
    A('v_writelane_b32 v127, s91, 15')
    A('v_mbcnt_lo_u32_b32 v126, -1, 0')
    A('v_lshlrev_b32 v126, 2, v126')
    A('buffer_store_dword v127, v126, s[92:95], s96 offen')
    A('s_waitcnt vmcnt(0)')

def prefetch_code(A, nbytes, nthreads, vtmp, label):
    A(f's_getpc_b64 s[88:89]')
    A(f'v_lshlrev_b32 v{vtmp}, 6, v0')
    A(f'v_cmp_gt_u32 vcc, {label}_end - {label} - 64, v{vtmp}')
    A('s_and_saveexec_b64 s[86:87], vcc')
    A(f's_cbranch_execz {label}_pf')
    A(f'global_load_dword v{vtmp+1}, v{vtmp}, s[88:89]')
    A(f'{label}_pf:')
    A('s_mov_b64 exec, s[86:87]')

def gen_k1(prof):
    A = Asm()
    XB = 0; WB = 20480; WV = WB + 32768
    CNT = 30720; STA = CNT + 512
    A('k1_kernel:')
    stamp(A, prof, 0)
    A('''
    s_lshr_b32 s3, s2, 4
    s_lshl_b32 s3, s3, 3
    s_and_b32 s5, s2, 7
    s_or_b32 s3, s3, s5
    s_cmp_ge_u32 s3, 125
    s_cbranch_scc1 k1_exit
    s_load_dwordx4 s[8:11], s[0:1], 0
    s_load_dwordx4 s[12:15], s[0:1], 16
    s_load_dwordx2 s[16:17], s[0:1], 40
    s_load_dwordx2 s[18:19], s[0:1], 64
    s_load_dwordx2 s[20:21], s[0:1], 88
    v_lshrrev_b32 v1, 6, v0
    v_and_b32 v3, 63, v0
    v_readfirstlane_b32 s4, v1
    s_bitcmp1_b32 s2, 3
    s_cbranch_scc1 k1_gemm
    ''')
    A('''
    v_lshlrev_b32 v1, 4, v0
    v_lshlrev_b32 v2, 5, v0
    s_mul_i32 s5, s3, 10240
    s_mul_i32 s6, s3, 20480
    s_waitcnt lgkmcnt(0)
    ''')
    srd_off(A, 24, 14, 15, 's5', 10240)
    A('buffer_load_dwordx4 v[4:7], v1, s[24:27], 0 offen')
    srd_off(A, 28, 12, 13, 's5', 10240)
    A('buffer_load_dwordx4 v[8:11], v1, s[28:31], 0 offen')
    srd_off(A, 32, 10, 11, 's6', 20480)
    A('buffer_load_dwordx4 v[12:15], v2, s[32:35], 0 offen')
    A('buffer_load_dwordx4 v[16:19], v2, s[32:35], 0 offen offset:16')
    A(f'''
    v_mov_b32 v32, 0
    v_mov_b32 v33, 1
    v_lshlrev_b32 v34, 2, v0
    v_cmp_gt_u32 vcc, 128, v0
    s_and_saveexec_b64 s[6:7], vcc
    ds_write_b32 v34, v32 offset:{CNT}
    s_mov_b64 exec, s[6:7]
    s_mul_i32 s5, s3, {CH*12}
    s_add_u32 s5, s5, {RECO}
    ''')
    srd_off(A, 36, 20, 21, 's5', CH * 12)
    A(f's_lshl_b32 s5, s3, 9\ns_add_u32 s5, s5, {HDRO}')
    srd_off(A, 40, 20, 21, 's5', 512)
    A(f's_mov_b32 s5, {MAGIC}\ns_movk_i32 s6, 625')
    A('s_waitcnt lgkmcnt(0)\ns_barrier')
    stamp(A, prof, 1)
    A('s_waitcnt vmcnt(3)')
    stamp(A, prof, 2)
    for i in range(4):
        A(f'v_mul_u32_u24 v{20+i}, s5, v{4+i}')
    for i in range(4):
        A(f'v_lshrrev_b32 v{20+i}, 24, v{20+i}')
    for i in range(4):
        A(f'v_lshlrev_b32 v{28+i}, 2, v{20+i}')
        A(f'ds_add_rtn_u32 v{24+i}, v{28+i}, v33 offset:{CNT}')
    for i in range(4):
        A(f'v_mad_u32_u24 v{20+i}, v{20+i}, s6, 7')
    for i in range(4):
        A(f'v_lshrrev_b32 v{20+i}, 3, v{20+i}')
    for i in range(4):
        A(f'v_sub_u32 v{4+i}, v{4+i}, v{20+i}')
    A('s_waitcnt vmcnt(2)')
    for i in range(4):
        A(f'v_lshl_or_b32 v{8+i}, v{4+i}, 16, v{8+i}')
    A('s_waitcnt lgkmcnt(0)\ns_barrier')
    stamp(A, prof, 3)
    A(f'''
    s_cmp_lg_u32 s4, 0
    s_cbranch_scc1 k1_noscan
    v_lshlrev_b32 v34, 3, v0
    ds_read_b64 v[36:37], v34 offset:{CNT}
    s_waitcnt lgkmcnt(0)
    v_add_u32 v38, v36, v37
    v_mov_b32 v39, v38
    ''')
    scan64(A, 38)
    A(f'''
    v_sub_u32 v38, v38, v39
    v_add_u32 v39, v38, v36
    ds_write_b64 v34, v[38:39] offset:{STA}
    v_lshl_or_b32 v36, v36, 16, v38
    v_lshl_or_b32 v37, v37, 16, v39
    buffer_store_dwordx2 v[36:37], v34, s[40:43], 0 offen
    s_waitcnt lgkmcnt(0)
    k1_noscan:
    s_barrier
    ''')
    stamp(A, prof, 4)
    for i in range(4):
        A(f'ds_read_b32 v{20+i}, v{28+i} offset:{STA}')
    for i in range(4):
        A(f's_waitcnt lgkmcnt({3-i})')
        A(f'v_add_u32 v{20+i}, v{20+i}, v{24+i}')
        A(f'v_mul_u32_u24 v{20+i}, 12, v{20+i}')
    A('s_waitcnt vmcnt(0)' if False else 's_waitcnt vmcnt(0)')
    for i in range(4):
        A(f'ds_write2_b32 v{20+i}, v{12+2*i}, v{13+2*i} offset0:0 offset1:1')
        A(f'ds_write_b32 v{20+i}, v{8+i} offset:8')
    A('s_waitcnt lgkmcnt(0)\ns_barrier')
    stamp(A, prof, 5)
    for j in range(3):
        A(f'ds_read_b128 v[{4+4*j}:{7+4*j}], v1 offset:{10240*j}')
    A('v_add_u32 v2, 10240, v1\nv_add_u32 v3, 20480, v1')
    for j in range(3):
        A(f's_waitcnt lgkmcnt({2-j})')
        A(f'buffer_store_dwordx4 v[{4+4*j}:{7+4*j}], v{1+j}, s[36:39], 0 offen')
    stamp(A, prof, 6)
    if prof:
        A('s_waitcnt vmcnt(0)')
        stamp(A, prof, 7)
        stamp_out(A, prof, 20, 21, 4, 0)
    A('s_endpgm')
    A('k1_gemm:')
    A('''
    v_lshrrev_b32 v4, 4, v3
    v_and_b32 v5, 15, v3
    v_xor_b32 v6, v5, v4
    v_lshlrev_b32 v6, 4, v6
    v_lshl_or_b32 v6, v4, 8, v6
    v_lshlrev_b32 v7, 1, v4
    v_xor_b32 v7, v5, v7
    v_lshlrev_b32 v7, 4, v7
    v_lshl_or_b32 v7, v4, 8, v7
    s_mul_i32 s5, s3, 20480
    s_waitcnt lgkmcnt(0)
    ''')
    srd_off(A, 24, 8, 9, 's5', 20480)
    srd(A, 28, 16, 17, 32768)
    srd(A, 32, 18, 19, 32768)
    for j in range(2):
        A(f'''
        s_lshl_b32 s5, s4, 1
        s_add_u32 s5, s5, {j}
        s_and_b32 s6, s5, 3
        s_lshl_b32 s6, s6, 6
        s_lshl_b32 s5, s5, 10
        v_xor_b32 v8, s6, v6
        s_add_u32 m0, s5, {XB}
        s_nop 0
        buffer_load_dwordx4 v8, s[24:27], s5 offen lds
        ''')
    for j in range(4):
        if j == 3:
            A('s_cmp_ge_u32 s4, 2\ns_cbranch_scc1 k1_dmadone')
        A(f'''
        s_add_u32 s5, s4, {10*j}
        s_lshl_b32 s6, s5, 6
        s_and_b32 s6, s6, 128
        s_lshl_b32 s5, s5, 10
        v_xor_b32 v8, s6, v7
        s_add_u32 m0, s5, {WB}
        s_nop 0
        buffer_load_dwordx4 v8, s[28:31], s5 offen lds
        s_add_u32 m0, s5, {WV}
        s_nop 0
        buffer_load_dwordx4 v8, s[32:35], s5 offen lds
        ''')
    A('k1_dmadone:')
    A(f'''
    s_lshr_b32 s5, s4, 1
    s_and_b32 s6, s4, 1
    s_lshl_b32 s7, s5, 12
    v_xor_b32 v8, v4, v5
    v_lshlrev_b32 v8, 4, v8
    v_lshl_or_b32 v8, v5, 8, v8
    v_add_u32 v8, s7, v8
    v_xor_b32 v9, 64, v8
    v_xor_b32 v10, 128, v8
    v_xor_b32 v11, 192, v8
    v_bfe_u32 v12, v3, 2, 2
    v_and_b32 v13, 1, v4
    v_lshl_or_b32 v13, v13, 2, v12
    v_lshlrev_b32 v13, 5, v13
    v_lshl_add_u32 v12, v4, 3, v12
    v_lshl_or_b32 v13, v12, 8, v13
    v_and_b32 v12, 3, v3
    v_lshl_or_b32 v13, v12, 3, v13
    v_add_u32 v13, {WB}, v13
    s_lshl_b32 s7, s6, 7
    v_xor_b32 v12, s7, v13
    v_xor_b32 v13, 32, v12
    v_xor_b32 v14, 64, v12
    v_xor_b32 v15, 96, v12
    s_mul_i32 s7, s6, {TABH}
    s_mul_i32 s22, s3, 20480
    s_add_u32 s7, s7, s22
    s_lshl_b32 s22, s5, 12
    s_add_u32 s7, s7, s22
    ''')
    srd_off(A, 36, 20, 21, 's7', 4096)
    A(f'''
    v_lshlrev_b32 v6, 10, v4
    v_lshl_or_b32 v6, v5, 4, v6
    s_mov_b32 s22, {hex(NLOG2E)}
    s_mov_b32 s23, {hex(NLOG2E)}
    s_waitcnt vmcnt(0)
    s_barrier
    ''')
    stamp(A, prof, 2)
    XF = 16
    WF = 32
    AC = 64
    for s in range(4):
        A(f'ds_read_b128 v[{XF+4*s}:{XF+4*s+3}], v{8+s} offset:{XB}')
    steps = [(s, m, c) for s in range(4) for m in range(2) for c in range(4)]
    PD = 4
    def rd(i):
        s, m, c = steps[i]; b = WF + 4 * (i % 8)
        for u in range(2):
            A(f'ds_read_b64_tr_b16 v[{b+2*u}:{b+2*u+1}], v{12+c} offset:{m*32768 + (32*s+4*u)*256}')
    for i in range(PD): rd(i)
    for i in range(32):
        s, m, c = steps[i]; b = WF + 4 * (i % 8)
        if i + PD < 32:
            rd(i + PD); A(f's_waitcnt lgkmcnt({2*PD})')
        else:
            A(f's_waitcnt lgkmcnt({2*(31-i)})')
        acc = AC + 16 * m + 4 * c
        cin = '0' if s == 0 else f'v[{acc}:{acc+3}]'
        A(f'v_mfma_f32_16x16x32_bf16 v[{acc}:{acc+3}], v[{XF+4*s}:{XF+4*s+3}], v[{b}:{b+3}], {cin}')
    stamp(A, prof, 3)
    A('s_nop 3')
    for c in range(4):
        for u in range(2):
            A(f'v_pk_mul_f32 v[{AC+4*c+2*u}:{AC+4*c+2*u+1}], v[{AC+4*c+2*u}:{AC+4*c+2*u+1}], s[22:23]')
    for i in range(4):
        o = 16 + 4 * i
        A(f'v_cvt_pk_bf16_f32 v{o}, v{AC+i}, v{AC+4+i}')
        A(f'v_cvt_pk_bf16_f32 v{o+1}, v{AC+8+i}, v{AC+12+i}')
        A(f'v_cvt_pk_bf16_f32 v{o+2}, v{AC+16+i}, v{AC+20+i}')
        A(f'v_cvt_pk_bf16_f32 v{o+3}, v{AC+24+i}, v{AC+28+i}')
        A(f'buffer_store_dwordx4 v[{o}:{o+3}], v6, s[36:39], 0 offen offset:{256*i}')
    A(f'''
    s_or_b32 s5, s5, s3
    s_cmp_lg_u32 s5, 0
    s_cbranch_scc1 k1_nonull
    s_mul_i32 s7, s6, {TABH}
    s_add_u32 s7, s7, {N*256}
    ''')
    srd_off(A, 40, 20, 21, 's7', 256)
    A('''
    v_mov_b32 v32, 0x7f7f7f7f
    v_mov_b32 v33, 0x7f7f7f7f
    v_mov_b32 v34, 0
    v_mov_b32 v35, 0
    v_lshlrev_b32 v7, 4, v3
    buffer_store_dwordx4 v[32:35], v7, s[40:43], 0 offen
    k1_nonull:
    ''')
    stamp(A, prof, 6)
    if prof:
        A('s_waitcnt vmcnt(0)')
        stamp(A, prof, 7)
        stamp_out(A, prof, 20, 21, 4, 0)
    A('k1_exit:')
    A('s_endpgm')
    A('k1_kernel_end:')
    return A.text(), 86016

def gen_k2(prof):
    A = Asm()
    LB = 81920
    XB = LB; WA = LB + 20480; WU = WA + 16384
    EL = LB; PL = EL + 48896
    CNT = 155648; ZER = CNT + 512; STA = 156416; MISC = 156928
    LDS = 157696
    RC = 42
    R_ = 6
    MK = 60
    A('k2_kernel:')
    stamp(A, prof, 0)
    A('''
    s_cmp_ge_u32 s2, 256
    s_cbranch_scc1 k2_exit
    s_load_dwordx2 s[8:9], s[0:1], 0
    s_load_dwordx2 s[10:11], s[0:1], 32
    s_load_dwordx4 s[12:15], s[0:1], 48
    s_load_dwordx2 s[16:17], s[0:1], 72
    s_load_dwordx2 s[18:19], s[0:1], 88
    v_lshrrev_b32 v1, 6, v0
    v_and_b32 v3, 63, v0
    v_readfirstlane_b32 s4, v1
    s_lshr_b32 s3, s2, 1
    s_and_b32 s5, s2, 1
    s_mul_i32 s6, s3, 625
    s_add_u32 s7, s6, 632
    s_add_u32 s6, s6, 7
    s_lshr_b32 s6, s6, 3
    s_lshr_b32 s7, s7, 3
    s_sub_u32 s7, s7, s6
    v_lshrrev_b32 v1, 3, v0
    v_lshlrev_b32 v2, 9, v1
    s_lshl_b32 s20, s3, 2
    s_waitcnt lgkmcnt(0)
    ''')
    srd_off(A, 24, 18, 19, HDRO, 125 * 512)
    A('buffer_load_dword v2, v2, s[24:27], s20 offen')
    A('s_lshl_b32 s20, s6, 8')
    A(f's_sub_u32 s21, {N*256}, s20')
    srd_off(A, 28, 8, 9, 's20', 's21')
    A('s_lshl_b32 s22, s5, 7\ns_sub_u32 s23, 32768, s22')
    srd_off(A, 32, 10, 11, 's22', 's23')
    srd_off(A, 36, 14, 15, 's22', 's23')
    A(f'''
    v_lshrrev_b32 v66, 4, v3
    v_and_b32 v67, 15, v3
    v_xor_b32 v68, v67, v66
    v_lshlrev_b32 v68, 4, v68
    v_lshl_or_b32 v68, v66, 8, v68
    s_and_b32 s20, s4, 3
    s_lshl_b32 s20, s20, 6
    v_xor_b32 v68, s20, v68
    v_lshrrev_b32 v69, 3, v3
    v_and_b32 v70, 7, v3
    v_and_b32 v71, 2, v69
    v_xor_b32 v70, v70, v71
    v_lshlrev_b32 v70, 4, v70
    v_lshl_or_b32 v70, v69, 8, v70
    s_and_b32 s20, s4, 1
    s_lshl_b32 s20, s20, 6
    v_xor_b32 v70, s20, v70
    s_lshl_b32 s20, s4, 10
    s_lshl_b32 s21, s4, 11
    s_add_u32 m0, s20, {XB}
    s_nop 0
    buffer_load_dwordx4 v68, s[28:31], s20 offen lds
    s_add_u32 m0, s20, {WA}
    s_nop 0
    buffer_load_dwordx4 v70, s[32:35], s21 offen lds
    s_add_u32 m0, s20, {WU}
    s_nop 0
    buffer_load_dwordx4 v70, s[36:39], s21 offen lds
    s_cmp_ge_u32 s4, 4
    s_cbranch_scc1 k2_nox2
    s_add_u32 s20, s20, 16384
    s_add_u32 m0, s20, {XB}
    s_nop 0
    buffer_load_dwordx4 v68, s[28:31], s20 offen lds
    k2_nox2:
    ''')
    A('s_sub_u32 s23, 1024, s22')
    srd_off(A, 40, 12, 13, 's22', 's23')
    A('v_lshlrev_b32 v71, 1, v3')
    for k in range(4):
        A(f'buffer_load_ushort v{14+k}, v71, s[40:43], 0 offen offset:{256*k}')
    A('''
    v_and_b32 v72, 7, v0
    v_lshlrev_b32 v73, 4, v72
    v_lshl_or_b32 v73, v1, 8, v73
    buffer_load_dwordx4 v[4:7], v73, s[28:31], s22 offen
    ''')
    NV_AFTER_HDR = None
    A(f'''
    v_mov_b32 v74, 0
    v_mov_b32 v75, 0
    v_mov_b32 v76, 0
    v_mov_b32 v77, 0
    v_lshrrev_b32 v78, 5, v0
    v_and_b32 v79, 31, v0
    v_lshlrev_b32 v79, 4, v79
    v_lshl_or_b32 v78, v78, 10, v79
    ds_write_b128 v78, v[74:77]
    ds_write_b128 v78, v[74:77] offset:32768
    s_cmp_ge_u32 s4, 8
    s_cbranch_scc1 k2_noz
    v_add_u32 v78, 0x10000, v78
    ds_write_b128 v78, v[74:77]
    k2_noz:
    v_lshlrev_b32 v78, 4, v0
    v_add_u32 v78, {CNT}, v78
    v_cmp_gt_u32 vcc, 81, v0
    s_and_saveexec_b64 s[20:21], vcc
    ds_write_b128 v78, v[74:77]
    s_mov_b64 exec, s[20:21]
    ''')
    srd_off(A, 44, 18, 19, RECO, 125 * CH * 12)
    A(f's_mul_i32 s20, s5, {TABH}')
    srd_off(A, 48, 18, 19, 's20', N + 1, stride=256)
    A('s_lshl_b32 s20, s6, 8\ns_add_u32 s20, s20, s22\ns_lshl_b32 s21, s7, 8\ns_sub_u32 s21, s21, s22')
    srd_off(A, 52, 16, 17, 's20', 's21')
    A(f'''
    v_and_b32 v78, 1, v3
    v_lshlrev_b32 v78, 4, v78
    v_mov_b32 v79, 0x3f80
    v_lshlrev_b32 v79, v78, v79
    v_and_b32 v78, 2, v3
    v_cmp_eq_u32 vcc, 0, v78
    v_bfe_u32 v80, v3, 2, 2
    v_mul_u32_u24 v1, {CH*12}, v1
    v_cndmask_b32 v12, 0, v79, vcc
    v_cndmask_b32 v13, v79, v74, vcc
    v_cmp_eq_u32 vcc, v80, v66
    s_mov_b32 s56, {hex(C60)}
    s_mov_b32 s57, {hex(C60)}
    v_cndmask_b32 v10, 0, v12, vcc
    v_cndmask_b32 v11, 0, v13, vcc
    s_mov_b32 s58, 0x22221111
    s_mov_b32 s59, 0x88884444
    ''')
    A('''
    s_cmp_ge_u32 s4, 4
    s_cbranch_scc1 k2_w8
    s_waitcnt vmcnt(9)
    k2_w8:
    s_waitcnt vmcnt(8)
    ''') if False else None
    A('s_waitcnt vmcnt(8)')
    stamp(A, prof, 1)
    A(f'''
    v_and_b32 v78, 0xffff, v2
    v_add_u32 v78, v78, v72
    v_mad_u32_u24 v1, v78, 12, v1
    v_lshrrev_b32 v2, 16, v2
    v_sub_u32 v2, v2, v72
    ''')
    A('k2_loadrec:')
    for r in range(R_):
        A(f'v_cmp_lt_i32 s[{MK+2*r}:{MK+2*r+1}], {8*r}, v2')
    for r in range(R_):
        A(f's_mov_b64 exec, s[{MK+2*r}:{MK+2*r+1}]')
        A(f's_cbranch_execz k2_ld{r}')
        A(f'buffer_load_dwordx3 v[{RC+4*r}:{RC+4*r+2}], v1, s[44:47], 0 offen offset:{96*r}')
    A(f's_waitcnt vmcnt({R_})\ns_branch k2_lddone')
    for r in range(R_):
        A(f'k2_ld{r}:\ns_waitcnt vmcnt({r})')
        if r < R_ - 1: A('s_branch k2_lddone')
    A('k2_lddone:\ns_mov_b64 exec, -1')
    A('s_waitcnt lgkmcnt(0)\ns_barrier')
    stamp(A, prof, 2)
    A('s_cmp_eq_u32 s7, 0\ns_cbranch_scc1 k2_gemmdone')
    A(f's_mov_b32 s20, {hex(NLOG2E)}')
    for k in range(4):
        A(f'v_lshlrev_b32 v{14+k}, 16, v{14+k}')
    for k in range(4):
        A(f'v_mul_f32 v{14+k}, s20, v{14+k}')
    A('v_cvt_pk_bf16_f32 v8, v14, v15\nv_cvt_pk_bf16_f32 v9, v16, v17')
    WF = 66; X0 = 82; X1 = 98
    A(f'''
    v_bfe_u32 v14, v3, 2, 2
    v_lshrrev_b32 v15, 4, v3
    v_and_b32 v16, 15, v3
    v_lshl_add_u32 v17, v15, 3, v14
    v_lshlrev_b32 v17, 7, v17
    v_lshrrev_b32 v14, 1, v14
    v_and_b32 v18, 1, v15
    v_lshl_or_b32 v14, v18, 1, v14
    s_and_b32 s21, s4, 3
    v_xor_b32 v14, s21, v14
    v_lshl_or_b32 v17, v14, 5, v17
    v_and_b32 v14, 3, v3
    v_lshl_or_b32 v17, v14, 3, v17
    s_bfe_u32 s21, s4, 0x10002
    s_lshl_b32 s22, s21, 14
    s_add_u32 s22, s22, {WA}
    v_add_u32 v17, s22, v17
    ''')
    for s in range(4):
        for u in range(2):
            A(f'ds_read_b64_tr_b16 v[{WF+4*s+2*u}:{WF+4*s+2*u+1}], v17 offset:{(32*s+4*u)*128}')
    A(f'''
    s_lshr_b32 s22, s4, 3
    s_mul_i32 s23, s22, {3*4096}
    s_add_u32 s23, s23, {XB}
    v_xor_b32 v18, v15, v16
    v_lshlrev_b32 v18, 4, v18
    v_lshl_or_b32 v18, v16, 8, v18
    v_add_u32 v18, s23, v18
    v_xor_b32 v19, 64, v18
    v_xor_b32 v20, 128, v18
    v_xor_b32 v21, 192, v18
    ''')
    for s in range(4):
        A(f'ds_read_b128 v[{X0+4*s}:{X0+4*s+3}], v{18+s}')
    A('s_waitcnt lgkmcnt(8)')
    for s in range(4):
        A(f'ds_read_b128 v[{X1+4*s}:{X1+4*s+3}], v{18+s} offset:4096')
    A(f'''
    s_cmp_eq_u32 s21, 0
    s_cselect_b32 s20, s20, 1.0
    s_cselect_b32 s21, {hex(M60)}, 0
    v_mov_b32 v22, s21
    s_mul_i32 s23, s22, {3*16384}
    s_and_b32 s21, s4, 7
    s_lshl_b32 s21, s21, 6
    s_add_u32 s23, s23, s21
    s_add_u32 s23, s23, 512
    v_lshlrev_b32 v23, 12, v15
    v_lshl_or_b32 v23, v16, 2, v23
    v_add_u32 v23, s23, v23
    s_waitcnt lgkmcnt(4)
    ''')
    def mm(d, x):
        for s in range(4):
            cin = '0' if s == 0 else f'v[{d}:{d+3}]'
            A(f'v_mfma_f32_16x16x32_bf16 v[{d}:{d+3}], v[{x+4*s}:{x+4*s+3}], v[{WF+4*s}:{WF+4*s+3}], {cin}')
    def wr(d, t):
        for i in range(4):
            A(f'v_fma_f32 v{d+i}, v{d+i}, s20, v22')
        for i in range(4):
            A(f'ds_write_b32 v23, v{d+i} offset:{t*16384 + i*1024}')
    mm(26, X0)
    A('s_cmp_lg_u32 s22, 0\ns_cbranch_scc1 k2_g2')
    for s in range(4):
        A(f'ds_read_b128 v[{X0+4*s}:{X0+4*s+3}], v{18+s} offset:8192')
    A('s_waitcnt lgkmcnt(4)')
    mm(30, X1)
    A('s_waitcnt lgkmcnt(0)')
    mm(34, X0)
    wr(26, 0)
    wr(30, 1)
    wr(34, 2)
    A('s_branch k2_gemmdone')
    A('k2_g2:\ns_waitcnt lgkmcnt(0)')
    mm(30, X1)
    A('s_nop 3')
    wr(26, 0)
    wr(30, 1)
    A('k2_gemmdone:')
    stamp(A, prof, 3)
    A(f'v_mov_b32 v14, 1\nv_mov_b32 v15, {CNT}\ns_waitcnt vmcnt(0)')
    stamp(A, prof, 4)
    for r in range(R_):
        A(f's_mov_b64 exec, s[{MK+2*r}:{MK+2*r+1}]')
        A(f's_cbranch_execz k2_rankdone')
        A(f'v_lshrrev_b32 v{66+r}, 14, v{RC+4*r+2}')
        A(f'v_add_u32 v{66+r}, v15, v{66+r}')
        A(f'ds_add_rtn_u32 v{RC+4*r+3}, v{66+r}, v14')
    A(f'''
    v_cmp_lt_i32 vcc, {8*R_}, v2
    s_and_b64 exec, exec, vcc
    s_cbranch_execz k2_rankdone
    ds_write_b32 v15, v14 offset:{MISC + 4 - CNT}
    k2_rankdone:
    s_mov_b64 exec, -1
    s_waitcnt lgkmcnt(0)
    s_barrier
    ''')
    stamp(A, prof, 5)
    A(f'''
    s_cmp_lg_u32 s4, 0
    s_cbranch_scc1 k2_noscan
    v_lshl_add_u32 v16, v3, 3, v15
    ds_read_b64 v[18:19], v16
    s_waitcnt lgkmcnt(0)
    v_add_u32 v18, 1, v18
    v_add_u32 v19, 1, v19
    v_and_b32 v18, -2, v18
    v_and_b32 v19, -2, v19
    v_add_u32 v20, v18, v19
    v_mov_b32 v21, v20
    ''')
    scan64(A, 20)
    A(f'''
    v_sub_u32 v20, v20, v21
    v_add_u32 v21, v20, v18
    ds_write_b64 v16, v[20:21] offset:{STA - CNT}
    s_waitcnt lgkmcnt(0)
    k2_noscan:
    s_barrier
    ''')
    stamp(A, prof, 6)
    A(f'''
    ds_read_b32 v16, v15 offset:{STA - CNT + 4*100}
    ds_read_b32 v17, v15 offset:{MISC + 4 - CNT}
    ''')
    for r in range(R_):
        A(f's_mov_b64 exec, s[{MK+2*r}:{MK+2*r+1}]')
        A(f's_cbranch_execz k2_st')
        A(f'ds_read_b32 v{72+r}, v{66+r} offset:{STA - CNT}')
    A(f'''
    k2_st:
    s_mov_b64 exec, -1
    s_cmp_ge_u32 s4, 2
    s_cbranch_scc1 k2_nopad
    v_lshl_add_u32 v18, v0, 2, v15
    ds_read_b32 v19, v18
    ds_read_b32 v20, v18 offset:{STA - CNT}
    v_subrev_u32 v21, 80, v0
    v_cmp_gt_u32 vcc, 80, v0
    v_mov_b32 v22, 0
    v_mov_b32 v23, 0
    v_min_u32 v24, 79, v0
    v_lshlrev_b32 v24, 16, v24
    v_or_b32 v24, {N}, v24
    s_waitcnt lgkmcnt(0)
    v_cndmask_b32 v25, v21, v19, vcc
    v_add_u32 v20, v20, v25
    v_and_b32 v19, 1, v19
    v_cmp_eq_u32 vcc, 1, v19
    v_cmp_gt_u32 s[20:21], 8, v21
    s_or_b64 exec, vcc, s[20:21]
    s_cbranch_execz k2_nopad
    v_lshlrev_b32 v25, 3, v20
    v_add_u32 v25, {EL}, v25
    v_lshlrev_b32 v20, 2, v20
    v_add_u32 v20, {PL}, v20
    ds_write_b64 v25, v[22:23]
    ds_write_b32 v20, v24
    k2_nopad:
    s_waitcnt lgkmcnt(0)
    s_mov_b32 s20, {EL}
    s_mov_b32 s21, {PL}
    ''')
    for r in range(R_):
        A(f's_mov_b64 exec, s[{MK+2*r}:{MK+2*r+1}]')
        A(f's_cbranch_execz k2_scat')
        A(f'v_add_u32 v{72+r}, v{72+r}, v{RC+4*r+3}')
        A(f'v_lshl_add_u32 v{66+r}, v{72+r}, 3, s20')
        A(f'v_lshl_add_u32 v{72+r}, v{72+r}, 2, s21')
        A(f'ds_write_b64 v{66+r}, v[{RC+4*r}:{RC+4*r+1}]')
        A(f'ds_write_b32 v{72+r}, v{RC+4*r+2}')
    A(f'''
    k2_scat:
    s_mov_b64 exec, -1
    v_readfirstlane_b32 s22, v16
    v_readfirstlane_b32 s72, v17
    v_lshrrev_b32 v16, 4, v3
    v_bfe_u32 v17, v3, 2, 2
    s_add_u32 s22, s22, 6
    s_lshr_b32 s22, s22, 3
    s_lshr_b32 s23, s22, 4
    s_and_b32 s22, s22, 15
    s_mul_i32 s73, s23, s4
    s_min_u32 s74, s4, s22
    s_add_u32 s73, s73, s74
    s_cmp_lt_u32 s4, s22
    s_addc_u32 s23, s23, 0
    s_lshl_b32 s73, s73, 2
    v_mov_b32 v18, s73
    v_mad_u32_u24 v16, v16, s23, v18
    v_mad_u32_u24 v17, v17, s23, v18
    v_lshl_add_u32 v14, v16, 3, s21
    v_lshl_add_u32 v15, v17, 4, s20
    v_and_b32 v19, 15, v3
    v_lshlrev_b32 v23, 4, v19
    v_lshlrev_b32 v19, 2, v19
    v_mov_b32 v25, v23
    v_mov_b32 v59, v23
    v_mov_b32 v61, v23
    v_mov_b32 v63, v23
    v_mov_b32 v65, v23
    v_mov_b32 v20, {ZER}
    v_mov_b32 v26, 0
    v_mov_b32 v27, 0
    v_mov_b32 v28, 0
    v_mov_b32 v29, 0
    s_waitcnt lgkmcnt(0)
    s_barrier
    ''')
    stamp(A, prof, 7)
    RB = 70
    A(f'''
    s_cmp_eq_u32 s23, 0
    s_cbranch_scc1 k2_loopdone
    ds_read_u16 v58, v14
    ds_read_u16 v60, v14 offset:4
    ds_read_u16 v16, v14 offset:2
    ds_read_u16 v62, v14 offset:8
    ds_read_u16 v64, v14 offset:12
    ds_read_u16 v22, v14 offset:16
    ds_read_u16 v24, v14 offset:20
    ds_read_b128 v[34:37], v20
    ds_read_b128 v[38:41], v20
    s_mov_b64 exec, s[58:59]
    ds_read_b128 v[26:29], v15
    s_mov_b64 exec, -1
    s_waitcnt lgkmcnt(8)
    buffer_load_dwordx4 v[{RB}:{RB+3}], v[58:59], s[48:51], 0 idxen offen
    buffer_load_dwordx4 v[{RB+4}:{RB+7}], v[60:61], s[48:51], 0 idxen offen
    s_waitcnt lgkmcnt(5)
    buffer_load_dwordx4 v[{RB+8}:{RB+11}], v[62:63], s[48:51], 0 idxen offen
    buffer_load_dwordx4 v[{RB+12}:{RB+15}], v[64:65], s[48:51], 0 idxen offen
    v_lshl_add_u32 v18, v16, 10, v19
    ds_read_b32 v30, v18 offset:512
    ds_read_b32 v31, v18 offset:576
    ds_read_b32 v32, v18 offset:640
    ds_read_b32 v33, v18 offset:704
    k2_loop:
    ''')
    Da = 42; Db = 46; Ha = 50; Hb = 54; P = 58; Sg = 62; Q = 66; DEN = 34; NUM = 38
    def pr(a): return f'v[{a}:{a+1}]'
    for u in range(3):
        Rc = RB + 8 * u; Rn = RB + 8 * ((u + 2) % 3)
        A(f'''
        s_waitcnt lgkmcnt(0)
        v_mfma_f32_16x16x16_bf16 v[{Da}:{Da+3}], v[26:27], v[8:9], v[30:33]
        v_mfma_f32_16x16x16_bf16 v[{Db}:{Db+3}], v[28:29], v[8:9], v[30:33]
        s_cmp_lt_u32 s23, 3
        s_cbranch_scc1 k2_tail{u}
        buffer_load_dwordx4 v[{Rn}:{Rn+3}], v[22:23], s[48:51], 0 idxen offen
        buffer_load_dwordx4 v[{Rn+4}:{Rn+7}], v[24:25], s[48:51], 0 idxen offen
        ds_read_u16 v22, v14 offset:{(u+3)*8}
        ds_read_u16 v24, v14 offset:{(u+3)*8+4}
        s_waitcnt vmcnt(4)
        k2_back{u}:
        ds_read_u16 v17, v14 offset:{(u+1)*8+2}
        s_mov_b64 exec, s[58:59]
        ds_read_b128 v[26:29], v15 offset:{(u+1)*16}
        s_mov_b64 exec, -1
        v_mfma_f32_16x16x16_bf16 v[{Da}:{Da+3}], v[10:11], v[{Rc}:{Rc+1}], v[{Da}:{Da+3}]
        v_mfma_f32_16x16x16_bf16 v[{Db}:{Db+3}], v[10:11], v[{Rc+4}:{Rc+5}], v[{Db}:{Db+3}]
        v_mfma_f32_4x4x4_16b_bf16 v[{Ha}:{Ha+3}], v[12:13], v[{Rc+2}:{Rc+3}], 0
        v_mfma_f32_4x4x4_16b_bf16 v[{Hb}:{Hb+3}], v[12:13], v[{Rc+6}:{Rc+7}], 0
        s_nop 4
        ''')
        for i in range(8):
            A(f'v_exp_f32_e64 v{Da+i}, v{Da+i} clamp')
        if u == 2:
            A('v_add_u32 v14, 24, v14')
        else:
            A('s_nop 0')
        A(f'''
        v_pk_add_f32 {pr(Da)}, {pr(Da)}, s[56:57]
        v_pk_add_f32 {pr(Db)}, {pr(Db)}, s[56:57]
        v_pk_add_f32 {pr(Da+2)}, {pr(Da+2)}, s[56:57]
        v_pk_add_f32 {pr(Db+2)}, {pr(Db+2)}, s[56:57]
        v_pk_mul_f32 {pr(P)}, {pr(Da)}, {pr(Db)}
        v_pk_mul_f32 {pr(P+2)}, {pr(Da+2)}, {pr(Db+2)}
        v_pk_mul_f32 {pr(Q)}, {pr(Db)}, {pr(Ha)}
        v_rcp_f32 v{P}, v{P}
        v_rcp_f32 v{P+1}, v{P+1}
        v_rcp_f32 v{P+2}, v{P+2}
        v_rcp_f32 v{P+3}, v{P+3}
        v_pk_mul_f32 {pr(Q+2)}, {pr(Db+2)}, {pr(Ha+2)}
        v_pk_add_f32 {pr(Sg)}, {pr(Da)}, {pr(Db)}
        v_pk_add_f32 {pr(Sg+2)}, {pr(Da+2)}, {pr(Db+2)}
        v_pk_fma_f32 {pr(Q)}, {pr(Da)}, {pr(Hb)}, {pr(Q)}
        v_pk_fma_f32 {pr(Q+2)}, {pr(Da+2)}, {pr(Hb+2)}, {pr(Q+2)}
        s_waitcnt lgkmcnt(1)
        v_cmp_ne_u32 vcc, v16, v17
        v_pk_fma_f32 {pr(DEN)}, {pr(Sg)}, {pr(P)}, {pr(DEN)}
        v_pk_fma_f32 {pr(DEN+2)}, {pr(Sg+2)}, {pr(P+2)}, {pr(DEN+2)}
        v_pk_fma_f32 {pr(NUM)}, {pr(Q)}, {pr(P)}, {pr(NUM)}
        v_pk_fma_f32 {pr(NUM+2)}, {pr(Q+2)}, {pr(P+2)}, {pr(NUM+2)}
        ''')
        if u == 2:
            A('v_add_u32 v15, 48, v15')
        A(f'''
        s_sub_u32 s23, s23, 1
        s_cmp_eq_u32 s23, 0
        s_cbranch_scc1 k2_flush
        s_cbranch_vccnz k2_ev{u}
        ''')
        if u == 2:
            A('s_branch k2_loop')
        else:
            A(f'k2_nx{u}:')
    for u in range(3):
        A(f'k2_tail{u}:\ns_waitcnt vmcnt(0)\ns_branch k2_back{u}')
    for u in range(3):
        A(f'k2_ev{u}:\ns_mov_b64 exec, vcc')
        for j in range(8):
            A(f'ds_add_f32 v18, v{DEN+j} offset:{64*j}')
        A(f'''
        v_lshl_add_u32 v18, v17, 10, v19
        v_mov_b32 v16, v17
        ds_read_b128 v[34:37], v20
        ds_read_b128 v[38:41], v20
        ds_read_b32 v30, v18 offset:512
        ds_read_b32 v31, v18 offset:576
        ds_read_b32 v32, v18 offset:640
        ds_read_b32 v33, v18 offset:704
        s_mov_b64 exec, -1
        s_branch {'k2_loop' if u == 2 else f'k2_nx{u}'}
        ''')
    A('k2_flush:')
    for j in range(8):
        A(f'ds_add_f32 v18, v{DEN+j} offset:{64*j}')
    A('''
    k2_loopdone:
    ''')
    stamp(A, prof, 8)
    A(f'''
    v_lshrrev_b32 v14, 3, v0
    v_and_b32 v15, 7, v0
    v_lshlrev_b32 v16, 5, v15
    v_lshl_or_b32 v16, v14, 10, v16
    v_lshlrev_b32 v15, 4, v15
    v_lshl_or_b32 v15, v14, 8, v15
    s_waitcnt lgkmcnt(0)
    s_barrier
    s_cmp_lg_u32 s72, 0
    s_cbranch_scc1 k2_more
    ''')
    stamp(A, prof, 9)
    A(f'''
    s_cmp_ge_u32 s4, 10
    s_cbranch_scc1 k2_fin
    ds_read_b128 v[20:23], v16
    ds_read_b128 v[24:27], v16 offset:16
    ds_read_b128 v[28:31], v16 offset:256
    ds_read_b128 v[32:35], v16 offset:272
    ds_read_b128 v[36:39], v16 offset:768
    ds_read_b128 v[40:43], v16 offset:784
    s_mov_b32 s20, {hex(EPS60)}
    s_mov_b32 s21, {hex(EPS60)}
    ''')
    for k in range(4):
        A(f'v_lshlrev_b32 v{44+2*k}, 16, v{4+k}')
        A(f'v_and_b32 v{45+2*k}, 0xffff0000, v{4+k}')
    A('s_waitcnt lgkmcnt(4)')
    for k in range(4):
        A(f'v_pk_add_f32 {pr(20+2*k)}, {pr(20+2*k)}, s[20:21]')
    for k in range(8):
        A(f'v_rcp_f32 v{20+k}, v{20+k}')
    A('s_waitcnt lgkmcnt(0)')
    for k in range(4):
        A(f'v_pk_fma_f32 {pr(28+2*k)}, {pr(28+2*k)}, {pr(20+2*k)}, {pr(36+2*k)}')
    for k in range(8):
        A(f'v_max_f32 v{28+k}, 0, v{28+k}')
    for k in range(4):
        A(f'v_pk_add_f32 {pr(28+2*k)}, {pr(28+2*k)}, {pr(44+2*k)}')
    for k in range(4):
        A(f'v_cvt_pk_bf16_f32 v{20+k}, v{28+2*k}, v{29+2*k}')
    A('buffer_store_dwordx4 v[20:23], v15, s[52:55], 0 offen')
    A('k2_fin:')
    stamp(A, prof, 10)
    if prof:
        A('s_waitcnt vmcnt(0)')
        stamp(A, prof, 11)
        stamp_out(A, prof, 18, 19, 4, 1)
    A('k2_exit:\ns_endpgm')
    A(f'''
    k2_more:
    v_mov_b32 v74, 0
    v_mov_b32 v75, 0
    v_mov_b32 v76, 0
    v_mov_b32 v77, 0
    v_lshlrev_b32 v78, 4, v0
    v_add_u32 v78, {CNT}, v78
    v_cmp_gt_u32 vcc, 81, v0
    s_and_saveexec_b64 s[20:21], vcc
    ds_write_b128 v78, v[74:77]
    s_mov_b64 exec, s[20:21]
    v_add_u32 v1, {8*R_*12}, v1
    v_subrev_u32 v2, {8*R_}, v2
    s_mov_b32 s7, 0
    s_branch k2_loadrec
    k2_kernel_end:
    ''')
    return A.text(), LDS

KD = '''.amdhsa_kernel {name}
  .amdhsa_next_free_vgpr {vgpr}
  .amdhsa_next_free_sgpr {sgpr}
  .amdhsa_accum_offset {acc}
  .amdhsa_group_segment_fixed_size 0
  .amdhsa_kernarg_size 96
  .amdhsa_user_sgpr_count 2
  .amdhsa_user_sgpr_kernarg_segment_ptr 1
  .amdhsa_system_sgpr_workgroup_id_x 1
  .amdhsa_float_denorm_mode_32 3
  .amdhsa_dx10_clamp 0
.end_amdhsa_kernel'''

def build(prof=False):
    k1, l1 = gen_k1(prof)
    k2, l2 = gen_k2(prof)
    head = open('standalone__edge_featured_mpnn_gatedgcn__graph.s.ref').read().split('\n')
    head = [h for h in head[:14]]
    out = head + [f'; @launch kernel=k1_kernel grid=(256,1,1) block=(640,1,1) lds={l1}',
                  f'; @launch kernel=k2_kernel grid=(256,1,1) block=(1024,1,1) lds={l2}',
                  '.amdgcn_target "amdgcn-amd-amdhsa--gfx950"', '.text']
    for nm, body in (('k1_kernel', k1), ('k2_kernel', k2)):
        out += [f'.globl {nm}', '.p2align 8', f'.type {nm},@function', body]
    out += ['.section .rodata,"a"', '.p2align 6', KD.format(name='k1_kernel', vgpr=128 if prof else 96, sgpr=102 if prof else 48, acc=128 if prof else 96),
            '.p2align 6', KD.format(name='k2_kernel', vgpr=128 if prof else 114, sgpr=102 if prof else 80, acc=128 if prof else 116)]
    return '\n'.join(out) + '\n'

if __name__ == '__main__':
    prof = '--prof' in sys.argv
    dst = sys.argv[1]
    open(dst, 'w').write(build(prof))
```

```python
import sys

N = 10000; E = 320000
TABH = 10016 * 256
HDRO = 2 * TABH
RECO = HDRO + 0x10000
CH = 2560
STAMPO = 0x1000000
MAGIC = 214749
NLOG2E = 0xbfb8aa3b
C60 = 0x21800000
EPS60 = 0x538637bd
M60 = 0xc2700000

class Asm:
    def __init__(self): self.L = []
    def __call__(self, s):
        for x in s.strip('\n').split('\n'): self.L.append('    ' + x.strip() if not x.strip().endswith(':') else x.strip())
    def text(self): return '\n'.join(self.L)

def srd(A, d, lo, hi, size, stride=0):
    A(f's_mov_b32 s{d}, s{lo}')
    if stride:
        A(f's_and_b32 s{d+1}, s{hi}, 0xffff')
        A(f's_or_b32 s{d+1}, s{d+1}, {hex(stride << 16)}')
    else:
        A(f's_mov_b32 s{d+1}, s{hi}')
    A(f's_mov_b32 s{d+2}, {size}')
    A(f's_mov_b32 s{d+3}, 0x00020000')

def srd_off(A, d, lo, hi, off, size, stride=0):
    A(f's_add_u32 s{d}, s{lo}, {off}')
    A(f's_addc_u32 s{d+1}, s{hi}, 0')
    if stride:
        A(f's_and_b32 s{d+1}, s{d+1}, 0xffff')
        A(f's_or_b32 s{d+1}, s{d+1}, {hex(stride << 16)}')
    A(f's_mov_b32 s{d+2}, {size}')
    A(f's_mov_b32 s{d+3}, 0x00020000')

def scan64(A, v):
    for sh in (1, 2, 4, 8):
        A('s_nop 1')
        A(f'v_add_u32_dpp v{v}, v{v}, v{v} row_shr:{sh} row_mask:0xf bank_mask:0xf bound_ctrl:0')
    A('s_nop 1')
    A(f'v_add_u32_dpp v{v}, v{v}, v{v} row_bcast:15 row_mask:0xa bank_mask:0xf')
    A('s_nop 1')
    A(f'v_add_u32_dpp v{v}, v{v}, v{v} row_bcast:31 row_mask:0xc bank_mask:0xf')

def stamp(A, prof, k, sb=90):
    if not prof: return
    A(f's_memtime s[{sb}:{sb+1}]')
    A('s_waitcnt lgkmcnt(0)')
    A(f'v_writelane_b32 v127, s{sb}, {k}')

def stamp_out(A, prof, wslo, wshi, slot_expr_sgpr, kernel_id):
    if not prof: return
    A('s_mov_b64 exec, 0xffff')
    A(f's_add_u32 s92, s{wslo}, {STAMPO + kernel_id * 0x80000}')
    A(f's_addc_u32 s93, s{wshi}, 0')
    A('s_mov_b32 s94, 0x80000')
    A('s_mov_b32 s95, 0x00020000')
    A(f's_lshl_b32 s96, s2, 4')
    A(f's_add_u32 s96, s96, s{slot_expr_sgpr}')
    A('s_lshl_b32 s96, s96, 6')
    A('s_getreg_b32 s90, hwreg(HW_REG_HW_ID)')
    A('s_getreg_b32 s91, hwreg(HW_REG_XCC_ID)')
    A('v_writelane_b32 v127, s90, 14')
    A('v_writelane_b32 v127, s91, 15')
    A('v_mbcnt_lo_u32_b32 v126, -1, 0')
    A('v_lshlrev_b32 v126, 2, v126')
    A('buffer_store_dword v127, v126, s[92:95], s96 offen')
    A('s_waitcnt vmcnt(0)')

def prefetch_code(A, nbytes, nthreads, vtmp, label):
    A(f's_getpc_b64 s[88:89]')
    A(f'v_lshlrev_b32 v{vtmp}, 6, v0')
    A(f'v_cmp_gt_u32 vcc, {label}_end - {label} - 64, v{vtmp}')
    A('s_and_saveexec_b64 s[86:87], vcc')
    A(f's_cbranch_execz {label}_pf')
    A(f'global_load_dword v{vtmp+1}, v{vtmp}, s[88:89]')
    A(f'{label}_pf:')
    A('s_mov_b64 exec, s[86:87]')

def gen_k1(prof):
    A = Asm()
    XB = 0; WB = 20480; WV = WB + 32768
    CNT = 30720; STA = CNT + 512
    A('k1_kernel:')
    stamp(A, prof, 0)
    A('''
    s_lshr_b32 s3, s2, 4
    s_lshl_b32 s3, s3, 3
    s_and_b32 s5, s2, 7
    s_or_b32 s3, s3, s5
    s_cmp_ge_u32 s3, 125
    s_cbranch_scc1 k1_exit
    s_load_dwordx4 s[8:11], s[0:1], 0
    s_load_dwordx4 s[12:15], s[0:1], 16
    s_load_dwordx2 s[16:17], s[0:1], 40
    s_load_dwordx2 s[18:19], s[0:1], 64
    s_load_dwordx2 s[20:21], s[0:1], 88
    v_lshrrev_b32 v1, 6, v0
    v_and_b32 v3, 63, v0
    v_readfirstlane_b32 s4, v1
    s_bitcmp1_b32 s2, 3
    s_cbranch_scc1 k1_gemm
    ''')
    A('''
    v_lshlrev_b32 v1, 4, v0
    v_lshlrev_b32 v2, 5, v0
    s_mul_i32 s5, s3, 10240
    s_mul_i32 s6, s3, 20480
    s_waitcnt lgkmcnt(0)
    ''')
    srd_off(A, 24, 14, 15, 's5', 10240)
    A('buffer_load_dwordx4 v[4:7], v1, s[24:27], 0 offen')
    srd_off(A, 28, 12, 13, 's5', 10240)
    A('buffer_load_dwordx4 v[8:11], v1, s[28:31], 0 offen')
    srd_off(A, 32, 10, 11, 's6', 20480)
    A('buffer_load_dwordx4 v[12:15], v2, s[32:35], 0 offen')
    A('buffer_load_dwordx4 v[16:19], v2, s[32:35], 0 offen offset:16')
    A(f'''
    v_mov_b32 v32, 0
    v_mov_b32 v33, 1
    v_lshlrev_b32 v34, 2, v0
    v_cmp_gt_u32 vcc, 128, v0
    s_and_saveexec_b64 s[6:7], vcc
    ds_write_b32 v34, v32 offset:{CNT}
    s_mov_b64 exec, s[6:7]
    s_mul_i32 s5, s3, {CH*12}
    s_add_u32 s5, s5, {RECO}
    ''')
    srd_off(A, 36, 20, 21, 's5', CH * 12)
    A(f's_lshl_b32 s5, s3, 9\ns_add_u32 s5, s5, {HDRO}')
    srd_off(A, 40, 20, 21, 's5', 512)
    A(f's_mov_b32 s5, {MAGIC}\ns_movk_i32 s6, 625')
    A('s_waitcnt lgkmcnt(0)\ns_barrier')
    stamp(A, prof, 1)
    A('s_waitcnt vmcnt(3)')
    stamp(A, prof, 2)
    for i in range(4):
        A(f'v_mul_u32_u24 v{20+i}, s5, v{4+i}')
    for i in range(4):
        A(f'v_lshrrev_b32 v{20+i}, 24, v{20+i}')
    for i in range(4):
        A(f'v_lshlrev_b32 v{28+i}, 2, v{20+i}')
        A(f'ds_add_rtn_u32 v{24+i}, v{28+i}, v33 offset:{CNT}')
    for i in range(4):
        A(f'v_mad_u32_u24 v{20+i}, v{20+i}, s6, 7')
    for i in range(4):
        A(f'v_lshrrev_b32 v{20+i}, 3, v{20+i}')
    for i in range(4):
        A(f'v_sub_u32 v{4+i}, v{4+i}, v{20+i}')
    A('s_waitcnt vmcnt(2)')
    for i in range(4):
        A(f'v_lshl_or_b32 v{8+i}, v{4+i}, 16, v{8+i}')
    A('s_waitcnt lgkmcnt(0)\ns_barrier')
    stamp(A, prof, 3)
    A(f'''
    s_cmp_lg_u32 s4, 0
    s_cbranch_scc1 k1_noscan
    v_lshlrev_b32 v34, 3, v0
    ds_read_b64 v[36:37], v34 offset:{CNT}
    s_waitcnt lgkmcnt(0)
    v_add_u32 v38, v36, v37
    v_mov_b32 v39, v38
    ''')
    scan64(A, 38)
    A(f'''
    v_sub_u32 v38, v38, v39
    v_add_u32 v39, v38, v36
    ds_write_b64 v34, v[38:39] offset:{STA}
    v_lshl_or_b32 v36, v36, 16, v38
    v_lshl_or_b32 v37, v37, 16, v39
    buffer_store_dwordx2 v[36:37], v34, s[40:43], 0 offen
    s_waitcnt lgkmcnt(0)
    k1_noscan:
    s_barrier
    ''')
    stamp(A, prof, 4)
    for i in range(4):
        A(f'ds_read_b32 v{20+i}, v{28+i} offset:{STA}')
    for i in range(4):
        A(f's_waitcnt lgkmcnt({3-i})')
        A(f'v_add_u32 v{20+i}, v{20+i}, v{24+i}')
        A(f'v_mul_u32_u24 v{20+i}, 12, v{20+i}')
    A('s_waitcnt vmcnt(0)' if False else 's_waitcnt vmcnt(0)')
    for i in range(4):
        A(f'ds_write2_b32 v{20+i}, v{12+2*i}, v{13+2*i} offset0:0 offset1:1')
        A(f'ds_write_b32 v{20+i}, v{8+i} offset:8')
    A('s_waitcnt lgkmcnt(0)\ns_barrier')
    stamp(A, prof, 5)
    for j in range(3):
        A(f'ds_read_b128 v[{4+4*j}:{7+4*j}], v1 offset:{10240*j}')
    A('v_add_u32 v2, 10240, v1\nv_add_u32 v3, 20480, v1')
    for j in range(3):
        A(f's_waitcnt lgkmcnt({2-j})')
        A(f'buffer_store_dwordx4 v[{4+4*j}:{7+4*j}], v{1+j}, s[36:39], 0 offen')
    stamp(A, prof, 6)
    if prof:
        A('s_waitcnt vmcnt(0)')
        stamp(A, prof, 7)
        stamp_out(A, prof, 20, 21, 4, 0)
    A('s_endpgm')
    A('k1_gemm:')
    A('''
    v_lshrrev_b32 v4, 4, v3
    v_and_b32 v5, 15, v3
    v_xor_b32 v6, v5, v4
    v_lshlrev_b32 v6, 4, v6
    v_lshl_or_b32 v6, v4, 8, v6
    v_lshlrev_b32 v7, 1, v4
    v_xor_b32 v7, v5, v7
    v_lshlrev_b32 v7, 4, v7
    v_lshl_or_b32 v7, v4, 8, v7
    s_mul_i32 s5, s3, 20480
    s_waitcnt lgkmcnt(0)
    ''')
    srd_off(A, 24, 8, 9, 's5', 20480)
    srd(A, 28, 16, 17, 32768)
    srd(A, 32, 18, 19, 32768)
    for j in range(2):
        A(f'''
        s_lshl_b32 s5, s4, 1
        s_add_u32 s5, s5, {j}
        s_and_b32 s6, s5, 3
        s_lshl_b32 s6, s6, 6
        s_lshl_b32 s5, s5, 10
        v_xor_b32 v8, s6, v6
        s_add_u32 m0, s5, {XB}
        s_nop 0
        buffer_load_dwordx4 v8, s[24:27], s5 offen lds
        ''')
    for j in range(4):
        if j == 3:
            A('s_cmp_ge_u32 s4, 2\ns_cbranch_scc1 k1_dmadone')
        A(f'''
        s_add_u32 s5, s4, {10*j}
        s_lshl_b32 s6, s5, 6
        s_and_b32 s6, s6, 128
        s_lshl_b32 s5, s5, 10
        v_xor_b32 v8, s6, v7
        s_add_u32 m0, s5, {WB}
        s_nop 0
        buffer_load_dwordx4 v8, s[28:31], s5 offen lds
        s_add_u32 m0, s5, {WV}
        s_nop 0
        buffer_load_dwordx4 v8, s[32:35], s5 offen lds
        ''')
    A('k1_dmadone:')
    A(f'''
    s_lshr_b32 s5, s4, 1
    s_and_b32 s6, s4, 1
    s_lshl_b32 s7, s5, 12
    v_xor_b32 v8, v4, v5
    v_lshlrev_b32 v8, 4, v8
    v_lshl_or_b32 v8, v5, 8, v8
    v_add_u32 v8, s7, v8
    v_xor_b32 v9, 64, v8
    v_xor_b32 v10, 128, v8
    v_xor_b32 v11, 192, v8
    v_bfe_u32 v12, v3, 2, 2
    v_and_b32 v13, 1, v4
    v_lshl_or_b32 v13, v13, 2, v12
    v_lshlrev_b32 v13, 5, v13
    v_lshl_add_u32 v12, v4, 3, v12
    v_lshl_or_b32 v13, v12, 8, v13
    v_and_b32 v12, 3, v3
    v_lshl_or_b32 v13, v12, 3, v13
    v_add_u32 v13, {WB}, v13
    s_lshl_b32 s7, s6, 7
    v_xor_b32 v12, s7, v13
    v_xor_b32 v13, 32, v12
    v_xor_b32 v14, 64, v12
    v_xor_b32 v15, 96, v12
    s_mul_i32 s7, s6, {TABH}
    s_mul_i32 s22, s3, 20480
    s_add_u32 s7, s7, s22
    s_lshl_b32 s22, s5, 12
    s_add_u32 s7, s7, s22
    ''')
    srd_off(A, 36, 20, 21, 's7', 4096)
    A(f'''
    v_lshlrev_b32 v6, 10, v4
    v_lshl_or_b32 v6, v5, 4, v6
    s_mov_b32 s22, {hex(NLOG2E)}
    s_mov_b32 s23, {hex(NLOG2E)}
    s_waitcnt vmcnt(0)
    s_barrier
    ''')
    stamp(A, prof, 2)
    XF = 16
    WF = 32
    AC = 64
    for s in range(4):
        A(f'ds_read_b128 v[{XF+4*s}:{XF+4*s+3}], v{8+s} offset:{XB}')
    steps = [(s, m, c) for s in range(4) for m in range(2) for c in range(4)]
    PD = 4
    def rd(i):
        s, m, c = steps[i]; b = WF + 4 * (i % 8)
        for u in range(2):
            A(f'ds_read_b64_tr_b16 v[{b+2*u}:{b+2*u+1}], v{12+c} offset:{m*32768 + (32*s+4*u)*256}')
    for i in range(PD): rd(i)
    for i in range(32):
        s, m, c = steps[i]; b = WF + 4 * (i % 8)
        if i + PD < 32:
            rd(i + PD); A(f's_waitcnt lgkmcnt({2*PD})')
        else:
            A(f's_waitcnt lgkmcnt({2*(31-i)})')
        acc = AC + 16 * m + 4 * c
        cin = '0' if s == 0 else f'v[{acc}:{acc+3}]'
        A(f'v_mfma_f32_16x16x32_bf16 v[{acc}:{acc+3}], v[{XF+4*s}:{XF+4*s+3}], v[{b}:{b+3}], {cin}')
    stamp(A, prof, 3)
    A('s_nop 3')
    for c in range(4):
        for u in range(2):
            A(f'v_pk_mul_f32 v[{AC+4*c+2*u}:{AC+4*c+2*u+1}], v[{AC+4*c+2*u}:{AC+4*c+2*u+1}], s[22:23]')
    for i in range(4):
        o = 16 + 4 * i
        A(f'v_cvt_pk_bf16_f32 v{o}, v{AC+i}, v{AC+4+i}')
        A(f'v_cvt_pk_bf16_f32 v{o+1}, v{AC+8+i}, v{AC+12+i}')
        A(f'v_cvt_pk_bf16_f32 v{o+2}, v{AC+16+i}, v{AC+20+i}')
        A(f'v_cvt_pk_bf16_f32 v{o+3}, v{AC+24+i}, v{AC+28+i}')
        A(f'buffer_store_dwordx4 v[{o}:{o+3}], v6, s[36:39], 0 offen offset:{256*i}')
    A(f'''
    s_or_b32 s5, s5, s3
    s_cmp_lg_u32 s5, 0
    s_cbranch_scc1 k1_nonull
    s_mul_i32 s7, s6, {TABH}
    s_add_u32 s7, s7, {N*256}
    ''')
    srd_off(A, 40, 20, 21, 's7', 256)
    A('''
    v_mov_b32 v32, 0x7f7f7f7f
    v_mov_b32 v33, 0x7f7f7f7f
    v_mov_b32 v34, 0
    v_mov_b32 v35, 0
    v_lshlrev_b32 v7, 4, v3
    buffer_store_dwordx4 v[32:35], v7, s[40:43], 0 offen
    k1_nonull:
    ''')
    stamp(A, prof, 6)
    if prof:
        A('s_waitcnt vmcnt(0)')
        stamp(A, prof, 7)
        stamp_out(A, prof, 20, 21, 4, 0)
    A('k1_exit:')
    A('s_endpgm')
    A('k1_kernel_end:')
    return A.text(), 86016

def gen_k2(prof):
    A = Asm()
    HEAD = 81920
    XB = HEAD; WA = XB + 20480; WU = WA + 16384
    EL = HEAD + 32768; CAPR = 3904; PL = EL + CAPR * 8
    CAPT = CAPR - 16
    CNT = PL + CAPR * 4; STA = CNT + 512; HIN = STA + 512; MISC = HIN + 640; ZER = MISC + 16
    NZ = (ZER + 16 - CNT) // 16
    LDS = ZER + 16
    assert LDS <= 163840 and WU + 16384 <= CNT
    RC = 42
    R_ = 6
    MK = 60
    def pr(a): return f'v[{a}:{a+1}]'
    A('k2_kernel:')
    stamp(A, prof, 0)
    A("""
    s_cmp_ge_u32 s2, 256
    s_cbranch_scc1 k2_exit
    s_load_dwordx2 s[8:9], s[0:1], 0
    s_load_dwordx2 s[10:11], s[0:1], 32
    s_load_dwordx4 s[12:15], s[0:1], 48
    s_load_dwordx2 s[16:17], s[0:1], 72
    s_load_dwordx2 s[18:19], s[0:1], 88
    v_lshrrev_b32 v1, 6, v0
    v_and_b32 v3, 63, v0
    v_readfirstlane_b32 s4, v1
    s_lshr_b32 s3, s2, 1
    s_and_b32 s5, s2, 1
    s_mul_i32 s6, s3, 625
    s_add_u32 s7, s6, 632
    s_add_u32 s6, s6, 7
    s_lshr_b32 s6, s6, 3
    s_lshr_b32 s7, s7, 3
    s_sub_u32 s7, s7, s6
    v_lshrrev_b32 v1, 3, v0
    v_lshlrev_b32 v2, 9, v1
    s_lshl_b32 s20, s3, 2
    s_waitcnt lgkmcnt(0)
    """)
    srd_off(A, 24, 18, 19, HDRO, 125 * 512)
    A('buffer_load_dword v2, v2, s[24:27], s20 offen')
    A('s_lshl_b32 s20, s6, 8')
    A(f's_sub_u32 s21, {N*256}, s20')
    srd_off(A, 28, 8, 9, 's20', 's21')
    A('s_lshl_b32 s22, s5, 7\ns_sub_u32 s23, 32768, s22')
    srd_off(A, 32, 10, 11, 's22', 's23')
    srd_off(A, 36, 14, 15, 's22', 's23')
    A(f"""
    v_lshrrev_b32 v66, 4, v3
    v_and_b32 v67, 15, v3
    v_xor_b32 v68, v67, v66
    v_lshlrev_b32 v68, 4, v68
    v_lshl_or_b32 v68, v66, 8, v68
    s_and_b32 s20, s4, 3
    s_lshl_b32 s20, s20, 6
    v_xor_b32 v68, s20, v68
    v_lshrrev_b32 v69, 3, v3
    v_and_b32 v70, 7, v3
    v_and_b32 v71, 2, v69
    v_xor_b32 v70, v70, v71
    v_lshlrev_b32 v70, 4, v70
    v_lshl_or_b32 v70, v69, 8, v70
    s_and_b32 s20, s4, 1
    s_lshl_b32 s20, s20, 6
    v_xor_b32 v70, s20, v70
    s_lshl_b32 s20, s4, 10
    s_lshl_b32 s21, s4, 11
    s_add_u32 m0, s20, {XB}
    s_nop 0
    buffer_load_dwordx4 v68, s[28:31], s20 offen lds
    s_add_u32 m0, s20, {WA}
    s_nop 0
    buffer_load_dwordx4 v70, s[32:35], s21 offen lds
    s_add_u32 m0, s20, {WU}
    s_nop 0
    buffer_load_dwordx4 v70, s[36:39], s21 offen lds
    s_cmp_ge_u32 s4, 4
    s_cbranch_scc1 k2_nox2
    s_add_u32 s20, s20, 16384
    s_add_u32 m0, s20, {XB}
    s_nop 0
    buffer_load_dwordx4 v68, s[28:31], s20 offen lds
    k2_nox2:
    """)
    A('s_sub_u32 s23, 1024, s22')
    srd_off(A, 40, 12, 13, 's22', 's23')
    A('v_lshlrev_b32 v71, 1, v3')
    for k in range(4):
        A(f'buffer_load_ushort v{14+k}, v71, s[40:43], 0 offen offset:{256*k}')
    A("""
    v_and_b32 v72, 7, v0
    v_lshlrev_b32 v73, 2, v72
    v_lshl_or_b32 v73, v1, 8, v73
    """)
    for c in range(4):
        A(f'buffer_load_dword v{4+c}, v73, s[28:31], s22 offen offset:{32*c}')
    A(f"""
    v_mov_b32 v74, 0
    v_mov_b32 v75, 0
    v_mov_b32 v76, 0
    v_mov_b32 v77, 0
    v_lshrrev_b32 v78, 5, v0
    v_and_b32 v79, 31, v0
    v_lshlrev_b32 v79, 4, v79
    v_lshl_or_b32 v78, v78, 10, v79
    ds_write_b128 v78, v[74:77]
    ds_write_b128 v78, v[74:77] offset:32768
    s_cmp_ge_u32 s4, 8
    s_cbranch_scc1 k2_noz
    v_add_u32 v78, 0x10000, v78
    ds_write_b128 v78, v[74:77]
    k2_noz:
    v_lshlrev_b32 v78, 4, v0
    v_add_u32 v78, {CNT}, v78
    v_cmp_gt_u32 vcc, {NZ}, v0
    s_and_saveexec_b64 s[20:21], vcc
    ds_write_b128 v78, v[74:77]
    s_mov_b64 exec, s[20:21]
    """)
    srd_off(A, 44, 18, 19, RECO, 125 * CH * 12)
    A(f's_mul_i32 s20, s5, {TABH}')
    srd_off(A, 48, 18, 19, 's20', N + 1, stride=256)
    A('s_lshl_b32 s20, s6, 8\ns_add_u32 s20, s20, s22\ns_lshl_b32 s21, s7, 8\ns_sub_u32 s21, s21, s22')
    srd_off(A, 52, 16, 17, 's20', 's21')
    A(f"""
    v_and_b32 v78, 1, v3
    v_lshlrev_b32 v78, 4, v78
    v_mov_b32 v79, 0x3f80
    v_lshlrev_b32 v79, v78, v79
    v_and_b32 v78, 2, v3
    v_cmp_eq_u32 vcc, 0, v78
    v_bfe_u32 v80, v3, 2, 2
    v_mul_u32_u24 v1, {CH*12}, v1
    v_cndmask_b32 v12, 0, v79, vcc
    v_cndmask_b32 v13, v79, v74, vcc
    v_cmp_eq_u32 vcc, v80, v66
    s_mov_b32 s56, {hex(C60)}
    s_mov_b32 s57, {hex(C60)}
    v_cndmask_b32 v10, 0, v12, vcc
    v_cndmask_b32 v11, 0, v13, vcc
    s_mov_b32 s58, 0x22221111
    s_mov_b32 s59, 0x88884444
    """)
    A('s_waitcnt vmcnt(11)')
    stamp(A, prof, 1)
    A(f"""
    v_and_b32 v78, 0xffff, v2
    v_add_u32 v78, v78, v72
    v_mad_u32_u24 v1, v78, 12, v1
    v_lshrrev_b32 v2, 16, v2
    v_sub_u32 v2, v2, v72
    """)
    A('k2_loadrec:')
    A(f's_mov_b32 s75, {8*R_}')
    for r in range(R_):
        A(f'v_cmp_lt_i32 s[{MK+2*r}:{MK+2*r+1}], {8*r}, v2')
    for r in range(R_):
        A(f's_mov_b64 exec, s[{MK+2*r}:{MK+2*r+1}]')
        A(f's_cbranch_execz k2_ld{r}')
        A(f'buffer_load_dwordx3 v[{RC+4*r}:{RC+4*r+2}], v1, s[44:47], 0 offen offset:{96*r}')
    A(f's_waitcnt vmcnt({R_})\ns_branch k2_lddone')
    for r in range(R_):
        A(f'k2_ld{r}:\ns_waitcnt vmcnt({r})')
        if r < R_ - 1: A('s_branch k2_lddone')
    A('k2_lddone:\ns_mov_b64 exec, -1')
    A('s_waitcnt lgkmcnt(0)\ns_barrier')
    stamp(A, prof, 2)
    A('s_cmp_eq_u32 s7, 0\ns_cbranch_scc1 k2_gemmdone')
    A(f's_mov_b32 s20, {hex(NLOG2E)}')
    for k in range(4):
        A(f'v_lshlrev_b32 v{14+k}, 16, v{14+k}')
    for k in range(4):
        A(f'v_mul_f32 v{14+k}, s20, v{14+k}')
    A('v_cvt_pk_bf16_f32 v8, v14, v15\nv_cvt_pk_bf16_f32 v9, v16, v17')
    XF = 66; WF = 82; AC = 26
    A(f"""
    s_cmp_ge_u32 s4, 10
    s_cbranch_scc1 k2_gemmdone
    s_lshr_b32 s22, s4, 1
    s_and_b32 s21, s4, 1
    v_lshrrev_b32 v22, 4, v3
    v_and_b32 v23, 15, v3
    s_lshl_b32 s23, s22, 12
    s_add_u32 s23, s23, {XB}
    v_xor_b32 v18, v22, v23
    v_lshlrev_b32 v18, 4, v18
    v_lshl_or_b32 v18, v23, 8, v18
    v_add_u32 v18, s23, v18
    v_xor_b32 v19, 64, v18
    v_xor_b32 v20, 128, v18
    v_xor_b32 v21, 192, v18
    """)
    for s in range(4):
        A(f'ds_read_b128 v[{XF+4*s}:{XF+4*s+3}], v{18+s}')
    A(f"""
    v_bfe_u32 v24, v3, 2, 2
    v_lshl_add_u32 v14, v22, 3, v24
    v_lshlrev_b32 v14, 7, v14
    v_lshrrev_b32 v24, 1, v24
    v_and_b32 v25, 1, v22
    v_lshl_or_b32 v24, v25, 1, v24
    v_lshl_or_b32 v14, v24, 5, v14
    v_and_b32 v24, 3, v3
    v_lshl_or_b32 v14, v24, 3, v14
    s_lshl_b32 s23, s21, 14
    s_add_u32 s23, s23, {WA}
    v_add_u32 v14, s23, v14
    v_xor_b32 v15, 32, v14
    v_xor_b32 v16, 64, v14
    v_xor_b32 v17, 96, v14
    """)
    steps = [(s, c) for s in range(4) for c in range(4)]
    PD = 4
    def rd(i):
        s, c = steps[i]; b = WF + 4 * (i % 8)
        for u in range(2):
            A(f'ds_read_b64_tr_b16 v[{b+2*u}:{b+2*u+1}], v{14+c} offset:{(32*s+4*u)*128}')
    for i in range(PD): rd(i)
    A(f"""
    s_lshl_b32 s23, s22, 14
    s_lshl_b32 s22, s21, 8
    s_add_u32 s23, s23, s22
    s_add_u32 s23, s23, 512
    v_lshlrev_b32 v18, 12, v22
    v_lshl_or_b32 v18, v23, 4, v18
    v_add_u32 v18, s23, v18
    s_cmp_eq_u32 s21, 0
    s_cselect_b32 s20, s20, 1.0
    s_cselect_b32 s21, {hex(M60)}, 0
    v_mov_b32 v19, s21
    """)
    for i in range(16):
        s, c = steps[i]; b = WF + 4 * (i % 8)
        if i + PD < 16:
            rd(i + PD); A(f's_waitcnt lgkmcnt({2*PD})')
        else:
            A(f's_waitcnt lgkmcnt({2*(15-i)})')
        acc = AC + 4 * c
        cin = '0' if s == 0 else f'v[{acc}:{acc+3}]'
        A(f'v_mfma_f32_16x16x32_bf16 v[{acc}:{acc+3}], v[{XF+4*s}:{XF+4*s+3}], v[{b}:{b+3}], {cin}')
    A('s_nop 7')
    for i in range(4):
        for c in range(4):
            A(f'v_fma_f32 v{XF+4*i+c}, v{AC+4*c+i}, s20, v19')
        A(f'ds_write_b128 v18, v[{XF+4*i}:{XF+4*i+3}] offset:{i*1024}')
    A('k2_gemmdone:')
    stamp(A, prof, 3)
    A(f'v_mov_b32 v14, 1\nv_mov_b32 v15, {CNT}\ns_waitcnt vmcnt(0)')
    stamp(A, prof, 4)
    A('k2_rank:')
    for r in range(R_):
        A(f's_mov_b64 exec, s[{MK+2*r}:{MK+2*r+1}]')
        A(f's_cbranch_execz k2_rankdone')
        A(f'v_lshrrev_b32 v{66+r}, 14, v{RC+4*r+2}')
        A(f'v_add_u32 v{66+r}, v15, v{66+r}')
        A(f'ds_add_rtn_u32 v{RC+4*r+3}, v{66+r}, v14')
    A(f"""
    v_cmp_lt_i32 vcc, {8*R_}, v2
    s_and_b64 exec, exec, vcc
    s_cbranch_execz k2_rankdone
    ds_write_b32 v15, v14 offset:{MISC - CNT}
    k2_rankdone:
    s_mov_b64 exec, -1
    s_waitcnt lgkmcnt(0)
    s_barrier
    """)
    stamp(A, prof, 5)
    A(f"""
    s_cmp_lg_u32 s4, 0
    s_cbranch_scc1 k2_noscan
    v_lshl_add_u32 v16, v3, 3, v15
    ds_read_b64 v[18:19], v16
    s_waitcnt lgkmcnt(0)
    v_add_u32 v18, 1, v18
    v_add_u32 v19, 1, v19
    v_and_b32 v18, -2, v18
    v_and_b32 v19, -2, v19
    v_add_u32 v20, v18, v19
    v_mov_b32 v21, v20
    """)
    scan64(A, 20)
    A(f"""
    v_sub_u32 v20, v20, v21
    v_add_u32 v21, v20, v18
    ds_write_b64 v16, v[20:21] offset:{STA - CNT}
    s_waitcnt lgkmcnt(0)
    k2_noscan:
    s_barrier
    """)
    stamp(A, prof, 6)
    A(f"""
    ds_read_b32 v16, v15 offset:{STA - CNT + 4*100}
    ds_read_b32 v17, v15 offset:{MISC - CNT}
    """)
    for r in range(R_):
        A(f's_mov_b64 exec, s[{MK+2*r}:{MK+2*r+1}]')
        A(f's_cbranch_execz k2_st')
        A(f'ds_read_b32 v{72+r}, v{66+r} offset:{STA - CNT}')
    A(f"""
    k2_st:
    s_mov_b64 exec, -1
    v_lshl_add_u32 v18, v0, 2, v15
    s_cmp_ge_u32 s4, 2
    s_cbranch_scc1 k2_nopad0
    ds_read_b32 v19, v18
    ds_read_b32 v20, v18 offset:{STA - CNT}
    k2_nopad0:
    s_mov_b32 s20, {EL}
    s_mov_b32 s21, {PL}
    s_waitcnt lgkmcnt(0)
    v_readfirstlane_b32 s22, v16
    v_readfirstlane_b32 s72, v17
    s_cmp_gt_u32 s22, {CAPT}
    s_cbranch_scc1 k2_shrink
    s_cmp_ge_u32 s4, 2
    s_cbranch_scc1 k2_nopad
    v_subrev_u32 v21, 80, v0
    v_cmp_gt_u32 vcc, 80, v0
    v_mov_b32 v22, 0
    v_mov_b32 v23, 0
    v_min_u32 v24, 79, v0
    v_lshlrev_b32 v24, 16, v24
    v_or_b32 v24, {N}, v24
    v_cndmask_b32 v25, v21, v19, vcc
    v_add_u32 v20, v20, v25
    v_and_b32 v19, 1, v19
    v_cmp_eq_u32 vcc, 1, v19
    v_cmp_gt_u32 s[76:77], 8, v21
    s_or_b64 exec, vcc, s[76:77]
    s_cbranch_execz k2_nopad
    v_lshl_add_u32 v25, v20, 3, s20
    v_lshl_add_u32 v20, v20, 2, s21
    ds_write_b64 v25, v[22:23]
    ds_write_b32 v20, v24
    k2_nopad:
    """)
    for r in range(R_):
        A(f's_mov_b64 exec, s[{MK+2*r}:{MK+2*r+1}]')
        A(f's_cbranch_execz k2_scat')
        A(f'v_add_u32 v{72+r}, v{72+r}, v{RC+4*r+3}')
        A(f'v_lshl_add_u32 v{66+r}, v{72+r}, 3, s20')
        A(f'v_lshl_add_u32 v{72+r}, v{72+r}, 2, s21')
        A(f'ds_write_b64 v{66+r}, v[{RC+4*r}:{RC+4*r+1}]')
        A(f'ds_write_b32 v{72+r}, v{RC+4*r+2}')
    A(f"""
    k2_scat:
    s_mov_b64 exec, -1
    v_lshrrev_b32 v16, 4, v3
    v_bfe_u32 v17, v3, 2, 2
    s_add_u32 s22, s22, 6
    s_lshr_b32 s22, s22, 3
    s_lshr_b32 s23, s22, 4
    s_and_b32 s22, s22, 15
    s_mul_i32 s73, s23, s4
    s_min_u32 s74, s4, s22
    s_add_u32 s73, s73, s74
    s_cmp_lt_u32 s4, s22
    s_addc_u32 s23, s23, 0
    s_lshl_b32 s73, s73, 2
    v_mov_b32 v18, s73
    v_mad_u32_u24 v14, v16, s23, v18
    v_mad_u32_u24 v17, v17, s23, v18
    v_lshl_add_u32 v14, v14, 3, s21
    v_lshl_add_u32 v15, v17, 4, s20
    v_and_b32 v19, 15, v3
    v_lshlrev_b32 v23, 4, v19
    v_mov_b32 v25, v23
    v_mov_b32 v59, v23
    v_mov_b32 v61, v23
    v_mov_b32 v63, v23
    v_mov_b32 v65, v23
    s_lshl_b32 s74, s4, 2
    v_add_u32 v21, s74, v16
    v_lshl_add_u32 v18, v21, 9, v23
    v_add_u32 v18, {HEAD}, v18
    v_add_u32 v21, 1, v21
    v_mov_b32 v20, 1
    v_mov_b32 v26, 0
    v_mov_b32 v27, 0
    v_mov_b32 v28, 0
    v_mov_b32 v29, 0
    v_mov_b64 v[34:35], 0
    v_mov_b64 v[36:37], 0
    v_mov_b64 v[38:39], 0
    v_mov_b64 v[40:41], 0
    s_mov_b32 s76, 0x00010001
    s_mov_b32 s77, 0x00010001
    s_waitcnt lgkmcnt(0)
    s_barrier
    """)
    stamp(A, prof, 7)
    RB = 70
    A(f"""
    s_cmp_eq_u32 s23, 0
    s_cbranch_scc1 k2_loopdone
    ds_read_u16 v58, v14
    ds_read_u16 v60, v14 offset:4
    ds_read_u16 v16, v14 offset:2
    ds_read_u16 v62, v14 offset:8
    ds_read_u16 v64, v14 offset:12
    ds_read_u16 v22, v14 offset:16
    ds_read_u16 v24, v14 offset:20
    s_mov_b64 exec, s[58:59]
    ds_read_b128 v[26:29], v15
    s_mov_b64 exec, -1
    s_waitcnt lgkmcnt(6)
    buffer_load_dwordx4 v[{RB}:{RB+3}], v[58:59], s[48:51], 0 idxen offen
    buffer_load_dwordx4 v[{RB+4}:{RB+7}], v[60:61], s[48:51], 0 idxen offen
    s_waitcnt lgkmcnt(3)
    buffer_load_dwordx4 v[{RB+8}:{RB+11}], v[62:63], s[48:51], 0 idxen offen
    buffer_load_dwordx4 v[{RB+12}:{RB+15}], v[64:65], s[48:51], 0 idxen offen
    v_lshl_add_u32 v19, v16, 10, v23
    ds_read_b128 v[30:33], v19 offset:512
    v_lshlrev_b32 v19, 3, v16
    v_add_u32 v19, {HIN}, v19
    s_mov_b64 exec, s[76:77]
    ds_add_u32 v19, v20
    ds_max_u32 v19, v21 offset:4
    s_mov_b64 exec, -1
    k2_loop:
    """)
    Da = 42; Db = 46; Ha = 50; Hb = 54; P = 58; Sg = 62; Q = 66; DEN = 34; NUM = 38
    for u in range(3):
        Rc = RB + 8 * u; Rn = RB + 8 * ((u + 2) % 3)
        A(f"""
        s_waitcnt lgkmcnt(0)
        v_mfma_f32_16x16x16_bf16 v[{Da}:{Da+3}], v[26:27], v[8:9], v[30:33]
        v_mfma_f32_16x16x16_bf16 v[{Db}:{Db+3}], v[28:29], v[8:9], v[30:33]
        s_cmp_lt_u32 s23, 3
        s_cbranch_scc1 k2_tail{u}
        buffer_load_dwordx4 v[{Rn}:{Rn+3}], v[22:23], s[48:51], 0 idxen offen
        buffer_load_dwordx4 v[{Rn+4}:{Rn+7}], v[24:25], s[48:51], 0 idxen offen
        ds_read_u16 v22, v14 offset:{(u+3)*8}
        ds_read_u16 v24, v14 offset:{(u+3)*8+4}
        s_waitcnt vmcnt(4)
        k2_back{u}:
        ds_read_u16 v17, v14 offset:{(u+1)*8+2}
        s_mov_b64 exec, s[58:59]
        ds_read_b128 v[26:29], v15 offset:{(u+1)*16}
        s_mov_b64 exec, -1
        v_mfma_f32_16x16x16_bf16 v[{Da}:{Da+3}], v[10:11], v[{Rc}:{Rc+1}], v[{Da}:{Da+3}]
        v_mfma_f32_16x16x16_bf16 v[{Db}:{Db+3}], v[10:11], v[{Rc+4}:{Rc+5}], v[{Db}:{Db+3}]
        v_mfma_f32_4x4x4_16b_bf16 v[{Ha}:{Ha+3}], v[12:13], v[{Rc+2}:{Rc+3}], 0
        v_mfma_f32_4x4x4_16b_bf16 v[{Hb}:{Hb+3}], v[12:13], v[{Rc+6}:{Rc+7}], 0
        s_nop 4
        """)
        for i in range(8):
            A(f'v_exp_f32_e64 v{Da+i}, v{Da+i} clamp')
        if u == 2:
            A('v_add_u32 v14, 24, v14')
        else:
            A('s_nop 0')
        A(f"""
        v_pk_add_f32 {pr(Da)}, {pr(Da)}, s[56:57]
        v_pk_add_f32 {pr(Db)}, {pr(Db)}, s[56:57]
        v_pk_add_f32 {pr(Da+2)}, {pr(Da+2)}, s[56:57]
        v_pk_add_f32 {pr(Db+2)}, {pr(Db+2)}, s[56:57]
        v_pk_mul_f32 {pr(P)}, {pr(Da)}, {pr(Db)}
        v_pk_mul_f32 {pr(P+2)}, {pr(Da+2)}, {pr(Db+2)}
        v_pk_mul_f32 {pr(Q)}, {pr(Db)}, {pr(Ha)}
        v_rcp_f32 v{P}, v{P}
        v_rcp_f32 v{P+1}, v{P+1}
        v_rcp_f32 v{P+2}, v{P+2}
        v_rcp_f32 v{P+3}, v{P+3}
        v_pk_mul_f32 {pr(Q+2)}, {pr(Db+2)}, {pr(Ha+2)}
        v_pk_add_f32 {pr(Sg)}, {pr(Da)}, {pr(Db)}
        v_pk_add_f32 {pr(Sg+2)}, {pr(Da+2)}, {pr(Db+2)}
        v_pk_fma_f32 {pr(Q)}, {pr(Da)}, {pr(Hb)}, {pr(Q)}
        v_pk_fma_f32 {pr(Q+2)}, {pr(Da+2)}, {pr(Hb+2)}, {pr(Q+2)}
        s_waitcnt lgkmcnt(1)
        v_cmp_ne_u32 vcc, v16, v17
        v_pk_fma_f32 {pr(DEN)}, {pr(Sg)}, {pr(P)}, {pr(DEN)}
        v_pk_fma_f32 {pr(DEN+2)}, {pr(Sg+2)}, {pr(P+2)}, {pr(DEN+2)}
        v_pk_fma_f32 {pr(NUM)}, {pr(Q)}, {pr(P)}, {pr(NUM)}
        v_pk_fma_f32 {pr(NUM+2)}, {pr(Q+2)}, {pr(P+2)}, {pr(NUM+2)}
        """)
        if u == 2:
            A('v_add_u32 v15, 48, v15')
        A(f"""
        s_sub_u32 s23, s23, 1
        s_cmp_eq_u32 s23, 0
        s_cbranch_scc1 k2_flush
        s_cbranch_vccnz k2_ev{u}
        """)
        if u == 2:
            A('s_branch k2_loop')
        else:
            A(f'k2_nx{u}:')
    for u in range(3):
        A(f'k2_tail{u}:\ns_waitcnt vmcnt(0)\ns_branch k2_back{u}')
    for u in range(3):
        A(f"""
        k2_ev{u}:
        s_mov_b64 exec, vcc
        ds_write_b128 v18, v[34:37]
        ds_write_b128 v18, v[38:41] offset:256
        v_lshl_add_u32 v18, v17, 10, v23
        v_mov_b32 v16, v17
        ds_read_b128 v[30:33], v18 offset:512
        ds_read_b128 v[34:37], v18
        ds_read_b128 v[38:41], v18 offset:256
        s_mov_b64 exec, -1
        s_branch {'k2_loop' if u == 2 else f'k2_nx{u}'}
        """)
    A("""
    k2_flush:
    ds_write_b128 v18, v[34:37]
    ds_write_b128 v18, v[38:41] offset:256
    k2_loopdone:
    """)
    stamp(A, prof, 8)
    A(f"""
    v_lshrrev_b32 v14, 3, v0
    v_and_b32 v15, 7, v0
    v_lshlrev_b32 v17, 5, v15
    v_lshl_or_b32 v16, v14, 10, v17
    v_lshlrev_b32 v15, 2, v15
    v_lshl_or_b32 v15, v14, 8, v15
    v_lshlrev_b32 v14, 3, v14
    v_add_u32 v14, {HIN}, v14
    v_add_u32 v17, {HEAD - 512}, v17
    s_waitcnt lgkmcnt(0)
    s_barrier
    """)
    stamp(A, prof, 9)
    A(f"""
    s_cmp_ge_u32 s4, 10
    s_cbranch_scc1 k2_merged
    ds_read_b64 v[18:19], v14
    ds_read_b128 v[20:23], v16
    ds_read_b128 v[24:27], v16 offset:16
    ds_read_b128 v[28:31], v16 offset:256
    ds_read_b128 v[32:35], v16 offset:272
    ds_read_b128 v[36:39], v16 offset:768
    ds_read_b128 v[40:43], v16 offset:784
    s_waitcnt lgkmcnt(6)
    v_lshl_add_u32 v19, v19, 9, v17
    k2_mloop:
    v_cmp_lt_u32 vcc, 0, v18
    s_and_b64 exec, exec, vcc
    s_cbranch_execz k2_mdone
    ds_read_b128 v[44:47], v19
    ds_read_b128 v[48:51], v19 offset:16
    ds_read_b128 v[52:55], v19 offset:256
    ds_read_b128 v[56:59], v19 offset:272
    v_subrev_u32 v18, 1, v18
    v_subrev_u32 v19, 512, v19
    s_waitcnt lgkmcnt(0)
    """)
    for k in range(8):
        A(f'v_pk_add_f32 {pr(20+2*k)}, {pr(20+2*k)}, {pr(44+2*k)}')
    A(f"""
    s_branch k2_mloop
    k2_mdone:
    s_mov_b64 exec, -1
    s_waitcnt lgkmcnt(0)
    k2_merged:
    s_cmp_lg_u32 s72, 0
    s_cbranch_scc1 k2_more
    s_cmp_ge_u32 s4, 10
    s_cbranch_scc1 k2_fin
    s_mov_b32 s20, {hex(EPS60)}
    s_mov_b32 s21, {hex(EPS60)}
    """)
    for k in range(4):
        A(f'v_pk_add_f32 {pr(20+2*k)}, {pr(20+2*k)}, s[20:21]')
    for k in range(8):
        A(f'v_rcp_f32 v{20+k}, v{20+k}')
    for k in range(4):
        A(f'v_lshlrev_b32 v{44+k}, 16, v{4+k}')
        A(f'v_and_b32 v{48+k}, 0xffff0000, v{4+k}')
    for k in range(4):
        A(f'v_pk_fma_f32 {pr(28+2*k)}, {pr(28+2*k)}, {pr(20+2*k)}, {pr(36+2*k)}')
    for k in range(8):
        A(f'v_max_f32 v{28+k}, 0, v{28+k}')
    for k in range(4):
        A(f'v_pk_add_f32 {pr(28+2*k)}, {pr(28+2*k)}, {pr(44+2*k)}')
    for k in range(4):
        A(f'v_cvt_pk_bf16_f32 v{20+k}, v{28+k}, v{32+k}')
        A(f'buffer_store_dword v{20+k}, v15, s[52:55], 0 offen offset:{32*k}')
    A('k2_fin:')
    stamp(A, prof, 10)
    if prof:
        A('s_waitcnt vmcnt(0)')
        stamp(A, prof, 11)
        stamp_out(A, prof, 18, 19, 4, 1)
    A('k2_exit:\ns_endpgm')
    zero_misc = f"""
    v_mov_b32 v74, 0
    v_mov_b32 v75, 0
    v_mov_b32 v76, 0
    v_mov_b32 v77, 0
    v_lshlrev_b32 v78, 4, v0
    v_add_u32 v78, {CNT}, v78
    v_cmp_gt_u32 vcc, {NZ}, v0
    s_and_saveexec_b64 s[20:21], vcc
    ds_write_b128 v78, v[74:77]
    s_mov_b64 exec, s[20:21]
    """
    A(f"""
    k2_more:
    s_cmp_ge_u32 s4, 10
    s_cbranch_scc1 k2_more1
    ds_write_b128 v16, v[20:23]
    ds_write_b128 v16, v[24:27] offset:16
    ds_write_b128 v16, v[28:31] offset:256
    ds_write_b128 v16, v[32:35] offset:272
    k2_more1:
    s_waitcnt lgkmcnt(0)
    s_barrier
    """)
    A(zero_misc)
    A(f"""
    s_mul_i32 s20, s75, 12
    v_add_u32 v1, s20, v1
    v_subrev_u32 v2, s75, v2
    s_mov_b32 s7, 0
    s_branch k2_loadrec
    k2_shrink:
    s_barrier
    """)
    A(zero_misc)
    A(f"""
    s_mov_b64 s[{MK+6}:{MK+7}], 0
    s_mov_b32 s75, 24
    s_waitcnt lgkmcnt(0)
    s_barrier
    ds_write_b32 v15, v14 offset:{MISC - CNT}
    s_branch k2_rank
    k2_kernel_end:
    """)
    return A.text(), LDS

KD = '''.amdhsa_kernel {name}
  .amdhsa_next_free_vgpr {vgpr}
  .amdhsa_next_free_sgpr {sgpr}
  .amdhsa_accum_offset {acc}
  .amdhsa_group_segment_fixed_size 0
  .amdhsa_kernarg_size 96
  .amdhsa_user_sgpr_count 2
  .amdhsa_user_sgpr_kernarg_segment_ptr 1
  .amdhsa_system_sgpr_workgroup_id_x 1
  .amdhsa_float_denorm_mode_32 3
  .amdhsa_dx10_clamp 0
.end_amdhsa_kernel'''

def build(prof=False):
    k1, l1 = gen_k1(prof)
    k2, l2 = gen_k2(prof)
    head = open('standalone__edge_featured_mpnn_gatedgcn__graph.s.ref').read().split('\n')
    head = [h for h in head[:14]]
    out = head + [f'; @launch kernel=k1_kernel grid=(256,1,1) block=(640,1,1) lds={l1}',
                  f'; @launch kernel=k2_kernel grid=(256,1,1) block=(1024,1,1) lds={l2}',
                  '.amdgcn_target "amdgcn-amd-amdhsa--gfx950"', '.text']
    for nm, body in (('k1_kernel', k1), ('k2_kernel', k2)):
        out += [f'.globl {nm}', '.p2align 8', f'.type {nm},@function', body]
    out += ['.section .rodata,"a"', '.p2align 6', KD.format(name='k1_kernel', vgpr=128 if prof else 96, sgpr=102 if prof else 48, acc=128 if prof else 96),
            '.p2align 6', KD.format(name='k2_kernel', vgpr=128 if prof else 114, sgpr=102 if prof else 80, acc=128 if prof else 116)]
    return '\n'.join(out) + '\n'

if __name__ == '__main__':
    prof = '--prof' in sys.argv
    dst = sys.argv[1]
    open(dst, 'w').write(build(prof))
```

```python
import sys

N = 10000; E = 320000
TABH = 10016 * 256
HDRO = 2 * TABH
RECO = HDRO + 0x10000
CH = 2560
STAMPO = 0x1000000
MAGIC = 214749
NLOG2E = 0xbfb8aa3b
C60 = 0x21800000
EPS60 = 0x538637bd
M60 = 0xc2700000

OPT = set()
class Asm:
    def __init__(self): self.L = []
    def __call__(self, s):
        for x in s.strip('\n').split('\n'): self.L.append('    ' + x.strip() if not x.strip().endswith(':') else x.strip())
    def text(self): return '\n'.join(self.L)

def srd(A, d, lo, hi, size, stride=0):
    A(f's_mov_b32 s{d}, s{lo}')
    if stride:
        A(f's_and_b32 s{d+1}, s{hi}, 0xffff')
        A(f's_or_b32 s{d+1}, s{d+1}, {hex(stride << 16)}')
    else:
        A(f's_mov_b32 s{d+1}, s{hi}')
    A(f's_mov_b32 s{d+2}, {size}')
    A(f's_mov_b32 s{d+3}, 0x00020000')

def srd_off(A, d, lo, hi, off, size, stride=0):
    A(f's_add_u32 s{d}, s{lo}, {off}')
    A(f's_addc_u32 s{d+1}, s{hi}, 0')
    if stride:
        A(f's_and_b32 s{d+1}, s{d+1}, 0xffff')
        A(f's_or_b32 s{d+1}, s{d+1}, {hex(stride << 16)}')
    A(f's_mov_b32 s{d+2}, {size}')
    A(f's_mov_b32 s{d+3}, 0x00020000')

def scan64(A, v):
    for sh in (1, 2, 4, 8):
        A('s_nop 1')
        A(f'v_add_u32_dpp v{v}, v{v}, v{v} row_shr:{sh} row_mask:0xf bank_mask:0xf bound_ctrl:0')
    A('s_nop 1')
    A(f'v_add_u32_dpp v{v}, v{v}, v{v} row_bcast:15 row_mask:0xa bank_mask:0xf')
    A('s_nop 1')
    A(f'v_add_u32_dpp v{v}, v{v}, v{v} row_bcast:31 row_mask:0xc bank_mask:0xf')

def stamp(A, prof, k, sb=90):
    if not prof: return
    A(f's_memtime s[{sb}:{sb+1}]')
    A('s_waitcnt lgkmcnt(0)')
    A(f'v_writelane_b32 v127, s{sb}, {k}')
    if k == 0:
        A(f's_memrealtime s[{sb}:{sb+1}]')
        A('s_waitcnt lgkmcnt(0)')
        A(f'v_writelane_b32 v127, s{sb}, 12')

def stamp_out(A, prof, wslo, wshi, slot_expr_sgpr, kernel_id):
    if not prof: return
    A('s_memrealtime s[90:91]')
    A('s_waitcnt lgkmcnt(0)')
    A('v_writelane_b32 v127, s90, 13')
    A('s_mov_b64 exec, 0xffff')
    A(f's_add_u32 s92, s{wslo}, {STAMPO + kernel_id * 0x80000}')
    A(f's_addc_u32 s93, s{wshi}, 0')
    A('s_mov_b32 s94, 0x80000')
    A('s_mov_b32 s95, 0x00020000')
    A(f's_lshl_b32 s96, s2, 4')
    A(f's_add_u32 s96, s96, s{slot_expr_sgpr}')
    A('s_lshl_b32 s96, s96, 6')
    A('s_getreg_b32 s90, hwreg(HW_REG_HW_ID)')
    A('s_getreg_b32 s91, hwreg(HW_REG_XCC_ID)')
    A('v_writelane_b32 v127, s90, 14')
    A('v_writelane_b32 v127, s91, 15')
    A('v_mbcnt_lo_u32_b32 v126, -1, 0')
    A('v_lshlrev_b32 v126, 2, v126')
    A('buffer_store_dword v127, v126, s[92:95], s96 offen')
    A('s_waitcnt vmcnt(0)')

def prefetch_code(A, nbytes, nthreads, vtmp, label):
    A(f's_getpc_b64 s[88:89]')
    A(f'v_lshlrev_b32 v{vtmp}, 6, v0')
    A(f'v_cmp_gt_u32 vcc, {label}_end - {label} - 64, v{vtmp}')
    A('s_and_saveexec_b64 s[86:87], vcc')
    A(f's_cbranch_execz {label}_pf')
    A(f'global_load_dword v{vtmp+1}, v{vtmp}, s[88:89]')
    A(f'{label}_pf:')
    A('s_mov_b64 exec, s[86:87]')

def gen_k1(prof):
    A = Asm()
    XB = 0; WB = 20480; WV = WB + 32768
    CNT = 30720; STA = CNT + 512
    A('k1_kernel:')
    stamp(A, prof, 0)
    A('''
    s_lshr_b32 s3, s2, 4
    s_lshl_b32 s3, s3, 3
    s_and_b32 s5, s2, 7
    s_or_b32 s3, s3, s5
    s_cmp_ge_u32 s3, 125
    s_cbranch_scc1 k1_exit
    s_load_dwordx4 s[8:11], s[0:1], 0
    s_load_dwordx4 s[12:15], s[0:1], 16
    s_load_dwordx2 s[16:17], s[0:1], 40
    s_load_dwordx2 s[18:19], s[0:1], 64
    s_load_dwordx2 s[20:21], s[0:1], 88
    v_lshrrev_b32 v1, 6, v0
    v_and_b32 v3, 63, v0
    v_readfirstlane_b32 s4, v1
    s_bitcmp1_b32 s2, 3
    s_cbranch_scc1 k1_gemm
    ''')
    A('''
    v_lshlrev_b32 v1, 4, v0
    v_lshlrev_b32 v2, 5, v0
    s_mul_i32 s5, s3, 10240
    s_mul_i32 s6, s3, 20480
    s_waitcnt lgkmcnt(0)
    ''')
    srd_off(A, 24, 14, 15, 's5', 10240)
    A('buffer_load_dwordx4 v[4:7], v1, s[24:27], 0 offen')
    srd_off(A, 28, 12, 13, 's5', 10240)
    A('buffer_load_dwordx4 v[8:11], v1, s[28:31], 0 offen')
    srd_off(A, 32, 10, 11, 's6', 20480)
    A('buffer_load_dwordx4 v[12:15], v2, s[32:35], 0 offen')
    A('buffer_load_dwordx4 v[16:19], v2, s[32:35], 0 offen offset:16')
    A(f'''
    v_mov_b32 v32, 0
    v_mov_b32 v33, 1
    v_lshlrev_b32 v34, 2, v0
    v_cmp_gt_u32 vcc, 128, v0
    s_and_saveexec_b64 s[6:7], vcc
    ds_write_b32 v34, v32 offset:{CNT}
    s_mov_b64 exec, s[6:7]
    s_mul_i32 s5, s3, {CH*12}
    s_add_u32 s5, s5, {RECO}
    ''')
    srd_off(A, 36, 20, 21, 's5', CH * 12)
    A(f's_lshl_b32 s5, s3, 9\ns_add_u32 s5, s5, {HDRO}')
    srd_off(A, 40, 20, 21, 's5', 512)
    A(f's_mov_b32 s5, {MAGIC}\ns_movk_i32 s6, 625')
    A('s_waitcnt lgkmcnt(0)\ns_barrier')
    stamp(A, prof, 1)
    A('s_waitcnt vmcnt(3)')
    stamp(A, prof, 2)
    for i in range(4):
        A(f'v_mul_u32_u24 v{20+i}, s5, v{4+i}')
    for i in range(4):
        A(f'v_lshrrev_b32 v{20+i}, 24, v{20+i}')
    for i in range(4):
        A(f'v_lshlrev_b32 v{28+i}, 2, v{20+i}')
        A(f'ds_add_rtn_u32 v{24+i}, v{28+i}, v33 offset:{CNT}')
    for i in range(4):
        A(f'v_mad_u32_u24 v{20+i}, v{20+i}, s6, 7')
    for i in range(4):
        A(f'v_lshrrev_b32 v{20+i}, 3, v{20+i}')
    for i in range(4):
        A(f'v_sub_u32 v{4+i}, v{4+i}, v{20+i}')
    A('s_waitcnt vmcnt(2)')
    for i in range(4):
        A(f'v_lshl_or_b32 v{8+i}, v{4+i}, 16, v{8+i}')
    A('s_waitcnt lgkmcnt(0)\ns_barrier')
    stamp(A, prof, 3)
    A(f'''
    s_cmp_lg_u32 s4, 0
    s_cbranch_scc1 k1_noscan
    v_lshlrev_b32 v34, 3, v0
    ds_read_b64 v[36:37], v34 offset:{CNT}
    s_waitcnt lgkmcnt(0)
    v_add_u32 v38, v36, v37
    v_mov_b32 v39, v38
    ''')
    scan64(A, 38)
    A(f'''
    v_sub_u32 v38, v38, v39
    v_add_u32 v39, v38, v36
    ds_write_b64 v34, v[38:39] offset:{STA}
    v_lshl_or_b32 v36, v36, 16, v38
    v_lshl_or_b32 v37, v37, 16, v39
    buffer_store_dwordx2 v[36:37], v34, s[40:43], 0 offen
    s_waitcnt lgkmcnt(0)
    k1_noscan:
    s_barrier
    ''')
    stamp(A, prof, 4)
    for i in range(4):
        A(f'ds_read_b32 v{20+i}, v{28+i} offset:{STA}')
    for i in range(4):
        A(f's_waitcnt lgkmcnt({3-i})')
        A(f'v_add_u32 v{20+i}, v{20+i}, v{24+i}')
        A(f'v_mul_u32_u24 v{20+i}, 12, v{20+i}')
    A('s_waitcnt vmcnt(0)' if False else 's_waitcnt vmcnt(0)')
    for i in range(4):
        A(f'ds_write2_b32 v{20+i}, v{12+2*i}, v{13+2*i} offset0:0 offset1:1')
        A(f'ds_write_b32 v{20+i}, v{8+i} offset:8')
    A('s_waitcnt lgkmcnt(0)\ns_barrier')
    stamp(A, prof, 5)
    for j in range(3):
        A(f'ds_read_b128 v[{4+4*j}:{7+4*j}], v1 offset:{10240*j}')
    A('v_add_u32 v2, 10240, v1\nv_add_u32 v3, 20480, v1')
    for j in range(3):
        A(f's_waitcnt lgkmcnt({2-j})')
        A(f'buffer_store_dwordx4 v[{4+4*j}:{7+4*j}], v{1+j}, s[36:39], 0 offen')
    stamp(A, prof, 6)
    if prof:
        A('s_waitcnt vmcnt(0)')
        stamp(A, prof, 7)
        stamp_out(A, prof, 20, 21, 4, 0)
    A('s_endpgm')
    A('k1_gemm:')
    A('''
    v_lshrrev_b32 v4, 4, v3
    v_and_b32 v5, 15, v3
    v_xor_b32 v6, v5, v4
    v_lshlrev_b32 v6, 4, v6
    v_lshl_or_b32 v6, v4, 8, v6
    v_lshlrev_b32 v7, 1, v4
    v_xor_b32 v7, v5, v7
    v_lshlrev_b32 v7, 4, v7
    v_lshl_or_b32 v7, v4, 8, v7
    s_mul_i32 s5, s3, 20480
    s_waitcnt lgkmcnt(0)
    ''')
    srd_off(A, 24, 8, 9, 's5', 20480)
    srd(A, 28, 16, 17, 32768)
    srd(A, 32, 18, 19, 32768)
    for j in range(2):
        A(f'''
        s_lshl_b32 s5, s4, 1
        s_add_u32 s5, s5, {j}
        s_and_b32 s6, s5, 3
        s_lshl_b32 s6, s6, 6
        s_lshl_b32 s5, s5, 10
        v_xor_b32 v8, s6, v6
        s_add_u32 m0, s5, {XB}
        s_nop 0
        buffer_load_dwordx4 v8, s[24:27], s5 offen lds
        ''')
    for j in range(4):
        if j == 3:
            A('s_cmp_ge_u32 s4, 2\ns_cbranch_scc1 k1_dmadone')
        A(f'''
        s_add_u32 s5, s4, {10*j}
        s_lshl_b32 s6, s5, 6
        s_and_b32 s6, s6, 128
        s_lshl_b32 s5, s5, 10
        v_xor_b32 v8, s6, v7
        s_add_u32 m0, s5, {WB}
        s_nop 0
        buffer_load_dwordx4 v8, s[28:31], s5 offen lds
        s_add_u32 m0, s5, {WV}
        s_nop 0
        buffer_load_dwordx4 v8, s[32:35], s5 offen lds
        ''')
    A('k1_dmadone:')
    A(f'''
    s_lshr_b32 s5, s4, 1
    s_and_b32 s6, s4, 1
    s_lshl_b32 s7, s5, 12
    v_xor_b32 v8, v4, v5
    v_lshlrev_b32 v8, 4, v8
    v_lshl_or_b32 v8, v5, 8, v8
    v_add_u32 v8, s7, v8
    v_xor_b32 v9, 64, v8
    v_xor_b32 v10, 128, v8
    v_xor_b32 v11, 192, v8
    v_bfe_u32 v12, v3, 2, 2
    v_and_b32 v13, 1, v4
    v_lshl_or_b32 v13, v13, 2, v12
    v_lshlrev_b32 v13, 5, v13
    v_lshl_add_u32 v12, v4, 3, v12
    v_lshl_or_b32 v13, v12, 8, v13
    v_and_b32 v12, 3, v3
    v_lshl_or_b32 v13, v12, 3, v13
    v_add_u32 v13, {WB}, v13
    s_lshl_b32 s7, s6, 7
    v_xor_b32 v12, s7, v13
    v_xor_b32 v13, 32, v12
    v_xor_b32 v14, 64, v12
    v_xor_b32 v15, 96, v12
    s_mul_i32 s7, s6, {TABH}
    s_mul_i32 s22, s3, 20480
    s_add_u32 s7, s7, s22
    s_lshl_b32 s22, s5, 12
    s_add_u32 s7, s7, s22
    ''')
    srd_off(A, 36, 20, 21, 's7', 4096)
    A(f'''
    v_lshlrev_b32 v6, 10, v4
    v_lshl_or_b32 v6, v5, 4, v6
    s_mov_b32 s22, {hex(NLOG2E)}
    s_mov_b32 s23, {hex(NLOG2E)}
    s_waitcnt vmcnt(0)
    s_barrier
    ''')
    stamp(A, prof, 2)
    XF = 16
    WF = 32
    AC = 64
    for s in range(4):
        A(f'ds_read_b128 v[{XF+4*s}:{XF+4*s+3}], v{8+s} offset:{XB}')
    steps = [(s, m, c) for s in range(4) for m in range(2) for c in range(4)]
    PD = 4
    def rd(i):
        s, m, c = steps[i]; b = WF + 4 * (i % 8)
        for u in range(2):
            A(f'ds_read_b64_tr_b16 v[{b+2*u}:{b+2*u+1}], v{12+c} offset:{m*32768 + (32*s+4*u)*256}')
    for i in range(PD): rd(i)
    for i in range(32):
        s, m, c = steps[i]; b = WF + 4 * (i % 8)
        if i + PD < 32:
            rd(i + PD); A(f's_waitcnt lgkmcnt({2*PD})')
        else:
            A(f's_waitcnt lgkmcnt({2*(31-i)})')
        acc = AC + 16 * m + 4 * c
        cin = '0' if s == 0 else f'v[{acc}:{acc+3}]'
        A(f'v_mfma_f32_16x16x32_bf16 v[{acc}:{acc+3}], v[{XF+4*s}:{XF+4*s+3}], v[{b}:{b+3}], {cin}')
    stamp(A, prof, 3)
    A('s_nop 3')
    for c in range(4):
        for u in range(2):
            A(f'v_pk_mul_f32 v[{AC+4*c+2*u}:{AC+4*c+2*u+1}], v[{AC+4*c+2*u}:{AC+4*c+2*u+1}], s[22:23]')
    for i in range(4):
        o = 16 + 4 * i
        A(f'v_cvt_pk_bf16_f32 v{o}, v{AC+i}, v{AC+4+i}')
        A(f'v_cvt_pk_bf16_f32 v{o+1}, v{AC+8+i}, v{AC+12+i}')
        A(f'v_cvt_pk_bf16_f32 v{o+2}, v{AC+16+i}, v{AC+20+i}')
        A(f'v_cvt_pk_bf16_f32 v{o+3}, v{AC+24+i}, v{AC+28+i}')
        A(f'buffer_store_dwordx4 v[{o}:{o+3}], v6, s[36:39], 0 offen offset:{256*i}')
    A(f'''
    s_or_b32 s5, s5, s3
    s_cmp_lg_u32 s5, 0
    s_cbranch_scc1 k1_nonull
    s_mul_i32 s7, s6, {TABH}
    s_add_u32 s7, s7, {N*256}
    ''')
    srd_off(A, 40, 20, 21, 's7', 256)
    A('''
    v_mov_b32 v32, 0x7f7f7f7f
    v_mov_b32 v33, 0x7f7f7f7f
    v_mov_b32 v34, 0
    v_mov_b32 v35, 0
    v_lshlrev_b32 v7, 4, v3
    buffer_store_dwordx4 v[32:35], v7, s[40:43], 0 offen
    k1_nonull:
    ''')
    stamp(A, prof, 6)
    if prof:
        A('s_waitcnt vmcnt(0)')
        stamp(A, prof, 7)
        stamp_out(A, prof, 20, 21, 4, 0)
    A('k1_exit:')
    A('s_endpgm')
    A('k1_kernel_end:')
    return A.text(), 86016

def gen_k2(prof):
    A = Asm()
    HEAD = 81920
    XB = HEAD; WA = XB + 20480; WU = WA + 16384
    EL = HEAD + 32768; CAPR = 3904; PL = EL + CAPR * 8
    CAPT = CAPR - 16
    CNT = PL + CAPR * 4; STA = CNT + 512; HIN = STA + 512; MISC = HIN + 640; ZER = MISC + 16
    NZ = (ZER + 96 - CNT) // 16
    LDS = ZER + 96
    assert LDS <= 163840 and WU + 16384 <= CNT
    RC = 42
    R_ = 6
    MK = 60
    def pr(a): return f'v[{a}:{a+1}]'
    WC = WU + 16384
    assert WC + 512 <= CNT
    PF = 0 if 'nopf' in OPT else int(([o[2:] for o in OPT if o.startswith('pf')] + ['14'])[0])
    A('k2_kernel:')
    stamp(A, prof, 0)
    A("""
    s_cmp_ge_u32 s2, 256
    s_cbranch_scc1 k2_exit
    s_load_dwordx2 s[18:19], s[0:1], 88
    s_load_dwordx2 s[8:9], s[0:1], 0
    s_load_dwordx2 s[10:11], s[0:1], 32
    s_load_dwordx4 s[12:15], s[0:1], 48
    s_load_dwordx2 s[16:17], s[0:1], 72
    v_lshrrev_b32 v1, 6, v0
    v_and_b32 v3, 63, v0
    v_readfirstlane_b32 s4, v1
    s_bfe_u32 s3, s2, 0x20001
    s_lshl_b32 s3, s3, 5
    s_lshr_b32 s78, s2, 3
    s_add_u32 s3, s3, s78
    s_and_b32 s5, s2, 1
    s_mul_i32 s6, s3, 625
    s_add_u32 s7, s6, 632
    s_add_u32 s6, s6, 7
    s_lshr_b32 s6, s6, 3
    s_lshr_b32 s7, s7, 3
    s_sub_u32 s7, s7, s6
    v_lshrrev_b32 v1, 3, v0
    v_lshlrev_b32 v2, 9, v1
    s_lshl_b32 s20, s3, 2
    v_lshrrev_b32 v66, 4, v3
    v_and_b32 v67, 15, v3
    v_xor_b32 v68, v67, v66
    v_lshlrev_b32 v68, 4, v68
    v_lshl_or_b32 v68, v66, 8, v68
    s_and_b32 s21, s4, 3
    s_lshl_b32 s21, s21, 6
    v_xor_b32 v68, s21, v68
    v_lshrrev_b32 v69, 3, v3
    v_and_b32 v70, 7, v3
    v_lshlrev_b32 v73, 4, v70
    v_lshl_or_b32 v73, v69, 8, v73
    v_and_b32 v71, 2, v69
    v_xor_b32 v70, v70, v71
    v_lshlrev_b32 v70, 4, v70
    v_lshl_or_b32 v70, v69, 8, v70
    s_and_b32 s21, s4, 1
    s_lshl_b32 s21, s21, 6
    v_xor_b32 v70, s21, v70
    s_waitcnt lgkmcnt(0)
    """)
    srd_off(A, 24, 18, 19, HDRO, 125 * 512)
    A('buffer_load_dword v2, v2, s[24:27], s20 offen')
    A('s_lshl_b32 s20, s6, 8')
    A(f's_sub_u32 s21, {N*256}, s20')
    srd_off(A, 28, 8, 9, 's20', 's21')
    A('s_lshl_b32 s22, s5, 7\ns_sub_u32 s23, 32768, s22')
    srd_off(A, 32, 10, 11, 's22', 's23')
    srd_off(A, 36, 14, 15, 's22', 's23')
    A('s_sub_u32 s23, 1024, s22')
    srd_off(A, 40, 12, 13, 's22', 's23')
    if 'nohb' not in OPT: A('s_barrier')
    A(f"""
    s_lshl_b32 s20, s4, 10
    s_lshl_b32 s21, s4, 11
    s_add_u32 m0, s20, {WA}
    s_nop 0
    buffer_load_dwordx4 v70, s[32:35], s21 offen lds
    s_add_u32 m0, s20, {WU}
    s_nop 0
    buffer_load_dwordx4 v70, s[36:39], s21 offen lds
    s_add_u32 m0, s20, {XB}
    s_nop 0
    buffer_load_dwordx4 v68, s[28:31], s20 offen lds
    s_cmp_ge_u32 s4, 5
    s_cbranch_scc1 k2_nox2
    s_cmp_eq_u32 s4, 4
    s_cbranch_scc1 k2_wc
    s_add_u32 s20, s20, 16384
    s_add_u32 m0, s20, {XB}
    s_nop 0
    buffer_load_dwordx4 v68, s[28:31], s20 offen lds
    s_branch k2_nox2
    k2_wc:
    s_mov_b32 m0, {WC}
    s_mov_b32 exec_hi, 0
    buffer_load_dwordx4 v73, s[40:43], 0 offen lds
    s_mov_b64 exec, -1
    k2_nox2:
    """)
    A(f"""
    v_mov_b32 v74, 0
    v_mov_b32 v75, 0
    v_mov_b32 v76, 0
    v_mov_b32 v77, 0
    v_and_b32 v72, 7, v0
    v_lshrrev_b32 v78, 5, v0
    v_and_b32 v79, 31, v0
    v_lshlrev_b32 v79, 4, v79
    v_lshl_or_b32 v78, v78, 10, v79
    ds_write_b128 v78, v[74:77]
    ds_write_b128 v78, v[74:77] offset:32768
    s_cmp_ge_u32 s4, 8
    s_cbranch_scc1 k2_noz
    v_add_u32 v78, 0x10000, v78
    ds_write_b128 v78, v[74:77]
    k2_noz:
    v_lshlrev_b32 v78, 4, v0
    v_add_u32 v78, {CNT}, v78
    v_cmp_gt_u32 vcc, {NZ}, v0
    s_and_saveexec_b64 s[20:21], vcc
    ds_write_b128 v78, v[74:77]
    s_mov_b64 exec, s[20:21]
    """)
    srd_off(A, 44, 18, 19, RECO, 125 * CH * 12)
    A(f's_mul_i32 s20, s5, {TABH}')
    srd_off(A, 48, 18, 19, 's20', N + 1, stride=(1 if 'row0' in OPT else 256))
    A('s_lshl_b32 s20, s6, 8\ns_add_u32 s20, s20, s22\ns_lshl_b32 s21, s7, 8\ns_sub_u32 s21, s21, s22')
    srd_off(A, 52, 16, 17, 's20', 's21')
    A(f"""
    v_and_b32 v78, 1, v3
    v_lshlrev_b32 v78, 4, v78
    v_mov_b32 v79, 0x3f80
    v_lshlrev_b32 v79, v78, v79
    v_and_b32 v78, 2, v3
    v_cmp_eq_u32 vcc, 0, v78
    v_mul_u32_u24 v1, {CH*12}, v1
    s_mov_b32 s56, {hex(C60)}
    v_cndmask_b32 v12, 0, v79, vcc
    v_cndmask_b32 v13, v79, v74, vcc
    s_mov_b32 s57, {hex(C60)}
    s_mov_b32 s58, 0x22221111
    s_mov_b32 s59, 0x88884444
    """)
    if PF:
        A(f"""
        s_mul_i32 s20, s78, 313
        s_mul_i32 s21, s4, {PF // 2}
        s_add_u32 s20, s20, s21
        v_lshrrev_b32 v10, 1, v3
        v_add_u32 v10, s20, v10
        v_and_b32 v11, 1, v3
        v_lshlrev_b32 v11, 7, v11
        s_mov_b32 s80, {hex(((1 << PF) - 1) & 0xffffffff)}
        s_mov_b32 s81, {hex(((1 << PF) - 1) >> 32)}
        """)
    A('s_waitcnt vmcnt(3)')
    stamp(A, prof, 1)
    A(f"""
    v_and_b32 v78, 0xffff, v2
    v_add_u32 v78, v78, v72
    v_mad_u32_u24 v1, v78, 12, v1
    v_lshrrev_b32 v2, 16, v2
    v_sub_u32 v2, v2, v72
    """)
    A('k2_loadrec:')
    A(f's_mov_b32 s75, {8*R_}')
    for r in range(R_):
        A(f'v_cmp_lt_i32 s[{MK+2*r}:{MK+2*r+1}], {8*r}, v2')
    for r in range(R_):
        A(f's_mov_b64 exec, s[{MK+2*r}:{MK+2*r+1}]')
        A(f's_cbranch_execz k2_ld{r}')
        A(f'buffer_load_dwordx3 v[{RC+4*r}:{RC+4*r+2}], v1, s[44:47], 0 offen offset:{96*r}')
    A(f's_waitcnt vmcnt({R_})\ns_branch k2_lddone')
    for r in range(R_):
        A(f'k2_ld{r}:\ns_waitcnt vmcnt({r})')
        if r < R_ - 1: A('s_branch k2_lddone')
    A('k2_lddone:')
    if PF:
        A('s_mov_b64 exec, s[80:81]\nbuffer_load_dword v114, v[10:11], s[48:51], 0 idxen offen')
    A('s_mov_b64 exec, -1')
    A('s_waitcnt lgkmcnt(0)\ns_barrier')
    stamp(A, prof, 2)
    A('s_cmp_eq_u32 s7, 0\ns_cbranch_scc1 k2_gemmdone')
    A(f"""
    v_lshlrev_b32 v18, 1, v3
    v_add_u32 v18, {WC}, v18
    s_mov_b32 s20, {hex(NLOG2E)}
    ds_read_u16 v14, v18
    ds_read_u16 v15, v18 offset:128
    ds_read_u16 v16, v18 offset:256
    ds_read_u16 v17, v18 offset:384
    v_lshrrev_b32 v18, 3, v0
    v_bfe_u32 v19, v0, 2, 1
    v_lshl_or_b32 v19, s5, 3, v19
    v_xor_b32 v19, v19, v18
    v_and_b32 v19, 15, v19
    v_lshlrev_b32 v19, 4, v19
    v_lshl_or_b32 v19, v18, 8, v19
    v_and_b32 v18, 3, v0
    v_lshl_or_b32 v19, v18, 2, v19
    v_add_u32 v19, {XB}, v19
    v_xor_b32 v20, 32, v19
    v_xor_b32 v22, 64, v19
    v_xor_b32 v23, 96, v19
    s_waitcnt lgkmcnt(0)
    """)
    for k in range(4):
        A(f'v_lshlrev_b32 v{14+k}, 16, v{14+k}')
    for k in range(4):
        A(f'v_mul_f32 v{14+k}, s20, v{14+k}')
    A('v_cvt_pk_bf16_f32 v8, v14, v15\nv_cvt_pk_bf16_f32 v9, v16, v17')
    XF = 66; WF = 82; AC = 26
    A(f"""
    s_cmp_ge_u32 s4, 10
    s_cbranch_scc1 k2_gemmdone
    ds_read_b32 v4, v19
    ds_read_b32 v5, v20
    ds_read_b32 v6, v22
    ds_read_b32 v7, v23
    s_lshr_b32 s22, s4, 1
    s_and_b32 s21, s4, 1
    v_lshrrev_b32 v22, 4, v3
    v_and_b32 v23, 15, v3
    s_lshl_b32 s23, s22, 12
    s_add_u32 s23, s23, {XB}
    v_xor_b32 v18, v22, v23
    v_lshlrev_b32 v18, 4, v18
    v_lshl_or_b32 v18, v23, 8, v18
    v_add_u32 v18, s23, v18
    v_xor_b32 v19, 64, v18
    v_xor_b32 v20, 128, v18
    v_xor_b32 v21, 192, v18
    """)
    for s in range(4):
        A(f'ds_read_b128 v[{XF+4*s}:{XF+4*s+3}], v{18+s}')
    A('s_waitcnt lgkmcnt(4)')
    A(f"""
    v_bfe_u32 v24, v3, 2, 2
    v_lshl_add_u32 v14, v22, 3, v24
    v_lshlrev_b32 v14, 7, v14
    v_lshrrev_b32 v24, 1, v24
    v_and_b32 v25, 1, v22
    v_lshl_or_b32 v24, v25, 1, v24
    v_lshl_or_b32 v14, v24, 5, v14
    v_and_b32 v24, 3, v3
    v_lshl_or_b32 v14, v24, 3, v14
    s_lshl_b32 s23, s21, 14
    s_add_u32 s23, s23, {WA}
    v_add_u32 v14, s23, v14
    v_xor_b32 v15, 32, v14
    v_xor_b32 v16, 64, v14
    v_xor_b32 v17, 96, v14
    """)
    steps = [(s, c) for s in range(4) for c in range(4)]
    PD = 4
    def rd(i):
        s, c = steps[i]; b = WF + 4 * (i % 8)
        for u in range(2):
            A(f'ds_read_b64_tr_b16 v[{b+2*u}:{b+2*u+1}], v{14+c} offset:{(32*s+4*u)*128}')
    for i in range(PD): rd(i)
    A(f"""
    s_lshl_b32 s23, s22, 14
    s_lshl_b32 s22, s21, 8
    s_add_u32 s23, s23, s22
    s_add_u32 s23, s23, 512
    v_lshlrev_b32 v18, 12, v22
    v_lshl_or_b32 v18, v23, 4, v18
    v_add_u32 v18, s23, v18
    s_cmp_eq_u32 s21, 0
    s_cselect_b32 s20, s20, 1.0
    s_cselect_b32 s21, {hex(M60)}, 0
    v_mov_b32 v19, s21
    """)
    for i in range(16):
        s, c = steps[i]; b = WF + 4 * (i % 8)
        if i + PD < 16:
            rd(i + PD); A(f's_waitcnt lgkmcnt({2*PD})')
        else:
            A(f's_waitcnt lgkmcnt({2*(15-i)})')
        acc = AC + 4 * c
        cin = '0' if s == 0 else f'v[{acc}:{acc+3}]'
        A(f'v_mfma_f32_16x16x32_bf16 v[{acc}:{acc+3}], v[{XF+4*s}:{XF+4*s+3}], v[{b}:{b+3}], {cin}')
    A('s_nop 7')
    for i in range(4):
        for c in range(4):
            A(f'v_fma_f32 v{XF+4*i+c}, v{AC+4*c+i}, s20, v19')
        A(f'ds_write_b128 v18, v[{XF+4*i}:{XF+4*i+3}] offset:{i*1024}')
    A('k2_gemmdone:')
    stamp(A, prof, 3)
    A(f'v_mov_b32 v14, 1\nv_mov_b32 v15, {CNT}\ns_waitcnt vmcnt({1 if PF else 0})')
    stamp(A, prof, 4)
    A('k2_rank:')
    for r in range(R_):
        A(f's_mov_b64 exec, s[{MK+2*r}:{MK+2*r+1}]')
        A(f's_cbranch_execz k2_rankdone')
        A(f'v_lshrrev_b32 v{66+r}, 14, v{RC+4*r+2}')
        A(f'v_add_u32 v{66+r}, v15, v{66+r}')
        A(f'ds_add_rtn_u32 v{RC+4*r+3}, v{66+r}, v14')
    A(f"""
    v_cmp_lt_i32 vcc, {8*R_}, v2
    s_and_b64 exec, exec, vcc
    s_cbranch_execz k2_rankdone
    ds_write_b32 v15, v14 offset:{MISC - CNT}
    k2_rankdone:
    s_mov_b64 exec, -1
    s_waitcnt lgkmcnt(0)
    s_barrier
    """)
    stamp(A, prof, 5)
    A(f"""
    s_cmp_lg_u32 s4, 0
    s_cbranch_scc1 k2_noscan
    v_lshl_add_u32 v16, v3, 3, v15
    ds_read_b64 v[18:19], v16
    s_waitcnt lgkmcnt(0)
    v_add_u32 v18, 1, v18
    v_add_u32 v19, 1, v19
    v_and_b32 v18, -2, v18
    v_and_b32 v19, -2, v19
    v_add_u32 v20, v18, v19
    v_mov_b32 v21, v20
    """)
    scan64(A, 20)
    A(f"""
    v_sub_u32 v20, v20, v21
    v_add_u32 v21, v20, v18
    ds_write_b64 v16, v[20:21] offset:{STA - CNT}
    s_waitcnt lgkmcnt(0)
    k2_noscan:
    s_barrier
    """)
    stamp(A, prof, 6)
    A(f"""
    ds_read_b32 v16, v15 offset:{STA - CNT + 4*100}
    ds_read_b32 v17, v15 offset:{MISC - CNT}
    """)
    for r in range(R_):
        A(f's_mov_b64 exec, s[{MK+2*r}:{MK+2*r+1}]')
        A(f's_cbranch_execz k2_st')
        A(f'ds_read_b32 v{72+r}, v{66+r} offset:{STA - CNT}')
    A(f"""
    k2_st:
    s_mov_b64 exec, -1
    v_lshl_add_u32 v18, v0, 2, v15
    s_cmp_ge_u32 s4, 2
    s_cbranch_scc1 k2_nopad0
    ds_read_b32 v19, v18
    ds_read_b32 v20, v18 offset:{STA - CNT}
    k2_nopad0:
    s_mov_b32 s20, {EL}
    s_mov_b32 s21, {PL}
    s_waitcnt lgkmcnt(0)
    v_readfirstlane_b32 s22, v16
    v_readfirstlane_b32 s72, v17
    s_cmp_gt_u32 s22, {CAPT}
    s_cbranch_scc1 k2_shrink
    s_cmp_ge_u32 s4, 2
    s_cbranch_scc1 k2_nopad
    v_subrev_u32 v21, 80, v0
    v_cmp_gt_u32 vcc, 80, v0
    v_mov_b32 v22, 0
    v_mov_b32 v23, 0
    v_min_u32 v24, 79, v0
    v_lshlrev_b32 v24, 16, v24
    v_or_b32 v24, {N}, v24
    v_cndmask_b32 v25, v21, v19, vcc
    v_add_u32 v20, v20, v25
    v_and_b32 v19, 1, v19
    v_cmp_eq_u32 vcc, 1, v19
    v_cmp_gt_u32 s[76:77], 8, v21
    s_or_b64 exec, vcc, s[76:77]
    s_cbranch_execz k2_nopad
    v_lshl_add_u32 v25, v20, 3, s20
    v_lshl_add_u32 v20, v20, 2, s21
    ds_write_b64 v25, v[22:23]
    ds_write_b32 v20, v24
    k2_nopad:
    """)
    for r in range(R_):
        A(f's_mov_b64 exec, s[{MK+2*r}:{MK+2*r+1}]')
        A(f's_cbranch_execz k2_scat')
        A(f'v_add_u32 v{72+r}, v{72+r}, v{RC+4*r+3}')
        A(f'v_lshl_add_u32 v{66+r}, v{72+r}, 3, s20')
        A(f'v_lshl_add_u32 v{72+r}, v{72+r}, 2, s21')
        A(f'ds_write_b64 v{66+r}, v[{RC+4*r}:{RC+4*r+1}]')
        A(f'ds_write_b32 v{72+r}, v{RC+4*r+2}')
    A(f"""
    k2_scat:
    s_mov_b64 exec, -1
    v_lshrrev_b32 v16, 4, v3
    v_bfe_u32 v17, v3, 2, 2
    s_add_u32 s22, s22, 6
    s_lshr_b32 s22, s22, 3
    s_lshr_b32 s23, s22, 4
    s_and_b32 s22, s22, 15
    s_mul_i32 s73, s23, s4
    s_min_u32 s74, s4, s22
    s_add_u32 s73, s73, s74
    s_cmp_lt_u32 s4, s22
    s_addc_u32 s23, s23, 0
    s_lshl_b32 s73, s73, 2
    v_mov_b32 v18, s73
    v_mad_u32_u24 v14, v16, s23, v18
    v_mad_u32_u24 v17, v17, s23, v18
    v_lshl_add_u32 v14, v14, 3, s21
    v_lshl_add_u32 v15, v17, 4, s20
    v_and_b32 v19, 15, v3
    v_lshlrev_b32 v23, 4, v19
    v_mov_b32 v25, v23
    s_lshl_b32 s74, s4, 2
    v_add_u32 v21, s74, v16
    v_lshl_add_u32 v18, v21, 9, v23
    v_add_u32 v18, {HEAD}, v18
    v_add_u32 v21, 1, v21
    v_mov_b32 v20, 1
    v_mov_b32 v26, {ZER}
    v_mov_b32 v10, 32
    v_cndmask_b32 v15, v26, v15, s[58:59]
    v_cndmask_b32 v11, 0, 64, s[58:59]
    v_mov_b64 v[34:35], 0
    v_mov_b64 v[36:37], 0
    v_mov_b64 v[38:39], 0
    v_mov_b64 v[40:41], 0
    s_mov_b32 s76, 0x00010001
    s_mov_b32 s77, 0x00010001
    s_mov_b64 s[82:83], 0
    s_mov_b64 s[84:85], 0
    """)
    TP = 50
    for k in range(8):
        A(f'v_mov_b32 v{TP+2*k+1}, v23')
    A('s_waitcnt lgkmcnt(0)\ns_barrier')
    stamp(A, prof, 7)
    RB = 70; DD = [42, 102]; ND = [16, 17, 19, 110]; MS = [82, 84]
    Ha = 50; Hb = 54; P = 58; Sg = 62; Q = 66; DEN = 34; NUM = 38
    def y1(d): return f'v_mfma_f32_16x16x16_bf16 v[{d}:{d+3}], v[26:27], v[8:9], v[30:33]'
    def y2(d): return f'v_mfma_f32_16x16x16_bf16 v[{d+4}:{d+7}], v[28:29], v[8:9], v[30:33]'
    def y3(d, r): return f'v_mfma_f32_4x4x4_16b_bf16 v[{d}:{d+3}], v[12:13], v[{r}:{r+1}], v[{d}:{d+3}]'
    def y4(d, r): return f'v_mfma_f32_4x4x4_16b_bf16 v[{d+4}:{d+7}], v[12:13], v[{r+4}:{r+5}], v[{d+4}:{d+7}]'
    A('s_sub_u32 s23, s23, 1\ns_cbranch_scc1 k2_loopdone')
    for k in range(8):
        A(f'ds_read_u16 v{TP+2*k}, v14 offset:{4*k}')
    A(f"""
    ds_read_u16 v{ND[0]}, v14 offset:2
    ds_read_b128 v[26:29], v15
    ds_read_u16 v{ND[1]}, v14 offset:10
    ds_read_u16 v{ND[2]}, v14 offset:18
    ds_read_u16 v22, v14 offset:32
    ds_read_u16 v24, v14 offset:36
    """)
    for k in range(4):
        A(f's_waitcnt lgkmcnt({12-2*k})')
        A(f'buffer_load_dwordx4 v[{RB+8*k}:{RB+8*k+3}], v[{TP+4*k}:{TP+4*k+1}], s[48:51], 0 idxen offen')
        A(f'buffer_load_dwordx4 v[{RB+8*k+4}:{RB+8*k+7}], v[{TP+4*k+2}:{TP+4*k+3}], s[48:51], 0 idxen offen')
    A(f"""
    s_waitcnt lgkmcnt(5)
    v_lshl_add_u32 v58, v{ND[0]}, 10, v23
    ds_read_b128 v[30:33], v58 offset:512
    v_lshlrev_b32 v58, 3, v{ND[0]}
    v_add_u32 v58, {HIN}, v58
    s_mov_b64 exec, s[76:77]
    ds_add_u32 v58, v20
    ds_max_u32 v58, v21 offset:4
    s_mov_b64 exec, -1
    s_waitcnt lgkmcnt(2)
    {y1(DD[0])}
    v_cmp_ne_u32 s[{MS[0]}:{MS[0]+1}], v{ND[0]}, v{ND[1]}
    v_lshl_add_u32 v58, v{ND[1]}, 10, v23
    {y2(DD[0])}
    ds_read_b128 v[26:29], v15 offset:16
    ds_read_b128 v[30:33], v58 offset:512
    s_waitcnt vmcnt(6)
    s_nop 2
    {y3(DD[0], RB)}
    {y4(DD[0], RB)}
    s_waitcnt lgkmcnt(0)
    s_nop 1
    k2_loop:
    """)
    for u in range(4):
        D = DD[u & 1]; Dn = DD[(u + 1) & 1]; Da = D; Db = D + 4
        Rc = RB + 8 * u; Rn = RB + 8 * ((u + 1) % 4)
        g0 = 's_nop 0' if 'nogather' in OPT else f'buffer_load_dwordx4 v[{Rc}:{Rc+3}], v[22:23], s[48:51], 0 idxen offen'
        g1 = 's_nop 0' if 'nogather' in OPT else f'buffer_load_dwordx4 v[{Rc+4}:{Rc+7}], v[24:25], s[48:51], 0 idxen offen'
        e = [f'v_exp_f32_e64 v{D+i}, v{D+i} clamp' for i in range(8)]
        if 'noprio' not in OPT: A(f's_setprio {3-u}')
        A(f"""
        v_mfma_f32_4x4x4_16b_bf16 v[{Ha}:{Ha+3}], v[12:13], v[{Rc+2}:{Rc+3}], 0
        {e[0]}
        v_mfma_f32_4x4x4_16b_bf16 v[{Hb}:{Hb+3}], v[12:13], v[{Rc+6}:{Rc+7}], 0
        {e[1]}
        {y1(Dn)}
        {e[2]}
        {g0}
        {e[3]}
        {g1}
        {e[4]}
        {y2(Dn)}
        {e[5]}
        ds_read_b128 v[26:29], v15 offset:{(u+2)*16}
        ds_read_u16 v22, v14 offset:{(u+5)*8}
        {e[6]}
        ds_read_u16 v24, v14 offset:{(u+5)*8+4}
        ds_read_u16 v{ND[(u+3)%4]}, v14 offset:{(u+3)*8+2}
        v_cmp_ne_u32 vcc, v{ND[(u+1)%4]}, v{ND[(u+2)%4]}
        {e[7]}
        {'s_nop 0' if 'noev' in OPT else f's_cbranch_vccnz k2_eva{u}'}
        k2_bka{u}:
        v_pk_add_f32 {pr(Da)}, {pr(Da)}, s[56:57]
        v_pk_add_f32 {pr(Db)}, {pr(Db)}, s[56:57]
        v_pk_add_f32 {pr(Da+2)}, {pr(Da+2)}, s[56:57]
        v_pk_add_f32 {pr(Db+2)}, {pr(Db+2)}, s[56:57]
        v_pk_mul_f32 {pr(P)}, {pr(Da)}, {pr(Db)}
        v_pk_mul_f32 {pr(P+2)}, {pr(Da+2)}, {pr(Db+2)}
        v_pk_mul_f32 {pr(Q)}, {pr(Db)}, {pr(Ha)}
        s_waitcnt vmcnt(6) lgkmcnt(4)
        {y3(Dn, Rn)}
        v_rcp_f32 v{P}, v{P}
        {y4(Dn, Rn)}
        v_rcp_f32 v{P+1}, v{P+1}
        v_rcp_f32 v{P+2}, v{P+2}
        v_rcp_f32 v{P+3}, v{P+3}
        v_pk_mul_f32 {pr(Q+2)}, {pr(Db+2)}, {pr(Ha+2)}
        v_pk_add_f32 {pr(Sg)}, {pr(Da)}, {pr(Db)}
        v_pk_add_f32 {pr(Sg+2)}, {pr(Da+2)}, {pr(Db+2)}
        v_pk_fma_f32 {pr(Q)}, {pr(Da)}, {pr(Hb)}, {pr(Q)}
        v_pk_fma_f32 {pr(Q+2)}, {pr(Da+2)}, {pr(Hb+2)}, {pr(Q+2)}
        """)
        if u == 3:
            A('v_lshl_add_u64 v[14:15], v[14:15], 0, v[10:11]')
        A(f"""
        v_pk_fma_f32 {pr(DEN)}, {pr(Sg)}, {pr(P)}, {pr(DEN)}
        v_pk_fma_f32 {pr(DEN+2)}, {pr(Sg+2)}, {pr(P+2)}, {pr(DEN+2)}
        v_pk_fma_f32 {pr(NUM)}, {pr(Q)}, {pr(P)}, {pr(NUM)}
        v_pk_fma_f32 {pr(NUM+2)}, {pr(Q+2)}, {pr(P+2)}, {pr(NUM+2)}
        s_sub_u32 s23, s23, 1
        s_cbranch_scc1 k2_flush
        s_waitcnt lgkmcnt(0)
        s_cmp_lg_u64 s[{MS[u&1]}:{MS[u&1]+1}], 0
        """)
        if u == 3:
            A('s_cbranch_scc0 k2_loop')
        else:
            A(f's_cbranch_scc1 k2_evb{u}\nk2_bkb{u}:')
    for u in (3, 0, 1, 2):
        m = MS[u & 1]
        A(f"""
        k2_evb{u}:
        s_mov_b64 exec, s[{m}:{m+1}]
        ds_write_b128 v18, v[34:37]
        ds_write_b128 v18, v[38:41] offset:256
        v_lshl_add_u32 v18, v{ND[(u+1)%4]}, 10, v23
        s_mov_b64 s[{m}:{m+1}], 0
        ds_read_b128 v[34:37], v18
        ds_read_b128 v[38:41], v18 offset:256
        s_mov_b64 exec, -1
        s_branch {'k2_loop' if u == 3 else f'k2_bkb{u}'}
        """)
    for u in range(4):
        m = MS[(u + 1) & 1]
        A(f"""
        k2_eva{u}:
        s_mov_b64 exec, vcc
        v_lshl_add_u32 v111, v{ND[(u+2)%4]}, 10, v23
        s_mov_b64 s[{m}:{m+1}], vcc
        ds_read_b128 v[30:33], v111 offset:512
        s_mov_b64 exec, -1
        s_branch k2_bka{u}
        """)
    A("""
    k2_flush:
    s_setprio 0
    ds_write_b128 v18, v[34:37]
    ds_write_b128 v18, v[38:41] offset:256
    k2_loopdone:
    """)
    stamp(A, prof, 8)
    A(f"""
    v_lshrrev_b32 v14, 3, v0
    v_and_b32 v15, 7, v0
    v_lshlrev_b32 v17, 5, v15
    v_lshl_or_b32 v16, v14, 10, v17
    v_lshlrev_b32 v15, 2, v15
    v_lshl_or_b32 v15, v14, 8, v15
    v_lshlrev_b32 v14, 3, v14
    v_add_u32 v14, {HIN}, v14
    v_add_u32 v17, {HEAD - 512}, v17
    s_waitcnt lgkmcnt(0)
    s_barrier
    """)
    stamp(A, prof, 9)
    A(f"""
    s_cmp_ge_u32 s4, 10
    s_cbranch_scc1 k2_merged
    ds_read_b64 v[18:19], v14
    ds_read_b128 v[20:23], v16
    ds_read_b128 v[24:27], v16 offset:16
    ds_read_b128 v[28:31], v16 offset:256
    ds_read_b128 v[32:35], v16 offset:272
    ds_read_b128 v[36:39], v16 offset:768
    ds_read_b128 v[40:43], v16 offset:784
    s_waitcnt lgkmcnt(6)
    v_lshl_add_u32 v19, v19, 9, v17
    k2_mloop:
    v_cmp_lt_u32 vcc, 0, v18
    s_and_b64 exec, exec, vcc
    s_cbranch_execz k2_mdone
    ds_read_b128 v[44:47], v19
    ds_read_b128 v[48:51], v19 offset:16
    ds_read_b128 v[52:55], v19 offset:256
    ds_read_b128 v[56:59], v19 offset:272
    v_subrev_u32 v18, 1, v18
    v_subrev_u32 v19, 512, v19
    s_waitcnt lgkmcnt(0)
    """)
    for k in range(8):
        A(f'v_pk_add_f32 {pr(20+2*k)}, {pr(20+2*k)}, {pr(44+2*k)}')
    A(f"""
    s_branch k2_mloop
    k2_mdone:
    s_mov_b64 exec, -1
    s_waitcnt lgkmcnt(0)
    k2_merged:
    s_cmp_lg_u32 s72, 0
    s_cbranch_scc1 k2_more
    s_cmp_ge_u32 s4, 10
    s_cbranch_scc1 k2_fin
    s_mov_b32 s20, {hex(EPS60)}
    s_mov_b32 s21, {hex(EPS60)}
    """)
    for k in range(4):
        A(f'v_pk_add_f32 {pr(20+2*k)}, {pr(20+2*k)}, s[20:21]')
    for k in range(8):
        A(f'v_rcp_f32 v{20+k}, v{20+k}')
    for k in range(4):
        A(f'v_lshlrev_b32 v{44+k}, 16, v{4+k}')
        A(f'v_and_b32 v{48+k}, 0xffff0000, v{4+k}')
    for k in range(4):
        A(f'v_pk_fma_f32 {pr(28+2*k)}, {pr(28+2*k)}, {pr(20+2*k)}, {pr(36+2*k)}')
    for k in range(8):
        A(f'v_max_f32 v{28+k}, 0, v{28+k}')
    for k in range(4):
        A(f'v_pk_add_f32 {pr(28+2*k)}, {pr(28+2*k)}, {pr(44+2*k)}')
    for k in range(4):
        A(f'v_cvt_pk_bf16_f32 v{20+k}, v{28+k}, v{32+k}')
        A(f'buffer_store_dword v{20+k}, v15, s[52:55], 0 offen offset:{32*k}')
    A('k2_fin:')
    stamp(A, prof, 10)
    if prof:
        A('s_waitcnt vmcnt(0)')
        stamp(A, prof, 11)
        stamp_out(A, prof, 18, 19, 4, 1)
    A('k2_exit:\ns_endpgm')
    zero_misc = f"""
    v_mov_b32 v74, 0
    v_mov_b32 v75, 0
    v_mov_b32 v76, 0
    v_mov_b32 v77, 0
    v_lshlrev_b32 v78, 4, v0
    v_add_u32 v78, {CNT}, v78
    v_cmp_gt_u32 vcc, {NZ}, v0
    s_and_saveexec_b64 s[20:21], vcc
    ds_write_b128 v78, v[74:77]
    s_mov_b64 exec, s[20:21]
    """
    A(f"""
    k2_more:
    s_waitcnt vmcnt(0)
    s_cmp_ge_u32 s4, 10
    s_cbranch_scc1 k2_more1
    ds_write_b128 v16, v[20:23]
    ds_write_b128 v16, v[24:27] offset:16
    ds_write_b128 v16, v[28:31] offset:256
    ds_write_b128 v16, v[32:35] offset:272
    k2_more1:
    s_waitcnt lgkmcnt(0)
    s_barrier
    """)
    A(zero_misc)
    A(f"""
    s_mul_i32 s20, s75, 12
    v_add_u32 v1, s20, v1
    v_subrev_u32 v2, s75, v2
    s_mov_b32 s7, 0
    s_branch k2_loadrec
    k2_shrink:
    s_barrier
    """)
    A(zero_misc)
    A(f"""
    s_mov_b64 s[{MK+6}:{MK+7}], 0
    s_mov_b32 s75, 24
    s_waitcnt lgkmcnt(0)
    s_barrier
    ds_write_b32 v15, v14 offset:{MISC - CNT}
    s_branch k2_rank
    k2_kernel_end:
    """)
    return A.text(), LDS

KD = '''.amdhsa_kernel {name}
  .amdhsa_next_free_vgpr {vgpr}
  .amdhsa_next_free_sgpr {sgpr}
  .amdhsa_accum_offset {acc}
  .amdhsa_group_segment_fixed_size 0
  .amdhsa_kernarg_size 96
  .amdhsa_user_sgpr_count 2
  .amdhsa_user_sgpr_kernarg_segment_ptr 1
  .amdhsa_system_sgpr_workgroup_id_x 1
  .amdhsa_float_denorm_mode_32 3
  .amdhsa_dx10_clamp 0
.end_amdhsa_kernel'''

def build(prof=False):
    k1, l1 = gen_k1(prof)
    k2, l2 = gen_k2(prof)
    head = open('standalone__edge_featured_mpnn_gatedgcn__graph.s.ref').read().split('\n')
    head = [h for h in head[:14]]
    out = head + [f'; @launch kernel=k1_kernel grid=(256,1,1) block=(640,1,1) lds={l1}',
                  f'; @launch kernel=k2_kernel grid=(256,1,1) block=(1024,1,1) lds={l2}',
                  '.amdgcn_target "amdgcn-amd-amdhsa--gfx950"', '.text']
    for nm, body in (('k1_kernel', k1), ('k2_kernel', k2)):
        out += [f'.globl {nm}', '.p2align 8', f'.type {nm},@function', body]
    out += ['.section .rodata,"a"', '.p2align 6', KD.format(name='k1_kernel', vgpr=128 if prof else 96, sgpr=102 if prof else 48, acc=128 if prof else 96),
            '.p2align 6', KD.format(name='k2_kernel', vgpr=128 if prof else 116, sgpr=102 if prof else 90, acc=128 if prof else 116)]
    return '\n'.join(out) + '\n'

if __name__ == '__main__':
    prof = '--prof' in sys.argv
    for a in sys.argv[2:]:
        if a.startswith('-O'): OPT.add(a[2:])
    dst = sys.argv[1]
    open(dst, 'w').write(build(prof))
```

```python
import sys

N = 10000; E = 320000
TABH = 10016 * 256
HDRO = 2 * TABH
RECO = HDRO + 0x10000
CH = 2560
STAMPO = 0x1000000
MAGIC = 214749
NLOG2E = 0xbfb8aa3b
C60 = 0x21800000
EPS60 = 0x538637bd
M60 = 0xc2700000

OPT = set()
class Asm:
    def __init__(self): self.L = []
    def __call__(self, s):
        for x in s.strip('\n').split('\n'): self.L.append('    ' + x.strip() if not x.strip().endswith(':') else x.strip())
    def text(self): return '\n'.join(self.L)

def srd(A, d, lo, hi, size, stride=0):
    A(f's_mov_b32 s{d}, s{lo}')
    if stride:
        A(f's_and_b32 s{d+1}, s{hi}, 0xffff')
        A(f's_or_b32 s{d+1}, s{d+1}, {hex(stride << 16)}')
    else:
        A(f's_mov_b32 s{d+1}, s{hi}')
    A(f's_mov_b32 s{d+2}, {size}')
    A(f's_mov_b32 s{d+3}, 0x00020000')

def srd_off(A, d, lo, hi, off, size, stride=0):
    A(f's_add_u32 s{d}, s{lo}, {off}')
    A(f's_addc_u32 s{d+1}, s{hi}, 0')
    if stride:
        A(f's_and_b32 s{d+1}, s{d+1}, 0xffff')
        A(f's_or_b32 s{d+1}, s{d+1}, {hex(stride << 16)}')
    A(f's_mov_b32 s{d+2}, {size}')
    A(f's_mov_b32 s{d+3}, 0x00020000')

def scan64(A, v):
    for sh in (1, 2, 4, 8):
        A('s_nop 1')
        A(f'v_add_u32_dpp v{v}, v{v}, v{v} row_shr:{sh} row_mask:0xf bank_mask:0xf bound_ctrl:0')
    A('s_nop 1')
    A(f'v_add_u32_dpp v{v}, v{v}, v{v} row_bcast:15 row_mask:0xa bank_mask:0xf')
    A('s_nop 1')
    A(f'v_add_u32_dpp v{v}, v{v}, v{v} row_bcast:31 row_mask:0xc bank_mask:0xf')

def stamp(A, prof, k, sb=90):
    if not prof: return
    A(f's_memtime s[{sb}:{sb+1}]')
    A('s_waitcnt lgkmcnt(0)')
    A(f'v_writelane_b32 v127, s{sb}, {k}')
    if k == 0:
        A(f's_memrealtime s[{sb}:{sb+1}]')
        A('s_waitcnt lgkmcnt(0)')
        A(f'v_writelane_b32 v127, s{sb}, 12')

def stamp_out(A, prof, wslo, wshi, slot_expr_sgpr, kernel_id):
    if not prof: return
    A('s_memrealtime s[90:91]')
    A('s_waitcnt lgkmcnt(0)')
    A('v_writelane_b32 v127, s90, 13')
    A('s_mov_b64 exec, 0xffff')
    A(f's_add_u32 s92, s{wslo}, {STAMPO + kernel_id * 0x80000}')
    A(f's_addc_u32 s93, s{wshi}, 0')
    A('s_mov_b32 s94, 0x80000')
    A('s_mov_b32 s95, 0x00020000')
    A(f's_lshl_b32 s96, s2, 4')
    A(f's_add_u32 s96, s96, s{slot_expr_sgpr}')
    A('s_lshl_b32 s96, s96, 6')
    A('s_getreg_b32 s90, hwreg(HW_REG_HW_ID)')
    A('s_getreg_b32 s91, hwreg(HW_REG_XCC_ID)')
    A('v_writelane_b32 v127, s90, 14')
    A('v_writelane_b32 v127, s91, 15')
    A('v_mbcnt_lo_u32_b32 v126, -1, 0')
    A('v_lshlrev_b32 v126, 2, v126')
    A('buffer_store_dword v127, v126, s[92:95], s96 offen')
    A('s_waitcnt vmcnt(0)')

def dbg_start(A):
    if 'dbg' not in OPT: return
    A('s_memrealtime s[96:97]')
    A('s_load_dwordx2 s[98:99], s[0:1], 80')

def dbg_end(A, k):
    if 'dbg' not in OPT: return
    A('s_waitcnt vmcnt(0)')
    A('s_memrealtime s[94:95]')
    A('s_waitcnt lgkmcnt(0)')
    A('s_not_b32 s96, s96')
    A('s_mov_b64 exec, 1')
    A('v_mov_b32 v0, 0\nv_mov_b32 v1, s96\nv_mov_b32 v2, s94')
    A(f'global_atomic_umax v0, v1, s[98:99] offset:{8*k}')
    A(f'global_atomic_umax v0, v2, s[98:99] offset:{8*k+4}')
    A('s_waitcnt vmcnt(0)')

def prefetch_code(A, nbytes, nthreads, vtmp, label):
    A(f's_getpc_b64 s[88:89]')
    A(f'v_lshlrev_b32 v{vtmp}, 6, v0')
    A(f'v_cmp_gt_u32 vcc, {label}_end - {label} - 64, v{vtmp}')
    A('s_and_saveexec_b64 s[86:87], vcc')
    A(f's_cbranch_execz {label}_pf')
    A(f'global_load_dword v{vtmp+1}, v{vtmp}, s[88:89]')
    A(f'{label}_pf:')
    A('s_mov_b64 exec, s[86:87]')

def gen_k1(prof):
    A = Asm()
    XB = 0; WB = 20480; WV = WB + 32768
    CNT = 30720; STA = CNT + 512
    A('k1_kernel:')
    dbg_start(A)
    stamp(A, prof, 0)
    A('''
    s_lshr_b32 s3, s2, 4
    s_lshl_b32 s3, s3, 3
    s_and_b32 s5, s2, 7
    s_or_b32 s3, s3, s5
    s_cmp_ge_u32 s3, 125
    s_cbranch_scc1 k1_exit
    s_load_dwordx4 s[8:11], s[0:1], 0
    s_load_dwordx4 s[12:15], s[0:1], 16
    s_load_dwordx2 s[16:17], s[0:1], 40
    s_load_dwordx2 s[18:19], s[0:1], 64
    s_load_dwordx2 s[20:21], s[0:1], 88
    v_lshrrev_b32 v1, 6, v0
    v_and_b32 v3, 63, v0
    v_readfirstlane_b32 s4, v1
    s_bitcmp1_b32 s2, 3
    s_cbranch_scc1 k1_gemm
    ''')
    A('''
    v_lshlrev_b32 v1, 4, v0
    v_lshlrev_b32 v2, 5, v0
    s_mul_i32 s5, s3, 10240
    s_mul_i32 s6, s3, 20480
    s_waitcnt lgkmcnt(0)
    ''')
    srd_off(A, 24, 14, 15, 's5', 10240)
    A('buffer_load_dwordx4 v[4:7], v1, s[24:27], 0 offen')
    srd_off(A, 28, 12, 13, 's5', 10240)
    A('buffer_load_dwordx4 v[8:11], v1, s[28:31], 0 offen')
    srd_off(A, 32, 10, 11, 's6', 20480)
    A('buffer_load_dwordx4 v[12:15], v2, s[32:35], 0 offen')
    A('buffer_load_dwordx4 v[16:19], v2, s[32:35], 0 offen offset:16')
    A(f'''
    v_mov_b32 v32, 0
    v_mov_b32 v33, 1
    v_lshlrev_b32 v34, 2, v0
    v_cmp_gt_u32 vcc, 128, v0
    s_and_saveexec_b64 s[6:7], vcc
    ds_write_b32 v34, v32 offset:{CNT}
    s_mov_b64 exec, s[6:7]
    s_mul_i32 s5, s3, {CH*12}
    s_add_u32 s5, s5, {RECO}
    ''')
    srd_off(A, 36, 20, 21, 's5', CH * 12)
    A(f's_lshl_b32 s5, s3, 9\ns_add_u32 s5, s5, {HDRO}')
    srd_off(A, 40, 20, 21, 's5', 512)
    A(f's_mov_b32 s5, {MAGIC}\ns_movk_i32 s6, 625')
    A('s_waitcnt lgkmcnt(0)\ns_barrier')
    stamp(A, prof, 1)
    A('s_waitcnt vmcnt(3)')
    stamp(A, prof, 2)
    for i in range(4):
        A(f'v_mul_u32_u24 v{20+i}, s5, v{4+i}')
    for i in range(4):
        A(f'v_lshrrev_b32 v{20+i}, 24, v{20+i}')
    for i in range(4):
        A(f'v_lshlrev_b32 v{28+i}, 2, v{20+i}')
        A(f'ds_add_rtn_u32 v{24+i}, v{28+i}, v33 offset:{CNT}')
    for i in range(4):
        A(f'v_mad_u32_u24 v{20+i}, v{20+i}, s6, 7')
    for i in range(4):
        A(f'v_lshrrev_b32 v{20+i}, 3, v{20+i}')
    for i in range(4):
        A(f'v_sub_u32 v{4+i}, v{4+i}, v{20+i}')
    A('s_waitcnt vmcnt(2)')
    for i in range(4):
        A(f'v_lshl_or_b32 v{8+i}, v{4+i}, 16, v{8+i}')
    A('s_waitcnt lgkmcnt(0)\ns_barrier')
    stamp(A, prof, 3)
    A(f'''
    s_cmp_lg_u32 s4, 0
    s_cbranch_scc1 k1_noscan
    v_lshlrev_b32 v34, 3, v0
    ds_read_b64 v[36:37], v34 offset:{CNT}
    s_waitcnt lgkmcnt(0)
    v_add_u32 v38, v36, v37
    v_mov_b32 v39, v38
    ''')
    scan64(A, 38)
    A(f'''
    v_sub_u32 v38, v38, v39
    v_add_u32 v39, v38, v36
    ds_write_b64 v34, v[38:39] offset:{STA}
    v_lshl_or_b32 v36, v36, 16, v38
    v_lshl_or_b32 v37, v37, 16, v39
    buffer_store_dwordx2 v[36:37], v34, s[40:43], 0 offen
    s_waitcnt lgkmcnt(0)
    k1_noscan:
    s_barrier
    ''')
    stamp(A, prof, 4)
    for i in range(4):
        A(f'ds_read_b32 v{20+i}, v{28+i} offset:{STA}')
    for i in range(4):
        A(f's_waitcnt lgkmcnt({3-i})')
        A(f'v_add_u32 v{20+i}, v{20+i}, v{24+i}')
        A(f'v_mul_u32_u24 v{20+i}, 12, v{20+i}')
    A('s_waitcnt vmcnt(0)' if False else 's_waitcnt vmcnt(0)')
    for i in range(4):
        A(f'ds_write2_b32 v{20+i}, v{12+2*i}, v{13+2*i} offset0:0 offset1:1')
        A(f'ds_write_b32 v{20+i}, v{8+i} offset:8')
    A('s_waitcnt lgkmcnt(0)\ns_barrier')
    stamp(A, prof, 5)
    for j in range(3):
        A(f'ds_read_b128 v[{4+4*j}:{7+4*j}], v1 offset:{10240*j}')
    A('v_add_u32 v2, 10240, v1\nv_add_u32 v3, 20480, v1')
    for j in range(3):
        A(f's_waitcnt lgkmcnt({2-j})')
        A(f'buffer_store_dwordx4 v[{4+4*j}:{7+4*j}], v{1+j}, s[36:39], 0 offen')
    stamp(A, prof, 6)
    if prof:
        A('s_waitcnt vmcnt(0)')
        stamp(A, prof, 7)
        stamp_out(A, prof, 20, 21, 4, 0)
    dbg_end(A, 0)
    A('s_endpgm')
    A('k1_gemm:')
    A('''
    v_lshrrev_b32 v4, 4, v3
    v_and_b32 v5, 15, v3
    v_xor_b32 v6, v5, v4
    v_lshlrev_b32 v6, 4, v6
    v_lshl_or_b32 v6, v4, 8, v6
    v_lshlrev_b32 v7, 1, v4
    v_xor_b32 v7, v5, v7
    v_lshlrev_b32 v7, 4, v7
    v_lshl_or_b32 v7, v4, 8, v7
    s_mul_i32 s5, s3, 20480
    s_waitcnt lgkmcnt(0)
    ''')
    srd_off(A, 24, 8, 9, 's5', 20480)
    srd(A, 28, 16, 17, 32768)
    srd(A, 32, 18, 19, 32768)
    for j in range(2):
        A(f'''
        s_lshl_b32 s5, s4, 1
        s_add_u32 s5, s5, {j}
        s_and_b32 s6, s5, 3
        s_lshl_b32 s6, s6, 6
        s_lshl_b32 s5, s5, 10
        v_xor_b32 v8, s6, v6
        s_add_u32 m0, s5, {XB}
        s_nop 0
        buffer_load_dwordx4 v8, s[24:27], s5 offen lds
        ''')
    for j in range(4):
        if j == 3:
            A('s_cmp_ge_u32 s4, 2\ns_cbranch_scc1 k1_dmadone')
        A(f'''
        s_add_u32 s5, s4, {10*j}
        s_lshl_b32 s6, s5, 6
        s_and_b32 s6, s6, 128
        s_lshl_b32 s5, s5, 10
        v_xor_b32 v8, s6, v7
        s_add_u32 m0, s5, {WB}
        s_nop 0
        buffer_load_dwordx4 v8, s[28:31], s5 offen lds
        s_add_u32 m0, s5, {WV}
        s_nop 0
        buffer_load_dwordx4 v8, s[32:35], s5 offen lds
        ''')
    A('k1_dmadone:')
    A(f'''
    s_lshr_b32 s5, s4, 1
    s_and_b32 s6, s4, 1
    s_lshl_b32 s7, s5, 12
    v_xor_b32 v8, v4, v5
    v_lshlrev_b32 v8, 4, v8
    v_lshl_or_b32 v8, v5, 8, v8
    v_add_u32 v8, s7, v8
    v_xor_b32 v9, 64, v8
    v_xor_b32 v10, 128, v8
    v_xor_b32 v11, 192, v8
    v_bfe_u32 v12, v3, 2, 2
    v_and_b32 v13, 1, v4
    v_lshl_or_b32 v13, v13, 2, v12
    v_lshlrev_b32 v13, 5, v13
    v_lshl_add_u32 v12, v4, 3, v12
    v_lshl_or_b32 v13, v12, 8, v13
    v_and_b32 v12, 3, v3
    v_lshl_or_b32 v13, v12, 3, v13
    v_add_u32 v13, {WB}, v13
    s_lshl_b32 s7, s6, 7
    v_xor_b32 v12, s7, v13
    v_xor_b32 v13, 32, v12
    v_xor_b32 v14, 64, v12
    v_xor_b32 v15, 96, v12
    s_mul_i32 s7, s6, {TABH}
    s_mul_i32 s22, s3, 20480
    s_add_u32 s7, s7, s22
    s_lshl_b32 s22, s5, 12
    s_add_u32 s7, s7, s22
    ''')
    srd_off(A, 36, 20, 21, 's7', 4096)
    A(f'''
    v_lshlrev_b32 v6, 10, v4
    v_lshl_or_b32 v6, v5, 4, v6
    s_mov_b32 s22, {hex(NLOG2E)}
    s_mov_b32 s23, {hex(NLOG2E)}
    s_waitcnt vmcnt(0)
    s_barrier
    ''')
    stamp(A, prof, 2)
    XF = 16
    WF = 32
    AC = 64
    for s in range(4):
        A(f'ds_read_b128 v[{XF+4*s}:{XF+4*s+3}], v{8+s} offset:{XB}')
    steps = [(s, m, c) for s in range(4) for m in range(2) for c in range(4)]
    PD = 4
    def rd(i):
        s, m, c = steps[i]; b = WF + 4 * (i % 8)
        for u in range(2):
            A(f'ds_read_b64_tr_b16 v[{b+2*u}:{b+2*u+1}], v{12+c} offset:{m*32768 + (32*s+4*u)*256}')
    for i in range(PD): rd(i)
    for i in range(32):
        s, m, c = steps[i]; b = WF + 4 * (i % 8)
        if i + PD < 32:
            rd(i + PD); A(f's_waitcnt lgkmcnt({2*PD})')
        else:
            A(f's_waitcnt lgkmcnt({2*(31-i)})')
        acc = AC + 16 * m + 4 * c
        cin = '0' if s == 0 else f'v[{acc}:{acc+3}]'
        A(f'v_mfma_f32_16x16x32_bf16 v[{acc}:{acc+3}], v[{XF+4*s}:{XF+4*s+3}], v[{b}:{b+3}], {cin}')
    stamp(A, prof, 3)
    A('s_nop 3')
    for c in range(4):
        for u in range(2):
            A(f'v_pk_mul_f32 v[{AC+4*c+2*u}:{AC+4*c+2*u+1}], v[{AC+4*c+2*u}:{AC+4*c+2*u+1}], s[22:23]')
    for i in range(4):
        o = 16 + 4 * i
        A(f'v_cvt_pk_bf16_f32 v{o}, v{AC+i}, v{AC+4+i}')
        A(f'v_cvt_pk_bf16_f32 v{o+1}, v{AC+8+i}, v{AC+12+i}')
        A(f'v_cvt_pk_bf16_f32 v{o+2}, v{AC+16+i}, v{AC+20+i}')
        A(f'v_cvt_pk_bf16_f32 v{o+3}, v{AC+24+i}, v{AC+28+i}')
        A(f'buffer_store_dwordx4 v[{o}:{o+3}], v6, s[36:39], 0 offen offset:{256*i}')
    A(f'''
    s_or_b32 s5, s5, s3
    s_cmp_lg_u32 s5, 0
    s_cbranch_scc1 k1_nonull
    s_mul_i32 s7, s6, {TABH}
    s_add_u32 s7, s7, {N*256}
    ''')
    srd_off(A, 40, 20, 21, 's7', 256)
    A('''
    v_mov_b32 v32, 0x7f7f7f7f
    v_mov_b32 v33, 0x7f7f7f7f
    v_mov_b32 v34, 0
    v_mov_b32 v35, 0
    v_lshlrev_b32 v7, 4, v3
    buffer_store_dwordx4 v[32:35], v7, s[40:43], 0 offen
    k1_nonull:
    ''')
    stamp(A, prof, 6)
    if prof:
        A('s_waitcnt vmcnt(0)')
        stamp(A, prof, 7)
        stamp_out(A, prof, 20, 21, 4, 0)
    dbg_end(A, 1)
    A('k1_exit:')
    A('s_endpgm')
    A('k1_kernel_end:')
    return A.text(), 86016

def gen_k2(prof):
    A = Asm()
    HEAD = 81920
    XB = HEAD; WA = XB + 20480; WU = WA + 16384
    EL = HEAD + 32768; CAPR = 3904; PL = EL + CAPR * 8
    CAPT = CAPR - 16
    CNT = PL + CAPR * 4; STA = CNT + 512; HIN = STA + 512; MISC = HIN + 640; ZER = MISC + 16
    NZ = (ZER + 96 - CNT) // 16
    LDS = ZER + 96
    assert LDS <= 163840 and WU + 16384 <= CNT
    RC = 42
    R_ = 6
    MK = 60
    def pr(a): return f'v[{a}:{a+1}]'
    WC = WU + 16384
    assert WC + 512 <= CNT
    PF = 0 if 'nopf' in OPT else int(([o[2:] for o in OPT if o.startswith('pf')] + ['14'])[0])
    A('k2_kernel:')
    dbg_start(A)
    stamp(A, prof, 0)
    A("""
    s_cmp_ge_u32 s2, 256
    s_cbranch_scc1 k2_exit
    s_load_dwordx2 s[18:19], s[0:1], 88
    s_load_dwordx2 s[8:9], s[0:1], 0
    s_load_dwordx2 s[10:11], s[0:1], 32
    s_load_dwordx4 s[12:15], s[0:1], 48
    s_load_dwordx2 s[16:17], s[0:1], 72
    v_lshrrev_b32 v1, 6, v0
    v_and_b32 v3, 63, v0
    v_readfirstlane_b32 s4, v1
    s_bfe_u32 s3, s2, 0x20001
    s_lshl_b32 s3, s3, 5
    s_lshr_b32 s78, s2, 3
    s_add_u32 s3, s3, s78
    s_and_b32 s5, s2, 1
    s_mul_i32 s6, s3, 625
    s_add_u32 s7, s6, 632
    s_add_u32 s6, s6, 7
    s_lshr_b32 s6, s6, 3
    s_lshr_b32 s7, s7, 3
    s_sub_u32 s7, s7, s6
    v_lshrrev_b32 v1, 3, v0
    v_lshlrev_b32 v2, 9, v1
    s_lshl_b32 s20, s3, 2
    v_lshrrev_b32 v66, 4, v3
    v_and_b32 v67, 15, v3
    v_xor_b32 v68, v67, v66
    v_lshlrev_b32 v68, 4, v68
    v_lshl_or_b32 v68, v66, 8, v68
    s_and_b32 s21, s4, 3
    s_lshl_b32 s21, s21, 6
    v_xor_b32 v68, s21, v68
    v_lshrrev_b32 v69, 3, v3
    v_and_b32 v70, 7, v3
    v_lshlrev_b32 v73, 4, v70
    v_lshl_or_b32 v73, v69, 8, v73
    v_and_b32 v71, 2, v69
    v_xor_b32 v70, v70, v71
    v_lshlrev_b32 v70, 4, v70
    v_lshl_or_b32 v70, v69, 8, v70
    s_and_b32 s21, s4, 1
    s_lshl_b32 s21, s21, 6
    v_xor_b32 v70, s21, v70
    s_waitcnt lgkmcnt(0)
    """)
    srd_off(A, 24, 18, 19, HDRO, 125 * 512)
    A('buffer_load_dword v2, v2, s[24:27], s20 offen')
    A('s_lshl_b32 s20, s6, 8')
    A(f's_sub_u32 s21, {N*256}, s20')
    srd_off(A, 28, 8, 9, 's20', 's21')
    A('s_lshl_b32 s22, s5, 7\ns_sub_u32 s23, 32768, s22')
    srd_off(A, 32, 10, 11, 's22', 's23')
    srd_off(A, 36, 14, 15, 's22', 's23')
    A('s_sub_u32 s23, 1024, s22')
    srd_off(A, 40, 12, 13, 's22', 's23')
    if 'nohb' not in OPT: A('s_barrier')
    A(f"""
    s_lshl_b32 s20, s4, 10
    s_lshl_b32 s21, s4, 11
    s_add_u32 m0, s20, {WA}
    s_nop 0
    buffer_load_dwordx4 v70, s[32:35], s21 offen lds
    s_add_u32 m0, s20, {WU}
    s_nop 0
    buffer_load_dwordx4 v70, s[36:39], s21 offen lds
    s_add_u32 m0, s20, {XB}
    s_nop 0
    buffer_load_dwordx4 v68, s[28:31], s20 offen lds
    s_cmp_ge_u32 s4, 5
    s_cbranch_scc1 k2_nox2
    s_cmp_eq_u32 s4, 4
    s_cbranch_scc1 k2_wc
    s_add_u32 s20, s20, 16384
    s_add_u32 m0, s20, {XB}
    s_nop 0
    buffer_load_dwordx4 v68, s[28:31], s20 offen lds
    s_branch k2_nox2
    k2_wc:
    s_mov_b32 m0, {WC}
    s_mov_b32 exec_hi, 0
    buffer_load_dwordx4 v73, s[40:43], 0 offen lds
    s_mov_b64 exec, -1
    k2_nox2:
    """)
    A(f"""
    v_mov_b32 v74, 0
    v_mov_b32 v75, 0
    v_mov_b32 v76, 0
    v_mov_b32 v77, 0
    v_and_b32 v72, 7, v0
    v_lshrrev_b32 v78, 5, v0
    v_and_b32 v79, 31, v0
    v_lshlrev_b32 v79, 4, v79
    v_lshl_or_b32 v78, v78, 10, v79
    ds_write_b128 v78, v[74:77]
    ds_write_b128 v78, v[74:77] offset:32768
    s_cmp_ge_u32 s4, 8
    s_cbranch_scc1 k2_noz
    v_add_u32 v78, 0x10000, v78
    ds_write_b128 v78, v[74:77]
    k2_noz:
    v_lshlrev_b32 v78, 4, v0
    v_add_u32 v78, {CNT}, v78
    v_cmp_gt_u32 vcc, {NZ}, v0
    s_and_saveexec_b64 s[20:21], vcc
    ds_write_b128 v78, v[74:77]
    s_mov_b64 exec, s[20:21]
    """)
    srd_off(A, 44, 18, 19, RECO, 125 * CH * 12)
    A(f's_mul_i32 s20, s5, {TABH}')
    srd_off(A, 48, 18, 19, 's20', N + 1, stride=(1 if 'row0' in OPT else 256))
    A('s_lshl_b32 s20, s6, 8\ns_add_u32 s20, s20, s22\ns_lshl_b32 s21, s7, 8\ns_sub_u32 s21, s21, s22')
    srd_off(A, 52, 16, 17, 's20', 's21')
    A(f"""
    v_and_b32 v78, 1, v3
    v_lshlrev_b32 v78, 4, v78
    v_mov_b32 v79, 0x3f80
    v_lshlrev_b32 v79, v78, v79
    v_and_b32 v78, 2, v3
    v_cmp_eq_u32 vcc, 0, v78
    v_mul_u32_u24 v1, {CH*12}, v1
    s_mov_b32 s56, {hex(C60)}
    v_cndmask_b32 v12, 0, v79, vcc
    v_cndmask_b32 v13, v79, v74, vcc
    s_mov_b32 s57, {hex(C60)}
    s_mov_b32 s58, 0x22221111
    s_mov_b32 s59, 0x88884444
    """)
    if PF:
        A(f"""
        s_mul_i32 s20, s78, 313
        s_mul_i32 s21, s4, {PF // 2}
        s_add_u32 s20, s20, s21
        v_lshrrev_b32 v10, 1, v3
        v_add_u32 v10, s20, v10
        v_and_b32 v11, 1, v3
        v_lshlrev_b32 v11, 7, v11
        s_mov_b32 s80, {hex(((1 << PF) - 1) & 0xffffffff)}
        s_mov_b32 s81, {hex(((1 << PF) - 1) >> 32)}
        """)
    A('s_waitcnt vmcnt(3)')
    stamp(A, prof, 1)
    A(f"""
    v_and_b32 v78, 0xffff, v2
    v_add_u32 v78, v78, v72
    v_mad_u32_u24 v1, v78, 12, v1
    v_lshrrev_b32 v2, 16, v2
    v_sub_u32 v2, v2, v72
    """)
    A('k2_loadrec:')
    A(f's_mov_b32 s75, {8*R_}')
    for r in range(R_):
        A(f'v_cmp_lt_i32 s[{MK+2*r}:{MK+2*r+1}], {8*r}, v2')
    for r in range(R_):
        A(f's_mov_b64 exec, s[{MK+2*r}:{MK+2*r+1}]')
        A(f's_cbranch_execz k2_ld{r}')
        A(f'buffer_load_dwordx3 v[{RC+4*r}:{RC+4*r+2}], v1, s[44:47], 0 offen offset:{96*r}')
    A(f's_waitcnt vmcnt({R_})\ns_branch k2_lddone')
    for r in range(R_):
        A(f'k2_ld{r}:\ns_waitcnt vmcnt({r})')
        if r < R_ - 1: A('s_branch k2_lddone')
    A('k2_lddone:')
    if PF:
        A('s_mov_b64 exec, s[80:81]\nbuffer_load_dword v114, v[10:11], s[48:51], 0 idxen offen')
    A('s_mov_b64 exec, -1')
    A('s_waitcnt lgkmcnt(0)\ns_barrier')
    stamp(A, prof, 2)
    A('s_cmp_eq_u32 s7, 0\ns_cbranch_scc1 k2_gemmdone')
    A(f"""
    v_lshlrev_b32 v18, 1, v3
    v_add_u32 v18, {WC}, v18
    s_mov_b32 s20, {hex(NLOG2E)}
    ds_read_u16 v14, v18
    ds_read_u16 v15, v18 offset:128
    ds_read_u16 v16, v18 offset:256
    ds_read_u16 v17, v18 offset:384
    v_lshrrev_b32 v18, 3, v0
    v_bfe_u32 v19, v0, 2, 1
    v_lshl_or_b32 v19, s5, 3, v19
    v_xor_b32 v19, v19, v18
    v_and_b32 v19, 15, v19
    v_lshlrev_b32 v19, 4, v19
    v_lshl_or_b32 v19, v18, 8, v19
    v_and_b32 v18, 3, v0
    v_lshl_or_b32 v19, v18, 2, v19
    v_add_u32 v19, {XB}, v19
    v_xor_b32 v20, 32, v19
    v_xor_b32 v22, 64, v19
    v_xor_b32 v23, 96, v19
    s_waitcnt lgkmcnt(0)
    """)
    for k in range(4):
        A(f'v_lshlrev_b32 v{14+k}, 16, v{14+k}')
    for k in range(4):
        A(f'v_mul_f32 v{14+k}, s20, v{14+k}')
    A('v_cvt_pk_bf16_f32 v8, v14, v15\nv_cvt_pk_bf16_f32 v9, v16, v17')
    XF = 66; WF = 82; AC = 26
    A(f"""
    s_cmp_ge_u32 s4, 10
    s_cbranch_scc1 k2_gemmdone
    ds_read_b32 v4, v19
    ds_read_b32 v5, v20
    ds_read_b32 v6, v22
    ds_read_b32 v7, v23
    s_lshr_b32 s22, s4, 1
    s_and_b32 s21, s4, 1
    v_lshrrev_b32 v22, 4, v3
    v_and_b32 v23, 15, v3
    s_lshl_b32 s23, s22, 12
    s_add_u32 s23, s23, {XB}
    v_xor_b32 v18, v22, v23
    v_lshlrev_b32 v18, 4, v18
    v_lshl_or_b32 v18, v23, 8, v18
    v_add_u32 v18, s23, v18
    v_xor_b32 v19, 64, v18
    v_xor_b32 v20, 128, v18
    v_xor_b32 v21, 192, v18
    """)
    for s in range(4):
        A(f'ds_read_b128 v[{XF+4*s}:{XF+4*s+3}], v{18+s}')
    A('s_waitcnt lgkmcnt(4)')
    A(f"""
    v_bfe_u32 v24, v3, 2, 2
    v_lshl_add_u32 v14, v22, 3, v24
    v_lshlrev_b32 v14, 7, v14
    v_lshrrev_b32 v24, 1, v24
    v_and_b32 v25, 1, v22
    v_lshl_or_b32 v24, v25, 1, v24
    v_lshl_or_b32 v14, v24, 5, v14
    v_and_b32 v24, 3, v3
    v_lshl_or_b32 v14, v24, 3, v14
    s_lshl_b32 s23, s21, 14
    s_add_u32 s23, s23, {WA}
    v_add_u32 v14, s23, v14
    v_xor_b32 v15, 32, v14
    v_xor_b32 v16, 64, v14
    v_xor_b32 v17, 96, v14
    """)
    steps = [(s, c) for s in range(4) for c in range(4)]
    PD = 4
    def rd(i):
        s, c = steps[i]; b = WF + 4 * (i % 8)
        for u in range(2):
            A(f'ds_read_b64_tr_b16 v[{b+2*u}:{b+2*u+1}], v{14+c} offset:{(32*s+4*u)*128}')
    for i in range(PD): rd(i)
    A(f"""
    s_lshl_b32 s23, s22, 14
    s_lshl_b32 s22, s21, 8
    s_add_u32 s23, s23, s22
    s_add_u32 s23, s23, 512
    v_lshlrev_b32 v18, 12, v22
    v_lshl_or_b32 v18, v23, 4, v18
    v_add_u32 v18, s23, v18
    s_cmp_eq_u32 s21, 0
    s_cselect_b32 s20, s20, 1.0
    s_cselect_b32 s21, {hex(M60)}, 0
    v_mov_b32 v19, s21
    """)
    for i in range(16):
        s, c = steps[i]; b = WF + 4 * (i % 8)
        if i + PD < 16:
            rd(i + PD); A(f's_waitcnt lgkmcnt({2*PD})')
        else:
            A(f's_waitcnt lgkmcnt({2*(15-i)})')
        acc = AC + 4 * c
        cin = '0' if s == 0 else f'v[{acc}:{acc+3}]'
        A(f'v_mfma_f32_16x16x32_bf16 v[{acc}:{acc+3}], v[{XF+4*s}:{XF+4*s+3}], v[{b}:{b+3}], {cin}')
    A('s_nop 7')
    for i in range(4):
        for c in range(4):
            A(f'v_fma_f32 v{XF+4*i+c}, v{AC+4*c+i}, s20, v19')
        A(f'ds_write_b128 v18, v[{XF+4*i}:{XF+4*i+3}] offset:{i*1024}')
    A('k2_gemmdone:')
    stamp(A, prof, 3)
    A(f'v_mov_b32 v14, 1\nv_mov_b32 v15, {CNT}\ns_waitcnt vmcnt({1 if PF else 0})')
    stamp(A, prof, 4)
    A('k2_rank:')
    for r in range(R_):
        A(f's_mov_b64 exec, s[{MK+2*r}:{MK+2*r+1}]')
        A(f's_cbranch_execz k2_rankdone')
        A(f'v_lshrrev_b32 v{66+r}, 14, v{RC+4*r+2}')
        A(f'v_add_u32 v{66+r}, v15, v{66+r}')
        A(f'ds_add_rtn_u32 v{RC+4*r+3}, v{66+r}, v14')
    A(f"""
    v_cmp_lt_i32 vcc, {8*R_}, v2
    s_and_b64 exec, exec, vcc
    s_cbranch_execz k2_rankdone
    ds_write_b32 v15, v14 offset:{MISC - CNT}
    k2_rankdone:
    s_mov_b64 exec, -1
    s_waitcnt lgkmcnt(0)
    s_barrier
    """)
    stamp(A, prof, 5)
    A(f"""
    s_cmp_lg_u32 s4, 0
    s_cbranch_scc1 k2_noscan
    v_lshl_add_u32 v16, v3, 3, v15
    ds_read_b64 v[18:19], v16
    s_waitcnt lgkmcnt(0)
    v_add_u32 v18, 1, v18
    v_add_u32 v19, 1, v19
    v_and_b32 v18, -2, v18
    v_and_b32 v19, -2, v19
    v_add_u32 v20, v18, v19
    v_mov_b32 v21, v20
    """)
    scan64(A, 20)
    A(f"""
    v_sub_u32 v20, v20, v21
    v_add_u32 v21, v20, v18
    ds_write_b64 v16, v[20:21] offset:{STA - CNT}
    s_waitcnt lgkmcnt(0)
    k2_noscan:
    s_barrier
    """)
    stamp(A, prof, 6)
    A(f"""
    ds_read_b32 v16, v15 offset:{STA - CNT + 4*100}
    ds_read_b32 v17, v15 offset:{MISC - CNT}
    """)
    for r in range(R_):
        A(f's_mov_b64 exec, s[{MK+2*r}:{MK+2*r+1}]')
        A(f's_cbranch_execz k2_st')
        A(f'ds_read_b32 v{72+r}, v{66+r} offset:{STA - CNT}')
    A(f"""
    k2_st:
    s_mov_b64 exec, -1
    v_lshl_add_u32 v18, v0, 2, v15
    s_cmp_ge_u32 s4, 2
    s_cbranch_scc1 k2_nopad0
    ds_read_b32 v19, v18
    ds_read_b32 v20, v18 offset:{STA - CNT}
    k2_nopad0:
    s_mov_b32 s20, {EL}
    s_mov_b32 s21, {PL}
    s_waitcnt lgkmcnt(0)
    v_readfirstlane_b32 s22, v16
    v_readfirstlane_b32 s72, v17
    s_cmp_gt_u32 s22, {CAPT}
    s_cbranch_scc1 k2_shrink
    s_cmp_ge_u32 s4, 2
    s_cbranch_scc1 k2_nopad
    v_subrev_u32 v21, 80, v0
    v_cmp_gt_u32 vcc, 80, v0
    v_mov_b32 v22, 0
    v_mov_b32 v23, 0
    v_min_u32 v24, 79, v0
    v_lshlrev_b32 v24, 16, v24
    v_or_b32 v24, {N}, v24
    v_cndmask_b32 v25, v21, v19, vcc
    v_add_u32 v20, v20, v25
    v_and_b32 v19, 1, v19
    v_cmp_eq_u32 vcc, 1, v19
    v_cmp_gt_u32 s[76:77], 8, v21
    s_or_b64 exec, vcc, s[76:77]
    s_cbranch_execz k2_nopad
    v_lshl_add_u32 v25, v20, 3, s20
    v_lshl_add_u32 v20, v20, 2, s21
    ds_write_b64 v25, v[22:23]
    ds_write_b32 v20, v24
    k2_nopad:
    """)
    for r in range(R_):
        A(f's_mov_b64 exec, s[{MK+2*r}:{MK+2*r+1}]')
        A(f's_cbranch_execz k2_scat')
        A(f'v_add_u32 v{72+r}, v{72+r}, v{RC+4*r+3}')
        A(f'v_lshl_add_u32 v{66+r}, v{72+r}, 3, s20')
        A(f'v_lshl_add_u32 v{72+r}, v{72+r}, 2, s21')
        A(f'ds_write_b64 v{66+r}, v[{RC+4*r}:{RC+4*r+1}]')
        A(f'ds_write_b32 v{72+r}, v{RC+4*r+2}')
    A(f"""
    k2_scat:
    s_mov_b64 exec, -1
    v_lshrrev_b32 v16, 4, v3
    v_bfe_u32 v17, v3, 2, 2
    s_add_u32 s22, s22, 6
    s_lshr_b32 s22, s22, 3
    s_lshr_b32 s23, s22, 4
    s_and_b32 s22, s22, 15
    s_mul_i32 s73, s23, s4
    s_min_u32 s74, s4, s22
    s_add_u32 s73, s73, s74
    s_cmp_lt_u32 s4, s22
    s_addc_u32 s23, s23, 0
    s_lshl_b32 s73, s73, 2
    v_mov_b32 v18, s73
    v_mad_u32_u24 v14, v16, s23, v18
    v_mad_u32_u24 v17, v17, s23, v18
    v_lshl_add_u32 v14, v14, 3, s21
    v_lshl_add_u32 v15, v17, 4, s20
    v_and_b32 v19, 15, v3
    v_lshlrev_b32 v23, 4, v19
    v_mov_b32 v25, v23
    s_lshl_b32 s74, s4, 2
    v_add_u32 v21, s74, v16
    v_lshl_add_u32 v18, v21, 9, v23
    v_add_u32 v18, {HEAD}, v18
    v_add_u32 v21, 1, v21
    v_mov_b32 v20, 1
    v_mov_b32 v26, {ZER}
    v_mov_b32 v10, 32
    v_cndmask_b32 v15, v26, v15, s[58:59]
    v_cndmask_b32 v11, 0, 64, s[58:59]
    v_mov_b64 v[34:35], 0
    v_mov_b64 v[36:37], 0
    v_mov_b64 v[38:39], 0
    v_mov_b64 v[40:41], 0
    s_mov_b32 s76, 0x00010001
    s_mov_b32 s77, 0x00010001
    s_mov_b64 s[82:83], 0
    s_mov_b64 s[84:85], 0
    """)
    TP = 50
    for k in range(8):
        A(f'v_mov_b32 v{TP+2*k+1}, v23')
    A('s_waitcnt lgkmcnt(0)\ns_barrier')
    stamp(A, prof, 7)
    RB = 70; DD = [42, 102]; ND = [16, 17, 19, 110]; MS = [82, 84]
    Ha = 50; Hb = 54; P = 58; Sg = 62; Q = 66; DEN = 34; NUM = 38
    def y1(d): return f'v_mfma_f32_16x16x16_bf16 v[{d}:{d+3}], v[26:27], v[8:9], v[30:33]'
    def y2(d): return f'v_mfma_f32_16x16x16_bf16 v[{d+4}:{d+7}], v[28:29], v[8:9], v[30:33]'
    def y3(d, r): return f'v_mfma_f32_4x4x4_16b_bf16 v[{d}:{d+3}], v[12:13], v[{r}:{r+1}], v[{d}:{d+3}]'
    def y4(d, r): return f'v_mfma_f32_4x4x4_16b_bf16 v[{d+4}:{d+7}], v[12:13], v[{r+4}:{r+5}], v[{d+4}:{d+7}]'
    A('s_sub_u32 s23, s23, 1\ns_cbranch_scc1 k2_loopdone')
    for k in range(8):
        A(f'ds_read_u16 v{TP+2*k}, v14 offset:{4*k}')
    A(f"""
    ds_read_u16 v{ND[0]}, v14 offset:2
    ds_read_b128 v[26:29], v15
    ds_read_u16 v{ND[1]}, v14 offset:10
    ds_read_u16 v{ND[2]}, v14 offset:18
    ds_read_u16 v22, v14 offset:32
    ds_read_u16 v24, v14 offset:36
    """)
    for k in range(4):
        A(f's_waitcnt lgkmcnt({12-2*k})')
        A(f'buffer_load_dwordx4 v[{RB+8*k}:{RB+8*k+3}], v[{TP+4*k}:{TP+4*k+1}], s[48:51], 0 idxen offen')
        A(f'buffer_load_dwordx4 v[{RB+8*k+4}:{RB+8*k+7}], v[{TP+4*k+2}:{TP+4*k+3}], s[48:51], 0 idxen offen')
    A(f"""
    s_waitcnt lgkmcnt(5)
    v_lshl_add_u32 v58, v{ND[0]}, 10, v23
    ds_read_b128 v[30:33], v58 offset:512
    v_lshlrev_b32 v58, 3, v{ND[0]}
    v_add_u32 v58, {HIN}, v58
    s_mov_b64 exec, s[76:77]
    ds_add_u32 v58, v20
    ds_max_u32 v58, v21 offset:4
    s_mov_b64 exec, -1
    s_waitcnt lgkmcnt(2)
    {y1(DD[0])}
    v_cmp_ne_u32 s[{MS[0]}:{MS[0]+1}], v{ND[0]}, v{ND[1]}
    v_lshl_add_u32 v58, v{ND[1]}, 10, v23
    {y2(DD[0])}
    ds_read_b128 v[26:29], v15 offset:16
    ds_read_b128 v[30:33], v58 offset:512
    s_waitcnt vmcnt(6)
    s_nop 2
    {y3(DD[0], RB)}
    {y4(DD[0], RB)}
    s_waitcnt lgkmcnt(0)
    s_nop 1
    k2_loop:
    """)
    for u in range(4):
        D = DD[u & 1]; Dn = DD[(u + 1) & 1]; Da = D; Db = D + 4
        Rc = RB + 8 * u; Rn = RB + 8 * ((u + 1) % 4)
        g0 = 's_nop 0' if 'nogather' in OPT else f'buffer_load_dwordx4 v[{Rc}:{Rc+3}], v[22:23], s[48:51], 0 idxen offen'
        g1 = 's_nop 0' if 'nogather' in OPT else f'buffer_load_dwordx4 v[{Rc+4}:{Rc+7}], v[24:25], s[48:51], 0 idxen offen'
        e = [f'v_exp_f32_e64 v{D+i}, v{D+i} clamp' for i in range(8)]
        if 'noprio' not in OPT: A(f's_setprio {3-u}')
        A(f"""
        v_mfma_f32_4x4x4_16b_bf16 v[{Ha}:{Ha+3}], v[12:13], v[{Rc+2}:{Rc+3}], 0
        {e[0]}
        v_mfma_f32_4x4x4_16b_bf16 v[{Hb}:{Hb+3}], v[12:13], v[{Rc+6}:{Rc+7}], 0
        {e[1]}
        {y1(Dn)}
        {e[2]}
        {g0}
        {e[3]}
        {g1}
        {e[4]}
        {y2(Dn)}
        {e[5]}
        ds_read_b128 v[26:29], v15 offset:{(u+2)*16}
        ds_read_u16 v22, v14 offset:{(u+5)*8}
        {e[6]}
        ds_read_u16 v24, v14 offset:{(u+5)*8+4}
        ds_read_u16 v{ND[(u+3)%4]}, v14 offset:{(u+3)*8+2}
        v_cmp_ne_u32 vcc, v{ND[(u+1)%4]}, v{ND[(u+2)%4]}
        {e[7]}
        {'s_nop 0' if 'noev' in OPT else f's_cbranch_vccnz k2_eva{u}'}
        k2_bka{u}:
        v_pk_add_f32 {pr(Da)}, {pr(Da)}, s[56:57]
        v_pk_add_f32 {pr(Db)}, {pr(Db)}, s[56:57]
        v_pk_add_f32 {pr(Da+2)}, {pr(Da+2)}, s[56:57]
        v_pk_add_f32 {pr(Db+2)}, {pr(Db+2)}, s[56:57]
        v_pk_mul_f32 {pr(P)}, {pr(Da)}, {pr(Db)}
        v_pk_mul_f32 {pr(P+2)}, {pr(Da+2)}, {pr(Db+2)}
        v_pk_mul_f32 {pr(Q)}, {pr(Db)}, {pr(Ha)}
        s_waitcnt vmcnt(6) lgkmcnt(4)
        {y3(Dn, Rn)}
        v_rcp_f32 v{P}, v{P}
        {y4(Dn, Rn)}
        v_rcp_f32 v{P+1}, v{P+1}
        v_rcp_f32 v{P+2}, v{P+2}
        v_rcp_f32 v{P+3}, v{P+3}
        v_pk_mul_f32 {pr(Q+2)}, {pr(Db+2)}, {pr(Ha+2)}
        v_pk_add_f32 {pr(Sg)}, {pr(Da)}, {pr(Db)}
        v_pk_add_f32 {pr(Sg+2)}, {pr(Da+2)}, {pr(Db+2)}
        v_pk_fma_f32 {pr(Q)}, {pr(Da)}, {pr(Hb)}, {pr(Q)}
        v_pk_fma_f32 {pr(Q+2)}, {pr(Da+2)}, {pr(Hb+2)}, {pr(Q+2)}
        """)
        if u == 3:
            A('v_lshl_add_u64 v[14:15], v[14:15], 0, v[10:11]')
        A(f"""
        v_pk_fma_f32 {pr(DEN)}, {pr(Sg)}, {pr(P)}, {pr(DEN)}
        v_pk_fma_f32 {pr(DEN+2)}, {pr(Sg+2)}, {pr(P+2)}, {pr(DEN+2)}
        v_pk_fma_f32 {pr(NUM)}, {pr(Q)}, {pr(P)}, {pr(NUM)}
        v_pk_fma_f32 {pr(NUM+2)}, {pr(Q+2)}, {pr(P+2)}, {pr(NUM+2)}
        s_sub_u32 s23, s23, 1
        s_cbranch_scc1 k2_flush
        s_waitcnt lgkmcnt(0)
        s_cmp_lg_u64 s[{MS[u&1]}:{MS[u&1]+1}], 0
        """)
        if u == 3:
            A('s_cbranch_scc0 k2_loop')
        else:
            A(f's_cbranch_scc1 k2_evb{u}\nk2_bkb{u}:')
    for u in (3, 0, 1, 2):
        m = MS[u & 1]
        A(f"""
        k2_evb{u}:
        s_mov_b64 exec, s[{m}:{m+1}]
        ds_write_b128 v18, v[34:37]
        ds_write_b128 v18, v[38:41] offset:256
        v_lshl_add_u32 v18, v{ND[(u+1)%4]}, 10, v23
        s_mov_b64 s[{m}:{m+1}], 0
        ds_read_b128 v[34:37], v18
        ds_read_b128 v[38:41], v18 offset:256
        s_mov_b64 exec, -1
        s_branch {'k2_loop' if u == 3 else f'k2_bkb{u}'}
        """)
    for u in range(4):
        m = MS[(u + 1) & 1]
        A(f"""
        k2_eva{u}:
        s_mov_b64 exec, vcc
        v_lshl_add_u32 v111, v{ND[(u+2)%4]}, 10, v23
        s_mov_b64 s[{m}:{m+1}], vcc
        ds_read_b128 v[30:33], v111 offset:512
        s_mov_b64 exec, -1
        s_branch k2_bka{u}
        """)
    A("""
    k2_flush:
    s_setprio 0
    ds_write_b128 v18, v[34:37]
    ds_write_b128 v18, v[38:41] offset:256
    k2_loopdone:
    """)
    stamp(A, prof, 8)
    A(f"""
    v_lshrrev_b32 v14, 3, v0
    v_and_b32 v15, 7, v0
    v_lshlrev_b32 v17, 5, v15
    v_lshl_or_b32 v16, v14, 10, v17
    v_lshlrev_b32 v15, 2, v15
    v_lshl_or_b32 v15, v14, 8, v15
    v_lshlrev_b32 v14, 3, v14
    v_add_u32 v14, {HIN}, v14
    v_add_u32 v17, {HEAD - 512}, v17
    s_waitcnt lgkmcnt(0)
    s_barrier
    """)
    stamp(A, prof, 9)
    A(f"""
    s_cmp_ge_u32 s4, 10
    s_cbranch_scc1 k2_merged
    ds_read_b64 v[18:19], v14
    ds_read_b128 v[20:23], v16
    ds_read_b128 v[24:27], v16 offset:16
    ds_read_b128 v[28:31], v16 offset:256
    ds_read_b128 v[32:35], v16 offset:272
    ds_read_b128 v[36:39], v16 offset:768
    ds_read_b128 v[40:43], v16 offset:784
    s_waitcnt lgkmcnt(6)
    v_lshl_add_u32 v19, v19, 9, v17
    k2_mloop:
    v_cmp_lt_u32 vcc, 0, v18
    s_and_b64 exec, exec, vcc
    s_cbranch_execz k2_mdone
    ds_read_b128 v[44:47], v19
    ds_read_b128 v[48:51], v19 offset:16
    ds_read_b128 v[52:55], v19 offset:256
    ds_read_b128 v[56:59], v19 offset:272
    v_subrev_u32 v18, 1, v18
    v_subrev_u32 v19, 512, v19
    s_waitcnt lgkmcnt(0)
    """)
    for k in range(8):
        A(f'v_pk_add_f32 {pr(20+2*k)}, {pr(20+2*k)}, {pr(44+2*k)}')
    A(f"""
    s_branch k2_mloop
    k2_mdone:
    s_mov_b64 exec, -1
    s_waitcnt lgkmcnt(0)
    k2_merged:
    s_cmp_lg_u32 s72, 0
    s_cbranch_scc1 k2_more
    s_cmp_ge_u32 s4, 10
    s_cbranch_scc1 k2_fin
    s_mov_b32 s20, {hex(EPS60)}
    s_mov_b32 s21, {hex(EPS60)}
    """)
    for k in range(4):
        A(f'v_pk_add_f32 {pr(20+2*k)}, {pr(20+2*k)}, s[20:21]')
    for k in range(8):
        A(f'v_rcp_f32 v{20+k}, v{20+k}')
    for k in range(4):
        A(f'v_lshlrev_b32 v{44+k}, 16, v{4+k}')
        A(f'v_and_b32 v{48+k}, 0xffff0000, v{4+k}')
    for k in range(4):
        A(f'v_pk_fma_f32 {pr(28+2*k)}, {pr(28+2*k)}, {pr(20+2*k)}, {pr(36+2*k)}')
    for k in range(8):
        A(f'v_max_f32 v{28+k}, 0, v{28+k}')
    for k in range(4):
        A(f'v_pk_add_f32 {pr(28+2*k)}, {pr(28+2*k)}, {pr(44+2*k)}')
    for k in range(4):
        A(f'v_cvt_pk_bf16_f32 v{20+k}, v{28+k}, v{32+k}')
        A(f'buffer_store_dword v{20+k}, v15, s[52:55], 0 offen offset:{32*k}')
    A('k2_fin:')
    stamp(A, prof, 10)
    if prof:
        A('s_waitcnt vmcnt(0)')
        stamp(A, prof, 11)
        stamp_out(A, prof, 18, 19, 4, 1)
    dbg_end(A, 2)
    A('k2_exit:\ns_endpgm')
    zero_misc = f"""
    v_mov_b32 v74, 0
    v_mov_b32 v75, 0
    v_mov_b32 v76, 0
    v_mov_b32 v77, 0
    v_lshlrev_b32 v78, 4, v0
    v_add_u32 v78, {CNT}, v78
    v_cmp_gt_u32 vcc, {NZ}, v0
    s_and_saveexec_b64 s[20:21], vcc
    ds_write_b128 v78, v[74:77]
    s_mov_b64 exec, s[20:21]
    """
    A(f"""
    k2_more:
    s_waitcnt vmcnt(0)
    s_cmp_ge_u32 s4, 10
    s_cbranch_scc1 k2_more1
    ds_write_b128 v16, v[20:23]
    ds_write_b128 v16, v[24:27] offset:16
    ds_write_b128 v16, v[28:31] offset:256
    ds_write_b128 v16, v[32:35] offset:272
    k2_more1:
    s_waitcnt lgkmcnt(0)
    s_barrier
    """)
    A(zero_misc)
    A(f"""
    s_mul_i32 s20, s75, 12
    v_add_u32 v1, s20, v1
    v_subrev_u32 v2, s75, v2
    s_mov_b32 s7, 0
    s_branch k2_loadrec
    k2_shrink:
    s_barrier
    """)
    A(zero_misc)
    A(f"""
    s_mov_b64 s[{MK+6}:{MK+7}], 0
    s_mov_b32 s75, 24
    s_waitcnt lgkmcnt(0)
    s_barrier
    ds_write_b32 v15, v14 offset:{MISC - CNT}
    s_branch k2_rank
    k2_kernel_end:
    """)
    return A.text(), LDS

KD = '''.amdhsa_kernel {name}
  .amdhsa_next_free_vgpr {vgpr}
  .amdhsa_next_free_sgpr {sgpr}
  .amdhsa_accum_offset {acc}
  .amdhsa_group_segment_fixed_size 0
  .amdhsa_kernarg_size 96
  .amdhsa_user_sgpr_count 2
  .amdhsa_user_sgpr_kernarg_segment_ptr 1
  .amdhsa_system_sgpr_workgroup_id_x 1
  .amdhsa_float_denorm_mode_32 3
  .amdhsa_dx10_clamp 0
.end_amdhsa_kernel'''

def build(prof=False):
    k1, l1 = gen_k1(prof)
    k2, l2 = gen_k2(prof)
    head = open('standalone__edge_featured_mpnn_gatedgcn__graph.s.ref').read().split('\n')
    head = [h for h in head[:14]]
    out = head + [f'; @launch kernel=k1_kernel grid=(256,1,1) block=(640,1,1) lds={l1}',
                  f'; @launch kernel=k2_kernel grid=(256,1,1) block=(1024,1,1) lds={l2}',
                  '.amdgcn_target "amdgcn-amd-amdhsa--gfx950"', '.text']
    for nm, body in (('k1_kernel', k1), ('k2_kernel', k2)):
        out += [f'.globl {nm}', '.p2align 8', f'.type {nm},@function', body]
    out += ['.section .rodata,"a"', '.p2align 6', KD.format(name='k1_kernel', vgpr=128 if prof else 96, sgpr=102 if (prof or 'dbg' in OPT) else 48, acc=128 if prof else 96),
            '.p2align 6', KD.format(name='k2_kernel', vgpr=128 if prof else 116, sgpr=102 if (prof or 'dbg' in OPT) else 90, acc=128 if prof else 116)]
    return '\n'.join(out) + '\n'

if __name__ == '__main__':
    prof = '--prof' in sys.argv
    for a in sys.argv[2:]:
        if a.startswith('-O'): OPT.add(a[2:])
    dst = sys.argv[1]
    open(dst, 'w').write(build(prof))
```

```python
import sys

N = 10000; E = 320000
TABH = 10016 * 256
HDRO = 2 * TABH
RECO = HDRO + 0x10000
CH = 2560
STAMPO = 0x1000000
MAGIC = 214749
NLOG2E = 0xbfb8aa3b
C60 = 0x21800000
EPS60 = 0x538637bd
M60 = 0xc2700000

OPT = set()
class Asm:
    def __init__(self): self.L = []
    def __call__(self, s):
        for x in s.strip('\n').split('\n'): self.L.append('    ' + x.strip() if not x.strip().endswith(':') else x.strip())
    def text(self): return '\n'.join(self.L)

def srd(A, d, lo, hi, size, stride=0):
    A(f's_mov_b32 s{d}, s{lo}')
    if stride:
        A(f's_and_b32 s{d+1}, s{hi}, 0xffff')
        A(f's_or_b32 s{d+1}, s{d+1}, {hex(stride << 16)}')
    else:
        A(f's_mov_b32 s{d+1}, s{hi}')
    A(f's_mov_b32 s{d+2}, {size}')
    A(f's_mov_b32 s{d+3}, 0x00020000')

def srd_off(A, d, lo, hi, off, size, stride=0):
    A(f's_add_u32 s{d}, s{lo}, {off}')
    A(f's_addc_u32 s{d+1}, s{hi}, 0')
    if stride:
        A(f's_and_b32 s{d+1}, s{d+1}, 0xffff')
        A(f's_or_b32 s{d+1}, s{d+1}, {hex(stride << 16)}')
    A(f's_mov_b32 s{d+2}, {size}')
    A(f's_mov_b32 s{d+3}, 0x00020000')

def scan64(A, v):
    for sh in (1, 2, 4, 8):
        A('s_nop 1')
        A(f'v_add_u32_dpp v{v}, v{v}, v{v} row_shr:{sh} row_mask:0xf bank_mask:0xf bound_ctrl:0')
    A('s_nop 1')
    A(f'v_add_u32_dpp v{v}, v{v}, v{v} row_bcast:15 row_mask:0xa bank_mask:0xf')
    A('s_nop 1')
    A(f'v_add_u32_dpp v{v}, v{v}, v{v} row_bcast:31 row_mask:0xc bank_mask:0xf')

def stamp(A, prof, k, sb=90):
    if not prof: return
    A(f's_memtime s[{sb}:{sb+1}]')
    A('s_waitcnt lgkmcnt(0)')
    A(f'v_writelane_b32 v127, s{sb}, {k}')
    if k == 0:
        A(f's_memrealtime s[{sb}:{sb+1}]')
        A('s_waitcnt lgkmcnt(0)')
        A(f'v_writelane_b32 v127, s{sb}, 12')

def stamp_out(A, prof, wslo, wshi, slot_expr_sgpr, kernel_id):
    if not prof: return
    A('s_memrealtime s[90:91]')
    A('s_waitcnt lgkmcnt(0)')
    A('v_writelane_b32 v127, s90, 13')
    A('s_mov_b64 exec, 0xffff')
    A(f's_add_u32 s92, s{wslo}, {STAMPO + kernel_id * 0x80000}')
    A(f's_addc_u32 s93, s{wshi}, 0')
    A('s_mov_b32 s94, 0x80000')
    A('s_mov_b32 s95, 0x00020000')
    A(f's_lshl_b32 s96, s2, 4')
    A(f's_add_u32 s96, s96, s{slot_expr_sgpr}')
    A('s_lshl_b32 s96, s96, 6')
    A('s_getreg_b32 s90, hwreg(HW_REG_HW_ID)')
    A('s_getreg_b32 s91, hwreg(HW_REG_XCC_ID)')
    A('v_writelane_b32 v127, s90, 14')
    A('v_writelane_b32 v127, s91, 15')
    A('v_mbcnt_lo_u32_b32 v126, -1, 0')
    A('v_lshlrev_b32 v126, 2, v126')
    A('buffer_store_dword v127, v126, s[92:95], s96 offen')
    A('s_waitcnt vmcnt(0)')

def dbg_start(A):
    if 'dbg' not in OPT: return
    A('s_memrealtime s[96:97]')
    A('s_load_dwordx2 s[98:99], s[0:1], 80')

def dbg_mid(A, r):
    if 'dbg' not in OPT: return
    A(f's_memrealtime s[{r}:{r+1}]\ns_waitcnt lgkmcnt(0)')

def dbg_end(A, k):
    if 'dbg' not in OPT: return
    A('s_waitcnt vmcnt(0)')
    A('s_memrealtime s[94:95]')
    A('s_waitcnt lgkmcnt(0)')
    A('s_not_b32 s96, s96')
    if k < 2:
        A(f's_lshl_b32 s97, s2, 4\ns_add_u32 s97, s97, s4\ns_lshl_b32 s97, s97, 3\ns_add_u32 s97, s97, {STAMPO}')
        A('s_add_u32 s20, s20, s97\ns_addc_u32 s21, s21, 0')
        A('s_mov_b64 exec, 1')
        A('v_mov_b32 v0, 0\nv_mov_b32 v2, s96\nv_mov_b32 v3, s94')
        A('global_store_dwordx2 v0, v[2:3], s[20:21]\ns_waitcnt vmcnt(0)')
        return
    A('s_cmp_lg_u32 s4, 15\ns_cbranch_scc1 k2_exit')
    A('s_mov_b64 exec, 1')
    A('s_not_b32 s93, s92')
    A('v_mov_b32 v0, 0\nv_mov_b32 v1, s96\nv_mov_b32 v2, s94\nv_mov_b32 v3, s92\nv_mov_b32 v4, s93\nv_mov_b32 v5, s90')
    for q, v in enumerate((1, 2, 3, 4, 5)):
        A(f'global_atomic_umax v0, v{v}, s[98:99] offset:{4*q}')
    A(f's_lshr_b32 s97, s2, 4\ns_lshl_b32 s97, s97, 3\ns_and_b32 s95, s2, 7\ns_or_b32 s97, s97, s95\ns_cmp_ge_u32 s97, 125\ns_cbranch_scc1 k2_exit')
    A(f's_lshl_b32 s97, s2, 7\ns_add_u32 s97, s97, {STAMPO}')
    A('s_add_u32 s18, s18, s97\ns_addc_u32 s19, s19, 0')
    A('s_mov_b64 exec, 0x3ff')
    A('v_mbcnt_lo_u32_b32 v6, -1, 0\nv_lshlrev_b32 v6, 3, v6\nv_mov_b32 v0, 0')
    A('global_load_dwordx2 v[8:9], v6, s[18:19]\ns_waitcnt vmcnt(0)')
    A('s_bfe_u32 s97, s2, 0x10003\ns_lshl_b32 s97, s97, 3\nv_mov_b32 v0, s97')
    A('global_atomic_umax v0, v8, s[98:99] offset:32')
    A('global_atomic_umax v0, v9, s[98:99] offset:36')
    A('s_waitcnt vmcnt(0)')

def prefetch_code(A, nbytes, nthreads, vtmp, label):
    A(f's_getpc_b64 s[88:89]')
    A(f'v_lshlrev_b32 v{vtmp}, 6, v0')
    A(f'v_cmp_gt_u32 vcc, {label}_end - {label} - 64, v{vtmp}')
    A('s_and_saveexec_b64 s[86:87], vcc')
    A(f's_cbranch_execz {label}_pf')
    A(f'global_load_dword v{vtmp+1}, v{vtmp}, s[88:89]')
    A(f'{label}_pf:')
    A('s_mov_b64 exec, s[86:87]')

def gen_k1(prof):
    A = Asm()
    XB = 0; WB = 20480; WV = WB + 32768
    CNT = 30720; STA = CNT + 512
    A('k1_kernel:')
    dbg_start(A)
    stamp(A, prof, 0)
    A('''
    s_lshr_b32 s3, s2, 4
    s_lshl_b32 s3, s3, 3
    s_and_b32 s5, s2, 7
    s_or_b32 s3, s3, s5
    s_cmp_ge_u32 s3, 125
    s_cbranch_scc1 k1_exit
    s_load_dwordx4 s[8:11], s[0:1], 0
    s_load_dwordx4 s[12:15], s[0:1], 16
    s_load_dwordx2 s[16:17], s[0:1], 40
    s_load_dwordx2 s[18:19], s[0:1], 64
    s_load_dwordx2 s[20:21], s[0:1], 88
    v_lshrrev_b32 v1, 6, v0
    v_and_b32 v3, 63, v0
    v_readfirstlane_b32 s4, v1
    s_bitcmp1_b32 s2, 3
    s_cbranch_scc1 k1_gemm
    ''')
    A('''
    v_lshlrev_b32 v1, 4, v0
    v_lshlrev_b32 v2, 5, v0
    s_mul_i32 s5, s3, 10240
    s_mul_i32 s6, s3, 20480
    s_waitcnt lgkmcnt(0)
    ''')
    srd_off(A, 24, 14, 15, 's5', 10240)
    A('buffer_load_dwordx4 v[4:7], v1, s[24:27], 0 offen')
    srd_off(A, 28, 12, 13, 's5', 10240)
    A('buffer_load_dwordx4 v[8:11], v1, s[28:31], 0 offen')
    srd_off(A, 32, 10, 11, 's6', 20480)
    A('buffer_load_dwordx4 v[12:15], v2, s[32:35], 0 offen')
    A('buffer_load_dwordx4 v[16:19], v2, s[32:35], 0 offen offset:16')
    A(f'''
    v_mov_b32 v32, 0
    v_mov_b32 v33, 1
    v_lshlrev_b32 v34, 2, v0
    v_cmp_gt_u32 vcc, 128, v0
    s_and_saveexec_b64 s[6:7], vcc
    ds_write_b32 v34, v32 offset:{CNT}
    s_mov_b64 exec, s[6:7]
    s_mul_i32 s5, s3, {CH*12}
    s_add_u32 s5, s5, {RECO}
    ''')
    srd_off(A, 36, 20, 21, 's5', CH * 12)
    A(f's_lshl_b32 s5, s3, 9\ns_add_u32 s5, s5, {HDRO}')
    srd_off(A, 40, 20, 21, 's5', 512)
    A(f's_mov_b32 s5, {MAGIC}\ns_movk_i32 s6, 625')
    A('s_waitcnt lgkmcnt(0)\ns_barrier')
    stamp(A, prof, 1)
    A('s_waitcnt vmcnt(3)')
    stamp(A, prof, 2)
    for i in range(4):
        A(f'v_mul_u32_u24 v{20+i}, s5, v{4+i}')
    for i in range(4):
        A(f'v_lshrrev_b32 v{20+i}, 24, v{20+i}')
    for i in range(4):
        A(f'v_lshlrev_b32 v{28+i}, 2, v{20+i}')
        A(f'ds_add_rtn_u32 v{24+i}, v{28+i}, v33 offset:{CNT}')
    for i in range(4):
        A(f'v_mad_u32_u24 v{20+i}, v{20+i}, s6, 7')
    for i in range(4):
        A(f'v_lshrrev_b32 v{20+i}, 3, v{20+i}')
    for i in range(4):
        A(f'v_sub_u32 v{4+i}, v{4+i}, v{20+i}')
    A('s_waitcnt vmcnt(2)')
    for i in range(4):
        A(f'v_lshl_or_b32 v{8+i}, v{4+i}, 16, v{8+i}')
    A('s_waitcnt lgkmcnt(0)\ns_barrier')
    stamp(A, prof, 3)
    A(f'''
    s_cmp_lg_u32 s4, 0
    s_cbranch_scc1 k1_noscan
    v_lshlrev_b32 v34, 3, v0
    ds_read_b64 v[36:37], v34 offset:{CNT}
    s_waitcnt lgkmcnt(0)
    v_add_u32 v38, v36, v37
    v_mov_b32 v39, v38
    ''')
    scan64(A, 38)
    A(f'''
    v_sub_u32 v38, v38, v39
    v_add_u32 v39, v38, v36
    ds_write_b64 v34, v[38:39] offset:{STA}
    v_lshl_or_b32 v36, v36, 16, v38
    v_lshl_or_b32 v37, v37, 16, v39
    buffer_store_dwordx2 v[36:37], v34, s[40:43], 0 offen
    s_waitcnt lgkmcnt(0)
    k1_noscan:
    s_barrier
    ''')
    stamp(A, prof, 4)
    for i in range(4):
        A(f'ds_read_b32 v{20+i}, v{28+i} offset:{STA}')
    for i in range(4):
        A(f's_waitcnt lgkmcnt({3-i})')
        A(f'v_add_u32 v{20+i}, v{20+i}, v{24+i}')
        A(f'v_mul_u32_u24 v{20+i}, 12, v{20+i}')
    A('s_waitcnt vmcnt(0)' if False else 's_waitcnt vmcnt(0)')
    for i in range(4):
        A(f'ds_write2_b32 v{20+i}, v{12+2*i}, v{13+2*i} offset0:0 offset1:1')
        A(f'ds_write_b32 v{20+i}, v{8+i} offset:8')
    A('s_waitcnt lgkmcnt(0)\ns_barrier')
    stamp(A, prof, 5)
    for j in range(3):
        A(f'ds_read_b128 v[{4+4*j}:{7+4*j}], v1 offset:{10240*j}')
    A('v_add_u32 v2, 10240, v1\nv_add_u32 v3, 20480, v1')
    for j in range(3):
        A(f's_waitcnt lgkmcnt({2-j})')
        A(f'buffer_store_dwordx4 v[{4+4*j}:{7+4*j}], v{1+j}, s[36:39], 0 offen')
    stamp(A, prof, 6)
    if prof:
        A('s_waitcnt vmcnt(0)')
        stamp(A, prof, 7)
        stamp_out(A, prof, 20, 21, 4, 0)
    dbg_end(A, 0)
    A('s_endpgm')
    A('k1_gemm:')
    A('''
    v_lshrrev_b32 v4, 4, v3
    v_and_b32 v5, 15, v3
    v_xor_b32 v6, v5, v4
    v_lshlrev_b32 v6, 4, v6
    v_lshl_or_b32 v6, v4, 8, v6
    v_lshlrev_b32 v7, 1, v4
    v_xor_b32 v7, v5, v7
    v_lshlrev_b32 v7, 4, v7
    v_lshl_or_b32 v7, v4, 8, v7
    s_mul_i32 s5, s3, 20480
    s_waitcnt lgkmcnt(0)
    ''')
    srd_off(A, 24, 8, 9, 's5', 20480)
    srd(A, 28, 16, 17, 32768)
    srd(A, 32, 18, 19, 32768)
    for j in range(2):
        A(f'''
        s_lshl_b32 s5, s4, 1
        s_add_u32 s5, s5, {j}
        s_and_b32 s6, s5, 3
        s_lshl_b32 s6, s6, 6
        s_lshl_b32 s5, s5, 10
        v_xor_b32 v8, s6, v6
        s_add_u32 m0, s5, {XB}
        s_nop 0
        buffer_load_dwordx4 v8, s[24:27], s5 offen lds
        ''')
    for j in range(4):
        if j == 3:
            A('s_cmp_ge_u32 s4, 2\ns_cbranch_scc1 k1_dmadone')
        A(f'''
        s_add_u32 s5, s4, {10*j}
        s_lshl_b32 s6, s5, 6
        s_and_b32 s6, s6, 128
        s_lshl_b32 s5, s5, 10
        v_xor_b32 v8, s6, v7
        s_add_u32 m0, s5, {WB}
        s_nop 0
        buffer_load_dwordx4 v8, s[28:31], s5 offen lds
        s_add_u32 m0, s5, {WV}
        s_nop 0
        buffer_load_dwordx4 v8, s[32:35], s5 offen lds
        ''')
    A('k1_dmadone:')
    A(f'''
    s_lshr_b32 s5, s4, 1
    s_and_b32 s6, s4, 1
    s_lshl_b32 s7, s5, 12
    v_xor_b32 v8, v4, v5
    v_lshlrev_b32 v8, 4, v8
    v_lshl_or_b32 v8, v5, 8, v8
    v_add_u32 v8, s7, v8
    v_xor_b32 v9, 64, v8
    v_xor_b32 v10, 128, v8
    v_xor_b32 v11, 192, v8
    v_bfe_u32 v12, v3, 2, 2
    v_and_b32 v13, 1, v4
    v_lshl_or_b32 v13, v13, 2, v12
    v_lshlrev_b32 v13, 5, v13
    v_lshl_add_u32 v12, v4, 3, v12
    v_lshl_or_b32 v13, v12, 8, v13
    v_and_b32 v12, 3, v3
    v_lshl_or_b32 v13, v12, 3, v13
    v_add_u32 v13, {WB}, v13
    s_lshl_b32 s7, s6, 7
    v_xor_b32 v12, s7, v13
    v_xor_b32 v13, 32, v12
    v_xor_b32 v14, 64, v12
    v_xor_b32 v15, 96, v12
    s_mul_i32 s7, s6, {TABH}
    s_mul_i32 s22, s3, 20480
    s_add_u32 s7, s7, s22
    s_lshl_b32 s22, s5, 12
    s_add_u32 s7, s7, s22
    ''')
    srd_off(A, 36, 20, 21, 's7', 4096)
    A(f'''
    v_lshlrev_b32 v6, 10, v4
    v_lshl_or_b32 v6, v5, 4, v6
    s_mov_b32 s22, {hex(NLOG2E)}
    s_mov_b32 s23, {hex(NLOG2E)}
    s_waitcnt vmcnt(0)
    s_barrier
    ''')
    stamp(A, prof, 2)
    XF = 16
    WF = 32
    AC = 64
    for s in range(4):
        A(f'ds_read_b128 v[{XF+4*s}:{XF+4*s+3}], v{8+s} offset:{XB}')
    steps = [(s, m, c) for s in range(4) for m in range(2) for c in range(4)]
    PD = 4
    def rd(i):
        s, m, c = steps[i]; b = WF + 4 * (i % 8)
        for u in range(2):
            A(f'ds_read_b64_tr_b16 v[{b+2*u}:{b+2*u+1}], v{12+c} offset:{m*32768 + (32*s+4*u)*256}')
    for i in range(PD): rd(i)
    for i in range(32):
        s, m, c = steps[i]; b = WF + 4 * (i % 8)
        if i + PD < 32:
            rd(i + PD); A(f's_waitcnt lgkmcnt({2*PD})')
        else:
            A(f's_waitcnt lgkmcnt({2*(31-i)})')
        acc = AC + 16 * m + 4 * c
        cin = '0' if s == 0 else f'v[{acc}:{acc+3}]'
        A(f'v_mfma_f32_16x16x32_bf16 v[{acc}:{acc+3}], v[{XF+4*s}:{XF+4*s+3}], v[{b}:{b+3}], {cin}')
    stamp(A, prof, 3)
    A('s_nop 3')
    for c in range(4):
        for u in range(2):
            A(f'v_pk_mul_f32 v[{AC+4*c+2*u}:{AC+4*c+2*u+1}], v[{AC+4*c+2*u}:{AC+4*c+2*u+1}], s[22:23]')
    for i in range(4):
        o = 16 + 4 * i
        A(f'v_cvt_pk_bf16_f32 v{o}, v{AC+i}, v{AC+4+i}')
        A(f'v_cvt_pk_bf16_f32 v{o+1}, v{AC+8+i}, v{AC+12+i}')
        A(f'v_cvt_pk_bf16_f32 v{o+2}, v{AC+16+i}, v{AC+20+i}')
        A(f'v_cvt_pk_bf16_f32 v{o+3}, v{AC+24+i}, v{AC+28+i}')
        A(f'buffer_store_dwordx4 v[{o}:{o+3}], v6, s[36:39], 0 offen offset:{256*i}')
    A(f'''
    s_or_b32 s5, s5, s3
    s_cmp_lg_u32 s5, 0
    s_cbranch_scc1 k1_nonull
    s_mul_i32 s7, s6, {TABH}
    s_add_u32 s7, s7, {N*256}
    ''')
    srd_off(A, 40, 20, 21, 's7', 256)
    A('''
    v_mov_b32 v32, 0x7f7f7f7f
    v_mov_b32 v33, 0x7f7f7f7f
    v_mov_b32 v34, 0
    v_mov_b32 v35, 0
    v_lshlrev_b32 v7, 4, v3
    buffer_store_dwordx4 v[32:35], v7, s[40:43], 0 offen
    k1_nonull:
    ''')
    stamp(A, prof, 6)
    if prof:
        A('s_waitcnt vmcnt(0)')
        stamp(A, prof, 7)
        stamp_out(A, prof, 20, 21, 4, 0)
    dbg_end(A, 1)
    A('k1_exit:')
    A('s_endpgm')
    A('k1_kernel_end:')
    return A.text(), 86016

def gen_k2(prof):
    A = Asm()
    HEAD = 81920
    XB = HEAD; WA = XB + 20480; WU = WA + 16384
    EL = HEAD + 32768; CAPR = 3904; PL = EL + CAPR * 8
    CAPT = CAPR - 16
    CNT = PL + CAPR * 4; STA = CNT + 512; HIN = STA + 512; MISC = HIN + 640; ZER = MISC + 16
    NZ = (ZER + 96 - CNT) // 16
    LDS = ZER + 96
    assert LDS <= 163840 and WU + 16384 <= CNT
    RC = 42
    R_ = 6
    MK = 60
    def pr(a): return f'v[{a}:{a+1}]'
    WC = WU + 16384
    assert WC + 512 <= CNT
    PF = 0 if 'nopf' in OPT else int(([o[2:] for o in OPT if o.startswith('pf')] + ['14'])[0])
    A('k2_kernel:')
    dbg_start(A)
    stamp(A, prof, 0)
    A("""
    s_cmp_ge_u32 s2, 256
    s_cbranch_scc1 k2_exit
    s_load_dwordx2 s[18:19], s[0:1], 88
    s_load_dwordx2 s[8:9], s[0:1], 0
    s_load_dwordx2 s[10:11], s[0:1], 32
    s_load_dwordx4 s[12:15], s[0:1], 48
    s_load_dwordx2 s[16:17], s[0:1], 72
    v_lshrrev_b32 v1, 6, v0
    v_and_b32 v3, 63, v0
    v_readfirstlane_b32 s4, v1
    s_bfe_u32 s3, s2, 0x20001
    s_lshl_b32 s3, s3, 5
    s_lshr_b32 s78, s2, 3
    s_add_u32 s3, s3, s78
    s_and_b32 s5, s2, 1
    s_mul_i32 s6, s3, 625
    s_add_u32 s7, s6, 632
    s_add_u32 s6, s6, 7
    s_lshr_b32 s6, s6, 3
    s_lshr_b32 s7, s7, 3
    s_sub_u32 s7, s7, s6
    v_lshrrev_b32 v1, 3, v0
    v_lshlrev_b32 v2, 9, v1
    s_lshl_b32 s20, s3, 2
    v_lshrrev_b32 v66, 4, v3
    v_and_b32 v67, 15, v3
    v_xor_b32 v68, v67, v66
    v_lshlrev_b32 v68, 4, v68
    v_lshl_or_b32 v68, v66, 8, v68
    s_and_b32 s21, s4, 3
    s_lshl_b32 s21, s21, 6
    v_xor_b32 v68, s21, v68
    v_lshrrev_b32 v69, 3, v3
    v_and_b32 v70, 7, v3
    v_lshlrev_b32 v73, 4, v70
    v_lshl_or_b32 v73, v69, 8, v73
    v_and_b32 v71, 2, v69
    v_xor_b32 v70, v70, v71
    v_lshlrev_b32 v70, 4, v70
    v_lshl_or_b32 v70, v69, 8, v70
    s_and_b32 s21, s4, 1
    s_lshl_b32 s21, s21, 6
    v_xor_b32 v70, s21, v70
    s_waitcnt lgkmcnt(0)
    """)
    srd_off(A, 24, 18, 19, HDRO, 125 * 512)
    A('buffer_load_dword v2, v2, s[24:27], s20 offen')
    A('s_lshl_b32 s20, s6, 8')
    A(f's_sub_u32 s21, {N*256}, s20')
    srd_off(A, 28, 8, 9, 's20', 's21')
    A('s_lshl_b32 s22, s5, 7\ns_sub_u32 s23, 32768, s22')
    srd_off(A, 32, 10, 11, 's22', 's23')
    srd_off(A, 36, 14, 15, 's22', 's23')
    A('s_sub_u32 s23, 1024, s22')
    srd_off(A, 40, 12, 13, 's22', 's23')
    if 'nohb' not in OPT: A('s_barrier')
    A(f"""
    s_lshl_b32 s20, s4, 10
    s_lshl_b32 s21, s4, 11
    s_add_u32 m0, s20, {WA}
    s_nop 0
    buffer_load_dwordx4 v70, s[32:35], s21 offen lds
    s_add_u32 m0, s20, {WU}
    s_nop 0
    buffer_load_dwordx4 v70, s[36:39], s21 offen lds
    s_add_u32 m0, s20, {XB}
    s_nop 0
    buffer_load_dwordx4 v68, s[28:31], s20 offen lds
    s_cmp_ge_u32 s4, 5
    s_cbranch_scc1 k2_nox2
    s_cmp_eq_u32 s4, 4
    s_cbranch_scc1 k2_wc
    s_add_u32 s20, s20, 16384
    s_add_u32 m0, s20, {XB}
    s_nop 0
    buffer_load_dwordx4 v68, s[28:31], s20 offen lds
    s_branch k2_nox2
    k2_wc:
    s_mov_b32 m0, {WC}
    s_mov_b32 exec_hi, 0
    buffer_load_dwordx4 v73, s[40:43], 0 offen lds
    s_mov_b64 exec, -1
    k2_nox2:
    """)
    A(f"""
    v_mov_b32 v74, 0
    v_mov_b32 v75, 0
    v_mov_b32 v76, 0
    v_mov_b32 v77, 0
    v_and_b32 v72, 7, v0
    v_lshrrev_b32 v78, 5, v0
    v_and_b32 v79, 31, v0
    v_lshlrev_b32 v79, 4, v79
    v_lshl_or_b32 v78, v78, 10, v79
    ds_write_b128 v78, v[74:77]
    ds_write_b128 v78, v[74:77] offset:32768
    s_cmp_ge_u32 s4, 8
    s_cbranch_scc1 k2_noz
    v_add_u32 v78, 0x10000, v78
    ds_write_b128 v78, v[74:77]
    k2_noz:
    v_lshlrev_b32 v78, 4, v0
    v_add_u32 v78, {CNT}, v78
    v_cmp_gt_u32 vcc, {NZ}, v0
    s_and_saveexec_b64 s[20:21], vcc
    ds_write_b128 v78, v[74:77]
    s_mov_b64 exec, s[20:21]
    """)
    srd_off(A, 44, 18, 19, RECO, 125 * CH * 12)
    A(f's_mul_i32 s20, s5, {TABH}')
    srd_off(A, 48, 18, 19, 's20', N + 1, stride=(1 if 'row0' in OPT else 256))
    A('s_lshl_b32 s20, s6, 8\ns_add_u32 s20, s20, s22\ns_lshl_b32 s21, s7, 8\ns_sub_u32 s21, s21, s22')
    srd_off(A, 52, 16, 17, 's20', 's21')
    A(f"""
    v_and_b32 v78, 1, v3
    v_lshlrev_b32 v78, 4, v78
    v_mov_b32 v79, 0x3f80
    v_lshlrev_b32 v79, v78, v79
    v_and_b32 v78, 2, v3
    v_cmp_eq_u32 vcc, 0, v78
    v_mul_u32_u24 v1, {CH*12}, v1
    s_mov_b32 s56, {hex(C60)}
    v_cndmask_b32 v12, 0, v79, vcc
    v_cndmask_b32 v13, v79, v74, vcc
    s_mov_b32 s57, {hex(C60)}
    s_mov_b32 s58, 0x22221111
    s_mov_b32 s59, 0x88884444
    """)
    if PF:
        A(f"""
        s_mul_i32 s20, s78, 313
        s_mul_i32 s21, s4, {PF // 2}
        s_add_u32 s20, s20, s21
        v_lshrrev_b32 v10, 1, v3
        v_add_u32 v10, s20, v10
        v_and_b32 v11, 1, v3
        v_lshlrev_b32 v11, 7, v11
        s_mov_b32 s80, {hex(((1 << PF) - 1) & 0xffffffff)}
        s_mov_b32 s81, {hex(((1 << PF) - 1) >> 32)}
        """)
    A('s_waitcnt vmcnt(3)')
    stamp(A, prof, 1)
    A(f"""
    v_and_b32 v78, 0xffff, v2
    v_add_u32 v78, v78, v72
    v_mad_u32_u24 v1, v78, 12, v1
    v_lshrrev_b32 v2, 16, v2
    v_sub_u32 v2, v2, v72
    """)
    A('k2_loadrec:')
    A(f's_mov_b32 s75, {8*R_}')
    for r in range(R_):
        A(f'v_cmp_lt_i32 s[{MK+2*r}:{MK+2*r+1}], {8*r}, v2')
    for r in range(R_):
        A(f's_mov_b64 exec, s[{MK+2*r}:{MK+2*r+1}]')
        A(f's_cbranch_execz k2_ld{r}')
        A(f'buffer_load_dwordx3 v[{RC+4*r}:{RC+4*r+2}], v1, s[44:47], 0 offen offset:{96*r}')
    A(f's_waitcnt vmcnt({R_})\ns_branch k2_lddone')
    for r in range(R_):
        A(f'k2_ld{r}:\ns_waitcnt vmcnt({r})')
        if r < R_ - 1: A('s_branch k2_lddone')
    A('k2_lddone:')
    if PF:
        A('s_mov_b64 exec, s[80:81]\nbuffer_load_dword v114, v[10:11], s[48:51], 0 idxen offen')
    A('s_mov_b64 exec, -1')
    A('s_waitcnt lgkmcnt(0)\ns_barrier')
    stamp(A, prof, 2)
    A('s_cmp_eq_u32 s7, 0\ns_cbranch_scc1 k2_gemmdone')
    A(f"""
    v_lshlrev_b32 v18, 1, v3
    v_add_u32 v18, {WC}, v18
    s_mov_b32 s20, {hex(NLOG2E)}
    ds_read_u16 v14, v18
    ds_read_u16 v15, v18 offset:128
    ds_read_u16 v16, v18 offset:256
    ds_read_u16 v17, v18 offset:384
    v_lshrrev_b32 v18, 3, v0
    v_bfe_u32 v19, v0, 2, 1
    v_lshl_or_b32 v19, s5, 3, v19
    v_xor_b32 v19, v19, v18
    v_and_b32 v19, 15, v19
    v_lshlrev_b32 v19, 4, v19
    v_lshl_or_b32 v19, v18, 8, v19
    v_and_b32 v18, 3, v0
    v_lshl_or_b32 v19, v18, 2, v19
    v_add_u32 v19, {XB}, v19
    v_xor_b32 v20, 32, v19
    v_xor_b32 v22, 64, v19
    v_xor_b32 v23, 96, v19
    s_waitcnt lgkmcnt(0)
    """)
    for k in range(4):
        A(f'v_lshlrev_b32 v{14+k}, 16, v{14+k}')
    for k in range(4):
        A(f'v_mul_f32 v{14+k}, s20, v{14+k}')
    A('v_cvt_pk_bf16_f32 v8, v14, v15\nv_cvt_pk_bf16_f32 v9, v16, v17')
    XF = 66; WF = 82; AC = 26
    A(f"""
    s_cmp_ge_u32 s4, 10
    s_cbranch_scc1 k2_gemmdone
    ds_read_b32 v4, v19
    ds_read_b32 v5, v20
    ds_read_b32 v6, v22
    ds_read_b32 v7, v23
    s_lshr_b32 s22, s4, 1
    s_and_b32 s21, s4, 1
    v_lshrrev_b32 v22, 4, v3
    v_and_b32 v23, 15, v3
    s_lshl_b32 s23, s22, 12
    s_add_u32 s23, s23, {XB}
    v_xor_b32 v18, v22, v23
    v_lshlrev_b32 v18, 4, v18
    v_lshl_or_b32 v18, v23, 8, v18
    v_add_u32 v18, s23, v18
    v_xor_b32 v19, 64, v18
    v_xor_b32 v20, 128, v18
    v_xor_b32 v21, 192, v18
    """)
    for s in range(4):
        A(f'ds_read_b128 v[{XF+4*s}:{XF+4*s+3}], v{18+s}')
    A('s_waitcnt lgkmcnt(4)')
    A(f"""
    v_bfe_u32 v24, v3, 2, 2
    v_lshl_add_u32 v14, v22, 3, v24
    v_lshlrev_b32 v14, 7, v14
    v_lshrrev_b32 v24, 1, v24
    v_and_b32 v25, 1, v22
    v_lshl_or_b32 v24, v25, 1, v24
    v_lshl_or_b32 v14, v24, 5, v14
    v_and_b32 v24, 3, v3
    v_lshl_or_b32 v14, v24, 3, v14
    s_lshl_b32 s23, s21, 14
    s_add_u32 s23, s23, {WA}
    v_add_u32 v14, s23, v14
    v_xor_b32 v15, 32, v14
    v_xor_b32 v16, 64, v14
    v_xor_b32 v17, 96, v14
    """)
    steps = [(s, c) for s in range(4) for c in range(4)]
    PD = 4
    def rd(i):
        s, c = steps[i]; b = WF + 4 * (i % 8)
        for u in range(2):
            A(f'ds_read_b64_tr_b16 v[{b+2*u}:{b+2*u+1}], v{14+c} offset:{(32*s+4*u)*128}')
    for i in range(PD): rd(i)
    A(f"""
    s_lshl_b32 s23, s22, 14
    s_lshl_b32 s22, s21, 8
    s_add_u32 s23, s23, s22
    s_add_u32 s23, s23, 512
    v_lshlrev_b32 v18, 12, v22
    v_lshl_or_b32 v18, v23, 4, v18
    v_add_u32 v18, s23, v18
    s_cmp_eq_u32 s21, 0
    s_cselect_b32 s20, s20, 1.0
    s_cselect_b32 s21, {hex(M60)}, 0
    v_mov_b32 v19, s21
    """)
    for i in range(16):
        s, c = steps[i]; b = WF + 4 * (i % 8)
        if i + PD < 16:
            rd(i + PD); A(f's_waitcnt lgkmcnt({2*PD})')
        else:
            A(f's_waitcnt lgkmcnt({2*(15-i)})')
        acc = AC + 4 * c
        cin = '0' if s == 0 else f'v[{acc}:{acc+3}]'
        A(f'v_mfma_f32_16x16x32_bf16 v[{acc}:{acc+3}], v[{XF+4*s}:{XF+4*s+3}], v[{b}:{b+3}], {cin}')
    A('s_nop 7')
    for i in range(4):
        for c in range(4):
            A(f'v_fma_f32 v{XF+4*i+c}, v{AC+4*c+i}, s20, v19')
        A(f'ds_write_b128 v18, v[{XF+4*i}:{XF+4*i+3}] offset:{i*1024}')
    A('k2_gemmdone:')
    stamp(A, prof, 3)
    A(f'v_mov_b32 v14, 1\nv_mov_b32 v15, {CNT}\ns_waitcnt vmcnt({1 if PF else 0})')
    stamp(A, prof, 4)
    A('k2_rank:')
    for r in range(R_):
        A(f's_mov_b64 exec, s[{MK+2*r}:{MK+2*r+1}]')
        A(f's_cbranch_execz k2_rankdone')
        A(f'v_lshrrev_b32 v{66+r}, 14, v{RC+4*r+2}')
        A(f'v_add_u32 v{66+r}, v15, v{66+r}')
        A(f'ds_add_rtn_u32 v{RC+4*r+3}, v{66+r}, v14')
    A(f"""
    v_cmp_lt_i32 vcc, {8*R_}, v2
    s_and_b64 exec, exec, vcc
    s_cbranch_execz k2_rankdone
    ds_write_b32 v15, v14 offset:{MISC - CNT}
    k2_rankdone:
    s_mov_b64 exec, -1
    s_waitcnt lgkmcnt(0)
    s_barrier
    """)
    stamp(A, prof, 5)
    A(f"""
    s_cmp_lg_u32 s4, 0
    s_cbranch_scc1 k2_noscan
    v_lshl_add_u32 v16, v3, 3, v15
    ds_read_b64 v[18:19], v16
    s_waitcnt lgkmcnt(0)
    v_add_u32 v18, 1, v18
    v_add_u32 v19, 1, v19
    v_and_b32 v18, -2, v18
    v_and_b32 v19, -2, v19
    v_add_u32 v20, v18, v19
    v_mov_b32 v21, v20
    """)
    scan64(A, 20)
    A(f"""
    v_sub_u32 v20, v20, v21
    v_add_u32 v21, v20, v18
    ds_write_b64 v16, v[20:21] offset:{STA - CNT}
    s_waitcnt lgkmcnt(0)
    k2_noscan:
    s_barrier
    """)
    stamp(A, prof, 6)
    A(f"""
    ds_read_b32 v16, v15 offset:{STA - CNT + 4*100}
    ds_read_b32 v17, v15 offset:{MISC - CNT}
    """)
    for r in range(R_):
        A(f's_mov_b64 exec, s[{MK+2*r}:{MK+2*r+1}]')
        A(f's_cbranch_execz k2_st')
        A(f'ds_read_b32 v{72+r}, v{66+r} offset:{STA - CNT}')
    A(f"""
    k2_st:
    s_mov_b64 exec, -1
    v_lshl_add_u32 v18, v0, 2, v15
    s_cmp_ge_u32 s4, 2
    s_cbranch_scc1 k2_nopad0
    ds_read_b32 v19, v18
    ds_read_b32 v20, v18 offset:{STA - CNT}
    k2_nopad0:
    s_mov_b32 s20, {EL}
    s_mov_b32 s21, {PL}
    s_waitcnt lgkmcnt(0)
    v_readfirstlane_b32 s22, v16
    v_readfirstlane_b32 s72, v17
    s_cmp_gt_u32 s22, {CAPT}
    s_cbranch_scc1 k2_shrink
    s_cmp_ge_u32 s4, 2
    s_cbranch_scc1 k2_nopad
    v_subrev_u32 v21, 80, v0
    v_cmp_gt_u32 vcc, 80, v0
    v_mov_b32 v22, 0
    v_mov_b32 v23, 0
    v_min_u32 v24, 79, v0
    v_lshlrev_b32 v24, 16, v24
    v_or_b32 v24, {N}, v24
    v_cndmask_b32 v25, v21, v19, vcc
    v_add_u32 v20, v20, v25
    v_and_b32 v19, 1, v19
    v_cmp_eq_u32 vcc, 1, v19
    v_cmp_gt_u32 s[76:77], 8, v21
    s_or_b64 exec, vcc, s[76:77]
    s_cbranch_execz k2_nopad
    v_lshl_add_u32 v25, v20, 3, s20
    v_lshl_add_u32 v20, v20, 2, s21
    ds_write_b64 v25, v[22:23]
    ds_write_b32 v20, v24
    k2_nopad:
    """)
    for r in range(R_):
        A(f's_mov_b64 exec, s[{MK+2*r}:{MK+2*r+1}]')
        A(f's_cbranch_execz k2_scat')
        A(f'v_add_u32 v{72+r}, v{72+r}, v{RC+4*r+3}')
        A(f'v_lshl_add_u32 v{66+r}, v{72+r}, 3, s20')
        A(f'v_lshl_add_u32 v{72+r}, v{72+r}, 2, s21')
        A(f'ds_write_b64 v{66+r}, v[{RC+4*r}:{RC+4*r+1}]')
        A(f'ds_write_b32 v{72+r}, v{RC+4*r+2}')
    A(f"""
    k2_scat:
    s_mov_b64 exec, -1
    v_lshrrev_b32 v16, 4, v3
    v_bfe_u32 v17, v3, 2, 2
    s_add_u32 s22, s22, 6
    s_lshr_b32 s22, s22, 3
    s_lshr_b32 s23, s22, 4
    s_and_b32 s22, s22, 15
    s_mul_i32 s73, s23, s4
    s_min_u32 s74, s4, s22
    s_add_u32 s73, s73, s74
    s_cmp_lt_u32 s4, s22
    s_addc_u32 s23, s23, 0
    s_lshl_b32 s73, s73, 2
    v_mov_b32 v18, s73
    v_mad_u32_u24 v14, v16, s23, v18
    v_mad_u32_u24 v17, v17, s23, v18
    v_lshl_add_u32 v14, v14, 3, s21
    v_lshl_add_u32 v15, v17, 4, s20
    v_and_b32 v19, 15, v3
    v_lshlrev_b32 v23, 4, v19
    v_mov_b32 v25, v23
    s_lshl_b32 s74, s4, 2
    v_add_u32 v21, s74, v16
    v_lshl_add_u32 v18, v21, 9, v23
    v_add_u32 v18, {HEAD}, v18
    v_add_u32 v21, 1, v21
    v_mov_b32 v20, 1
    v_mov_b32 v26, {ZER}
    v_mov_b32 v10, 32
    v_cndmask_b32 v15, v26, v15, s[58:59]
    v_cndmask_b32 v11, 0, 64, s[58:59]
    v_mov_b64 v[34:35], 0
    v_mov_b64 v[36:37], 0
    v_mov_b64 v[38:39], 0
    v_mov_b64 v[40:41], 0
    s_mov_b32 s76, 0x00010001
    s_mov_b32 s77, 0x00010001
    s_mov_b64 s[82:83], 0
    s_mov_b64 s[84:85], 0
    """)
    TP = 50
    for k in range(8):
        A(f'v_mov_b32 v{TP+2*k+1}, v23')
    A('s_waitcnt lgkmcnt(0)\ns_barrier')
    stamp(A, prof, 7)
    dbg_mid(A, 92)
    RB = 70; DD = [42, 102]; ND = [16, 17, 19, 110]; MS = [82, 84]
    Ha = 50; Hb = 54; P = 58; Sg = 62; Q = 66; DEN = 34; NUM = 38
    def y1(d): return f'v_mfma_f32_16x16x16_bf16 v[{d}:{d+3}], v[26:27], v[8:9], v[30:33]'
    def y2(d): return f'v_mfma_f32_16x16x16_bf16 v[{d+4}:{d+7}], v[28:29], v[8:9], v[30:33]'
    def y3(d, r): return f'v_mfma_f32_4x4x4_16b_bf16 v[{d}:{d+3}], v[12:13], v[{r}:{r+1}], v[{d}:{d+3}]'
    def y4(d, r): return f'v_mfma_f32_4x4x4_16b_bf16 v[{d+4}:{d+7}], v[12:13], v[{r+4}:{r+5}], v[{d+4}:{d+7}]'
    A('s_sub_u32 s23, s23, 1\ns_cbranch_scc1 k2_loopdone')
    for k in range(8):
        A(f'ds_read_u16 v{TP+2*k}, v14 offset:{4*k}')
    A(f"""
    ds_read_u16 v{ND[0]}, v14 offset:2
    ds_read_b128 v[26:29], v15
    ds_read_u16 v{ND[1]}, v14 offset:10
    ds_read_u16 v{ND[2]}, v14 offset:18
    ds_read_u16 v22, v14 offset:32
    ds_read_u16 v24, v14 offset:36
    """)
    for k in range(4):
        A(f's_waitcnt lgkmcnt({12-2*k})')
        A(f'buffer_load_dwordx4 v[{RB+8*k}:{RB+8*k+3}], v[{TP+4*k}:{TP+4*k+1}], s[48:51], 0 idxen offen')
        A(f'buffer_load_dwordx4 v[{RB+8*k+4}:{RB+8*k+7}], v[{TP+4*k+2}:{TP+4*k+3}], s[48:51], 0 idxen offen')
    A(f"""
    s_waitcnt lgkmcnt(5)
    v_lshl_add_u32 v58, v{ND[0]}, 10, v23
    ds_read_b128 v[30:33], v58 offset:512
    v_lshlrev_b32 v58, 3, v{ND[0]}
    v_add_u32 v58, {HIN}, v58
    s_mov_b64 exec, s[76:77]
    ds_add_u32 v58, v20
    ds_max_u32 v58, v21 offset:4
    s_mov_b64 exec, -1
    s_waitcnt lgkmcnt(2)
    {y1(DD[0])}
    v_cmp_ne_u32 s[{MS[0]}:{MS[0]+1}], v{ND[0]}, v{ND[1]}
    v_lshl_add_u32 v58, v{ND[1]}, 10, v23
    {y2(DD[0])}
    ds_read_b128 v[26:29], v15 offset:16
    ds_read_b128 v[30:33], v58 offset:512
    s_waitcnt vmcnt(6)
    s_nop 2
    {y3(DD[0], RB)}
    {y4(DD[0], RB)}
    s_waitcnt lgkmcnt(0)
    s_nop 1
    k2_loop:
    """)
    for u in range(4):
        D = DD[u & 1]; Dn = DD[(u + 1) & 1]; Da = D; Db = D + 4
        Rc = RB + 8 * u; Rn = RB + 8 * ((u + 1) % 4)
        g0 = 's_nop 0' if 'nogather' in OPT else f'buffer_load_dwordx4 v[{Rc}:{Rc+3}], v[22:23], s[48:51], 0 idxen offen'
        g1 = 's_nop 0' if 'nogather' in OPT else f'buffer_load_dwordx4 v[{Rc+4}:{Rc+7}], v[24:25], s[48:51], 0 idxen offen'
        e = [f'v_exp_f32_e64 v{D+i}, v{D+i} clamp' for i in range(8)]
        if 'noprio' not in OPT: A(f's_setprio {3-u}')
        A(f"""
        v_mfma_f32_4x4x4_16b_bf16 v[{Ha}:{Ha+3}], v[12:13], v[{Rc+2}:{Rc+3}], 0
        {e[0]}
        v_mfma_f32_4x4x4_16b_bf16 v[{Hb}:{Hb+3}], v[12:13], v[{Rc+6}:{Rc+7}], 0
        {e[1]}
        {y1(Dn)}
        {e[2]}
        {g0}
        {e[3]}
        {g1}
        {e[4]}
        {y2(Dn)}
        {e[5]}
        ds_read_b128 v[26:29], v15 offset:{(u+2)*16}
        ds_read_u16 v22, v14 offset:{(u+5)*8}
        {e[6]}
        ds_read_u16 v24, v14 offset:{(u+5)*8+4}
        ds_read_u16 v{ND[(u+3)%4]}, v14 offset:{(u+3)*8+2}
        v_cmp_ne_u32 vcc, v{ND[(u+1)%4]}, v{ND[(u+2)%4]}
        {e[7]}
        {'s_nop 0' if 'noev' in OPT else f's_cbranch_vccnz k2_eva{u}'}
        k2_bka{u}:
        v_pk_add_f32 {pr(Da)}, {pr(Da)}, s[56:57]
        v_pk_add_f32 {pr(Db)}, {pr(Db)}, s[56:57]
        v_pk_add_f32 {pr(Da+2)}, {pr(Da+2)}, s[56:57]
        v_pk_add_f32 {pr(Db+2)}, {pr(Db+2)}, s[56:57]
        v_pk_mul_f32 {pr(P)}, {pr(Da)}, {pr(Db)}
        v_pk_mul_f32 {pr(P+2)}, {pr(Da+2)}, {pr(Db+2)}
        v_pk_mul_f32 {pr(Q)}, {pr(Db)}, {pr(Ha)}
        s_waitcnt vmcnt(6) lgkmcnt(4)
        {y3(Dn, Rn)}
        v_rcp_f32 v{P}, v{P}
        {y4(Dn, Rn)}
        v_rcp_f32 v{P+1}, v{P+1}
        v_rcp_f32 v{P+2}, v{P+2}
        v_rcp_f32 v{P+3}, v{P+3}
        v_pk_mul_f32 {pr(Q+2)}, {pr(Db+2)}, {pr(Ha+2)}
        v_pk_add_f32 {pr(Sg)}, {pr(Da)}, {pr(Db)}
        v_pk_add_f32 {pr(Sg+2)}, {pr(Da+2)}, {pr(Db+2)}
        v_pk_fma_f32 {pr(Q)}, {pr(Da)}, {pr(Hb)}, {pr(Q)}
        v_pk_fma_f32 {pr(Q+2)}, {pr(Da+2)}, {pr(Hb+2)}, {pr(Q+2)}
        """)
        if u == 3:
            A('v_lshl_add_u64 v[14:15], v[14:15], 0, v[10:11]')
        A(f"""
        v_pk_fma_f32 {pr(DEN)}, {pr(Sg)}, {pr(P)}, {pr(DEN)}
        v_pk_fma_f32 {pr(DEN+2)}, {pr(Sg+2)}, {pr(P+2)}, {pr(DEN+2)}
        v_pk_fma_f32 {pr(NUM)}, {pr(Q)}, {pr(P)}, {pr(NUM)}
        v_pk_fma_f32 {pr(NUM+2)}, {pr(Q+2)}, {pr(P+2)}, {pr(NUM+2)}
        s_sub_u32 s23, s23, 1
        s_cbranch_scc1 k2_flush
        s_waitcnt lgkmcnt(0)
        s_cmp_lg_u64 s[{MS[u&1]}:{MS[u&1]+1}], 0
        """)
        if u == 3:
            A('s_cbranch_scc0 k2_loop')
        else:
            A(f's_cbranch_scc1 k2_evb{u}\nk2_bkb{u}:')
    for u in (3, 0, 1, 2):
        m = MS[u & 1]
        A(f"""
        k2_evb{u}:
        s_mov_b64 exec, s[{m}:{m+1}]
        ds_write_b128 v18, v[34:37]
        ds_write_b128 v18, v[38:41] offset:256
        v_lshl_add_u32 v18, v{ND[(u+1)%4]}, 10, v23
        s_mov_b64 s[{m}:{m+1}], 0
        ds_read_b128 v[34:37], v18
        ds_read_b128 v[38:41], v18 offset:256
        s_mov_b64 exec, -1
        s_branch {'k2_loop' if u == 3 else f'k2_bkb{u}'}
        """)
    for u in range(4):
        m = MS[(u + 1) & 1]
        A(f"""
        k2_eva{u}:
        s_mov_b64 exec, vcc
        v_lshl_add_u32 v111, v{ND[(u+2)%4]}, 10, v23
        s_mov_b64 s[{m}:{m+1}], vcc
        ds_read_b128 v[30:33], v111 offset:512
        s_mov_b64 exec, -1
        s_branch k2_bka{u}
        """)
    A("""
    k2_flush:
    s_setprio 0
    ds_write_b128 v18, v[34:37]
    ds_write_b128 v18, v[38:41] offset:256
    k2_loopdone:
    """)
    stamp(A, prof, 8)
    A(f"""
    v_lshrrev_b32 v14, 3, v0
    v_and_b32 v15, 7, v0
    v_lshlrev_b32 v17, 5, v15
    v_lshl_or_b32 v16, v14, 10, v17
    v_lshlrev_b32 v15, 2, v15
    v_lshl_or_b32 v15, v14, 8, v15
    v_lshlrev_b32 v14, 3, v14
    v_add_u32 v14, {HIN}, v14
    v_add_u32 v17, {HEAD - 512}, v17
    s_waitcnt lgkmcnt(0)
    s_barrier
    """)
    stamp(A, prof, 9)
    dbg_mid(A, 90)
    A(f"""
    s_cmp_ge_u32 s4, 10
    s_cbranch_scc1 k2_merged
    ds_read_b64 v[18:19], v14
    ds_read_b128 v[20:23], v16
    ds_read_b128 v[24:27], v16 offset:16
    ds_read_b128 v[28:31], v16 offset:256
    ds_read_b128 v[32:35], v16 offset:272
    ds_read_b128 v[36:39], v16 offset:768
    ds_read_b128 v[40:43], v16 offset:784
    s_waitcnt lgkmcnt(6)
    v_lshl_add_u32 v19, v19, 9, v17
    k2_mloop:
    v_cmp_lt_u32 vcc, 0, v18
    s_and_b64 exec, exec, vcc
    s_cbranch_execz k2_mdone
    ds_read_b128 v[44:47], v19
    ds_read_b128 v[48:51], v19 offset:16
    ds_read_b128 v[52:55], v19 offset:256
    ds_read_b128 v[56:59], v19 offset:272
    v_subrev_u32 v18, 1, v18
    v_subrev_u32 v19, 512, v19
    s_waitcnt lgkmcnt(0)
    """)
    for k in range(8):
        A(f'v_pk_add_f32 {pr(20+2*k)}, {pr(20+2*k)}, {pr(44+2*k)}')
    A(f"""
    s_branch k2_mloop
    k2_mdone:
    s_mov_b64 exec, -1
    s_waitcnt lgkmcnt(0)
    k2_merged:
    s_cmp_lg_u32 s72, 0
    s_cbranch_scc1 k2_more
    s_cmp_ge_u32 s4, 10
    s_cbranch_scc1 k2_fin
    s_mov_b32 s20, {hex(EPS60)}
    s_mov_b32 s21, {hex(EPS60)}
    """)
    for k in range(4):
        A(f'v_pk_add_f32 {pr(20+2*k)}, {pr(20+2*k)}, s[20:21]')
    for k in range(8):
        A(f'v_rcp_f32 v{20+k}, v{20+k}')
    for k in range(4):
        A(f'v_lshlrev_b32 v{44+k}, 16, v{4+k}')
        A(f'v_and_b32 v{48+k}, 0xffff0000, v{4+k}')
    for k in range(4):
        A(f'v_pk_fma_f32 {pr(28+2*k)}, {pr(28+2*k)}, {pr(20+2*k)}, {pr(36+2*k)}')
    for k in range(8):
        A(f'v_max_f32 v{28+k}, 0, v{28+k}')
    for k in range(4):
        A(f'v_pk_add_f32 {pr(28+2*k)}, {pr(28+2*k)}, {pr(44+2*k)}')
    for k in range(4):
        A(f'v_cvt_pk_bf16_f32 v{20+k}, v{28+k}, v{32+k}')
        A(f'buffer_store_dword v{20+k}, v15, s[52:55], 0 offen offset:{32*k}')
    A('k2_fin:')
    stamp(A, prof, 10)
    if prof:
        A('s_waitcnt vmcnt(0)')
        stamp(A, prof, 11)
        stamp_out(A, prof, 18, 19, 4, 1)
    dbg_end(A, 2)
    A('k2_exit:\ns_endpgm')
    zero_misc = f"""
    v_mov_b32 v74, 0
    v_mov_b32 v75, 0
    v_mov_b32 v76, 0
    v_mov_b32 v77, 0
    v_lshlrev_b32 v78, 4, v0
    v_add_u32 v78, {CNT}, v78
    v_cmp_gt_u32 vcc, {NZ}, v0
    s_and_saveexec_b64 s[20:21], vcc
    ds_write_b128 v78, v[74:77]
    s_mov_b64 exec, s[20:21]
    """
    A(f"""
    k2_more:
    s_waitcnt vmcnt(0)
    s_cmp_ge_u32 s4, 10
    s_cbranch_scc1 k2_more1
    ds_write_b128 v16, v[20:23]
    ds_write_b128 v16, v[24:27] offset:16
    ds_write_b128 v16, v[28:31] offset:256
    ds_write_b128 v16, v[32:35] offset:272
    k2_more1:
    s_waitcnt lgkmcnt(0)
    s_barrier
    """)
    A(zero_misc)
    A(f"""
    s_mul_i32 s20, s75, 12
    v_add_u32 v1, s20, v1
    v_subrev_u32 v2, s75, v2
    s_mov_b32 s7, 0
    s_branch k2_loadrec
    k2_shrink:
    s_barrier
    """)
    A(zero_misc)
    A(f"""
    s_mov_b64 s[{MK+6}:{MK+7}], 0
    s_mov_b32 s75, 24
    s_waitcnt lgkmcnt(0)
    s_barrier
    ds_write_b32 v15, v14 offset:{MISC - CNT}
    s_branch k2_rank
    k2_kernel_end:
    """)
    return A.text(), LDS

KD = '''.amdhsa_kernel {name}
  .amdhsa_next_free_vgpr {vgpr}
  .amdhsa_next_free_sgpr {sgpr}
  .amdhsa_accum_offset {acc}
  .amdhsa_group_segment_fixed_size 0
  .amdhsa_kernarg_size 96
  .amdhsa_user_sgpr_count 2
  .amdhsa_user_sgpr_kernarg_segment_ptr 1
  .amdhsa_system_sgpr_workgroup_id_x 1
  .amdhsa_float_denorm_mode_32 3
  .amdhsa_dx10_clamp 0
.end_amdhsa_kernel'''

def build(prof=False):
    k1, l1 = gen_k1(prof)
    k2, l2 = gen_k2(prof)
    head = open('standalone__edge_featured_mpnn_gatedgcn__graph.s.ref').read().split('\n')
    head = [h for h in head[:14]]
    out = head + [f'; @launch kernel=k1_kernel grid=(256,1,1) block=(640,1,1) lds={l1}',
                  f'; @launch kernel=k2_kernel grid=(256,1,1) block=(1024,1,1) lds={l2}',
                  '.amdgcn_target "amdgcn-amd-amdhsa--gfx950"', '.text']
    for nm, body in (('k1_kernel', k1), ('k2_kernel', k2)):
        out += [f'.globl {nm}', '.p2align 8', f'.type {nm},@function', body]
    out += ['.section .rodata,"a"', '.p2align 6', KD.format(name='k1_kernel', vgpr=128 if prof else 96, sgpr=102 if (prof or 'dbg' in OPT) else 48, acc=128 if prof else 96),
            '.p2align 6', KD.format(name='k2_kernel', vgpr=128 if prof else 116, sgpr=102 if (prof or 'dbg' in OPT) else 90, acc=128 if prof else 116)]
    return '\n'.join(out) + '\n'

if __name__ == '__main__':
    prof = '--prof' in sys.argv
    for a in sys.argv[2:]:
        if a.startswith('-O'): OPT.add(a[2:])
    dst = sys.argv[1]
    open(dst, 'w').write(build(prof))
```

```python
import sys

N = 10000; E = 320000
TABH = 10016 * 256
NPROD = 250
CH = 1280
HDRO = 2 * TABH
RECO = HDRO + 0x20000
STAMPO = 0x1000000
MAGIC = 214749
NLOG2E = 0xbfb8aa3b
C60 = 0x21800000
EPS60 = 0x538637bd
M60 = 0xc2700000

OPT = set()
class Asm:
    def __init__(self): self.L = []
    def __call__(self, s):
        for x in s.strip('\n').split('\n'): self.L.append('    ' + x.strip() if not x.strip().endswith(':') else x.strip())
    def text(self): return '\n'.join(self.L)

def srd(A, d, lo, hi, size, stride=0):
    A(f's_mov_b32 s{d}, s{lo}')
    if stride:
        A(f's_and_b32 s{d+1}, s{hi}, 0xffff')
        A(f's_or_b32 s{d+1}, s{d+1}, {hex(stride << 16)}')
    else:
        A(f's_mov_b32 s{d+1}, s{hi}')
    A(f's_mov_b32 s{d+2}, {size}')
    A(f's_mov_b32 s{d+3}, 0x00020000')

def srd_off(A, d, lo, hi, off, size, stride=0):
    A(f's_add_u32 s{d}, s{lo}, {off}')
    A(f's_addc_u32 s{d+1}, s{hi}, 0')
    if stride:
        A(f's_and_b32 s{d+1}, s{d+1}, 0xffff')
        A(f's_or_b32 s{d+1}, s{d+1}, {hex(stride << 16)}')
    A(f's_mov_b32 s{d+2}, {size}')
    A(f's_mov_b32 s{d+3}, 0x00020000')

def scan64(A, v):
    for sh in (1, 2, 4, 8):
        A('s_nop 1')
        A(f'v_add_u32_dpp v{v}, v{v}, v{v} row_shr:{sh} row_mask:0xf bank_mask:0xf bound_ctrl:0')
    A('s_nop 1')
    A(f'v_add_u32_dpp v{v}, v{v}, v{v} row_bcast:15 row_mask:0xa bank_mask:0xf')
    A('s_nop 1')
    A(f'v_add_u32_dpp v{v}, v{v}, v{v} row_bcast:31 row_mask:0xc bank_mask:0xf')

def stamp(A, prof, k, sb=90):
    if not prof: return
    A(f's_memtime s[{sb}:{sb+1}]')
    A('s_waitcnt lgkmcnt(0)')
    A(f'v_writelane_b32 v127, s{sb}, {k}')
    if k == 0:
        A(f's_memrealtime s[{sb}:{sb+1}]')
        A('s_waitcnt lgkmcnt(0)')
        A(f'v_writelane_b32 v127, s{sb}, 12')

def stamp_out(A, prof, wslo, wshi, slot_expr_sgpr, kernel_id):
    if not prof: return
    A('s_memrealtime s[90:91]')
    A('s_waitcnt lgkmcnt(0)')
    A('v_writelane_b32 v127, s90, 13')
    A('s_mov_b32 exec_lo, -1\ns_mov_b32 exec_hi, 0')
    A(f's_add_u32 s92, s{wslo}, {STAMPO + kernel_id * 0x80000}')
    A(f's_addc_u32 s93, s{wshi}, 0')
    A('s_mov_b32 s94, 0x80000')
    A('s_mov_b32 s95, 0x00020000')
    A(f's_lshl_b32 s96, s2, 4')
    A(f's_add_u32 s96, s96, s{slot_expr_sgpr}')
    A('s_lshl_b32 s96, s96, 7')
    A('s_getreg_b32 s90, hwreg(HW_REG_HW_ID)')
    A('s_getreg_b32 s91, hwreg(HW_REG_XCC_ID)')
    A('v_writelane_b32 v127, s90, 14')
    A('v_writelane_b32 v127, s91, 15')
    A('v_mbcnt_lo_u32_b32 v126, -1, 0')
    A('v_lshlrev_b32 v126, 2, v126')
    A('buffer_store_dword v127, v126, s[92:95], s96 offen')
    A('s_waitcnt vmcnt(0)')

def dbg_start(A):
    if 'dbg' not in OPT: return
    A('s_memrealtime s[96:97]')
    A('s_load_dwordx2 s[98:99], s[0:1], 80')

def dbg_mid(A, r):
    if 'dbg' not in OPT: return
    A(f's_memrealtime s[{r}:{r+1}]\ns_waitcnt lgkmcnt(0)')

def dbg_end(A, k):
    if 'dbg' not in OPT: return
    A('s_waitcnt vmcnt(0)')
    A('s_memrealtime s[94:95]')
    A('s_waitcnt lgkmcnt(0)')
    A('s_not_b32 s96, s96')
    if k < 2:
        A(f's_lshl_b32 s97, s2, 4\ns_add_u32 s97, s97, s4\ns_lshl_b32 s97, s97, 3\ns_add_u32 s97, s97, {STAMPO}')
        A('s_add_u32 s20, s20, s97\ns_addc_u32 s21, s21, 0')
        A('s_mov_b64 exec, 1')
        A('v_mov_b32 v0, 0\nv_mov_b32 v2, s96\nv_mov_b32 v3, s94')
        A('global_store_dwordx2 v0, v[2:3], s[20:21]\ns_waitcnt vmcnt(0)')
        return
    A('s_cmp_lg_u32 s4, 15\ns_cbranch_scc1 k2_exit')
    A('s_mov_b64 exec, 1')
    A('s_not_b32 s93, s92')
    A('v_mov_b32 v0, 0\nv_mov_b32 v1, s96\nv_mov_b32 v2, s94\nv_mov_b32 v3, s92\nv_mov_b32 v4, s93\nv_mov_b32 v5, s90')
    for q, v in enumerate((1, 2, 3, 4, 5)):
        A(f'global_atomic_umax v0, v{v}, s[98:99] offset:{4*q}')
    A(f's_lshr_b32 s97, s2, 4\ns_lshl_b32 s97, s97, 3\ns_and_b32 s95, s2, 7\ns_or_b32 s97, s97, s95\ns_cmp_ge_u32 s97, 125\ns_cbranch_scc1 k2_exit')
    A(f's_lshl_b32 s97, s2, 7\ns_add_u32 s97, s97, {STAMPO}')
    A('s_add_u32 s18, s18, s97\ns_addc_u32 s19, s19, 0')
    A('s_mov_b64 exec, 0x3ff')
    A('v_mbcnt_lo_u32_b32 v6, -1, 0\nv_lshlrev_b32 v6, 3, v6\nv_mov_b32 v0, 0')
    A('global_load_dwordx2 v[8:9], v6, s[18:19]\ns_waitcnt vmcnt(0)')
    A('s_bfe_u32 s97, s2, 0x10003\ns_lshl_b32 s97, s97, 3\nv_mov_b32 v0, s97')
    A('global_atomic_umax v0, v8, s[98:99] offset:32')
    A('global_atomic_umax v0, v9, s[98:99] offset:36')
    A('s_waitcnt vmcnt(0)')

def prefetch_code(A, nbytes, nthreads, vtmp, label):
    A(f's_getpc_b64 s[88:89]')
    A(f'v_lshlrev_b32 v{vtmp}, 6, v0')
    A(f'v_cmp_gt_u32 vcc, {label}_end - {label} - 64, v{vtmp}')
    A('s_and_saveexec_b64 s[86:87], vcc')
    A(f's_cbranch_execz {label}_pf')
    A(f'global_load_dword v{vtmp+1}, v{vtmp}, s[88:89]')
    A(f'{label}_pf:')
    A('s_mov_b64 exec, s[86:87]')

def gen_k1(prof):
    A = Asm()
    XB = 0; WB = 20480; WV = WB + 16384
    STG = WV + 16384; CNT = STG + CH * 12; STA = CNT + 512
    FLG = STA + 512
    LDS = CNT + 1280
    B2AT = int(([o[2:] for o in OPT if o.startswith('b2')] + ['6'])[0])
    B3AT = int(([o[2:] for o in OPT if o.startswith('b3')] + ['24'])[0])
    A('k1_kernel:')
    dbg_start(A)
    stamp(A, prof, 0)
    A("""
    s_cmp_ge_u32 s2, 256
    s_cbranch_scc1 k1_exit
    s_load_dwordx4 s[8:11], s[0:1], 0
    s_load_dwordx4 s[12:15], s[0:1], 16
    s_load_dwordx4 s[44:47], s[0:1], 32
    s_load_dwordx4 s[48:51], s[0:1], 48
    s_load_dwordx2 s[18:19], s[0:1], 64
    s_load_dwordx2 s[20:21], s[0:1], 88
    v_lshrrev_b32 v1, 6, v0
    v_and_b32 v3, 63, v0
    v_readfirstlane_b32 s4, v1
    s_and_b32 s6, s2, 1
    s_lshr_b32 s23, s2, 3
    s_cmp_ge_u32 s4, 5
    s_cbranch_scc1 k1_gemm
    """)
    A(f"""
    s_cmp_ge_u32 s2, {NPROD}
    s_cbranch_scc1 k1_exit
    v_lshlrev_b32 v1, 4, v0
    v_lshlrev_b32 v2, 5, v0
    s_mul_i32 s5, s2, {CH*4}
    s_mul_i32 s7, s2, {CH*8}
    v_mov_b32 v32, 0
    v_mov_b32 v33, 1
    v_lshlrev_b32 v34, 2, v0
    v_add_u32 v34, {CNT}, v34
    s_waitcnt lgkmcnt(0)
    """)
    srd_off(A, 24, 14, 15, 's5', CH * 4)
    NT = ' nt' if 'nt1' in OPT or 'nte' in OPT else ''
    A(f'buffer_load_dwordx4 v[4:7], v1, s[24:27], 0 offen{NT}')
    srd_off(A, 28, 12, 13, 's5', CH * 4)
    A(f'buffer_load_dwordx4 v[8:11], v1, s[28:31], 0 offen{NT}')
    srd_off(A, 32, 10, 11, 's7', CH * 8)
    A(f'buffer_load_dwordx4 v[12:15], v2, s[32:35], 0 offen{NT}')
    A(f'buffer_load_dwordx4 v[16:19], v2, s[32:35], 0 offen offset:16{NT}')
    A(f"""
    ds_write_b32 v34, v32
    s_mul_i32 s5, s2, {CH*12}
    s_add_u32 s5, s5, {RECO}
    """)
    srd_off(A, 36, 20, 21, 's5', CH * 12)
    A(f's_lshl_b32 s5, s2, 9\ns_add_u32 s5, s5, {HDRO}')
    srd_off(A, 40, 20, 21, 's5', 512)
    A(f's_mov_b32 s5, {MAGIC}\ns_movk_i32 s6, 625\ns_mov_b32 s7, {CNT}\ns_mov_b32 s22, {STG}')
    A('s_waitcnt lgkmcnt(0)\ns_barrier')
    stamp(A, prof, 1)
    A('s_waitcnt vmcnt(3)')
    stamp(A, prof, 2)
    for i in range(4):
        A(f'v_mul_u32_u24 v{20+i}, s5, v{4+i}')
    for i in range(4):
        A(f'v_lshrrev_b32 v{20+i}, 24, v{20+i}')
    for i in range(4):
        A(f'v_lshl_add_u32 v{28+i}, v{20+i}, 2, s7')
        A(f'ds_add_rtn_u32 v{24+i}, v{28+i}, v33')
    for i in range(4):
        A(f'v_mad_u32_u24 v{20+i}, v{20+i}, s6, 7')
    for i in range(4):
        A(f'v_lshrrev_b32 v{20+i}, 3, v{20+i}')
    for i in range(4):
        A(f'v_sub_u32 v{4+i}, v{4+i}, v{20+i}')
    A(f'v_lshl_add_u32 v35, v0, 3, s7\nv_lshlrev_b32 v34, 3, v0')
    A('s_waitcnt lgkmcnt(0)\ns_barrier')
    stamp(A, prof, 3)
    A(f"""
    s_cmp_lg_u32 s4, 0
    s_cbranch_scc1 k1_noscan
    ds_read_b64 v[36:37], v35
    s_waitcnt lgkmcnt(0)
    v_add_u32 v38, v36, v37
    v_mov_b32 v39, v38
    """)
    scan64(A, 38)
    A(f"""
    v_sub_u32 v38, v38, v39
    v_add_u32 v39, v38, v36
    ds_write_b64 v35, v[38:39] offset:512
    v_lshl_or_b32 v36, v36, 16, v38
    v_lshl_or_b32 v37, v37, 16, v39
    buffer_store_dwordx2 v[36:37], v34, s[40:43], 0 offen
    s_waitcnt lgkmcnt(0)
    k1_noscan:
    s_barrier
    """)
    stamp(A, prof, 4)
    for i in range(4):
        A(f'ds_read_b32 v{20+i}, v{28+i} offset:512')
    A('v_mov_b32 v34, s22\ns_waitcnt vmcnt(0)')
    for i in range(4):
        A(f'v_lshl_or_b32 v{8+i}, v{4+i}, 16, v{8+i}')
    A('s_waitcnt lgkmcnt(0)')
    for i in range(4):
        A(f'v_add_u32 v{20+i}, v{20+i}, v{24+i}')
        A(f'v_mad_u32_u24 v{20+i}, v{20+i}, 12, v34')
        A(f'ds_write2_b32 v{20+i}, v{12+2*i}, v{13+2*i} offset0:0 offset1:1')
        A(f'ds_write_b32 v{20+i}, v{8+i} offset:8')
    A(f"""
    v_add_u32 v2, {CH*4}, v1
    v_add_u32 v3, {CH*8}, v1
    v_mov_b32 v34, {FLG}
    s_waitcnt lgkmcnt(0)
    s_mov_b64 exec, 1
    ds_add_u32 v34, v33
    k1_spin:
    ds_read_b32 v35, v34
    s_waitcnt lgkmcnt(0)
    v_readfirstlane_b32 s5, v35
    s_cmp_lt_u32 s5, 5
    s_cbranch_scc1 k1_spin
    s_mov_b64 exec, -1
    """)
    stamp(A, prof, 5)
    for j in range(3):
        A(f'ds_read_b128 v[{4+4*j}:{7+4*j}], v1 offset:{STG + CH*4*j}')
    for j in range(3):
        A(f's_waitcnt lgkmcnt({2-j})')
        A(f'buffer_store_dwordx4 v[{4+4*j}:{7+4*j}], v{1+j}, s[36:39], 0 offen')
    stamp(A, prof, 6)
    if prof:
        A('s_waitcnt vmcnt(0)')
        stamp(A, prof, 7)
        stamp_out(A, prof, 20, 21, 4, 0)
    dbg_end(A, 0)
    A('s_endpgm')
    A('k1_gemm:')
    A(f"""
    s_sub_u32 s4, s4, 5
    s_bfe_u32 s3, s2, 0x20001
    s_lshl_b32 s3, s3, 5
    s_add_u32 s3, s3, s23
    s_mul_i32 s5, s3, 625
    s_add_u32 s5, s5, 7
    s_lshr_b32 s5, s5, 3
    s_lshl_b32 s5, s5, 8
    s_sub_u32 s7, {N*256}, s5
    s_lshl_b32 s22, s6, 7
    s_sub_u32 s16, 32768, s22
    v_lshrrev_b32 v4, 4, v3
    v_and_b32 v5, 15, v3
    v_xor_b32 v6, v5, v4
    v_lshlrev_b32 v6, 4, v6
    v_lshl_or_b32 v6, v4, 8, v6
    v_lshrrev_b32 v8, 3, v3
    v_and_b32 v7, 7, v3
    v_and_b32 v9, 2, v8
    v_xor_b32 v7, v7, v9
    v_lshlrev_b32 v7, 4, v7
    v_lshl_or_b32 v7, v8, 8, v7
    s_waitcnt lgkmcnt(0)
    """)
    srd_off(A, 24, 8, 9, 's5', 's7')
    srd_off(A, 28, 46, 47, 's22', 's16')
    srd_off(A, 32, 18, 19, 's22', 's16')
    A('s_barrier')
    for j in range(4):
        if j == 3:
            A('s_cmp_ge_u32 s4, 1\ns_cbranch_scc1 k1_dmadone')
        A(f"""
        s_add_u32 s17, s4, {5*j}
        s_and_b32 s40, s17, 1
        s_lshl_b32 s40, s40, 6
        s_lshl_b32 s41, s17, 11
        s_lshl_b32 s17, s17, 10
        v_xor_b32 v8, s40, v7
        s_add_u32 m0, s17, {WB}
        s_nop 0
        buffer_load_dwordx4 v8, s[28:31], s41 offen lds
        s_add_u32 m0, s17, {WV}
        s_nop 0
        buffer_load_dwordx4 v8, s[32:35], s41 offen lds
        """)
    A('k1_dmadone:')
    for j in range(4):
        A(f"""
        s_lshl_b32 s17, s4, 12
        s_add_u32 s17, s17, {1024*j}
        v_xor_b32 v8, {64*j}, v6
        s_mov_b32 m0, s17
        s_nop 0
        buffer_load_dwordx4 v8, s[24:27], s17 offen{' nt' if 'nt1' in OPT else ''} lds
        """)
    A(f"""
    s_lshl_b32 s17, s4, 12
    v_xor_b32 v8, v4, v5
    v_lshlrev_b32 v8, 4, v8
    v_lshl_or_b32 v8, v5, 8, v8
    v_add_u32 v8, s17, v8
    v_xor_b32 v9, 64, v8
    v_xor_b32 v10, 128, v8
    v_xor_b32 v11, 192, v8
    v_bfe_u32 v13, v3, 2, 2
    v_lshl_add_u32 v12, v4, 3, v13
    v_lshlrev_b32 v12, 7, v12
    v_lshrrev_b32 v13, 1, v13
    v_and_b32 v14, 1, v4
    v_lshl_or_b32 v13, v14, 1, v13
    v_lshl_or_b32 v12, v13, 5, v12
    v_and_b32 v13, 3, v3
    v_lshl_or_b32 v12, v13, 3, v12
    v_add_u32 v12, {WB}, v12
    v_xor_b32 v13, 32, v12
    v_xor_b32 v14, 64, v12
    v_xor_b32 v15, 96, v12
    s_mul_i32 s40, s6, {TABH}
    s_add_u32 s40, s40, s5
    s_add_u32 s40, s40, s17
    s_sub_i32 s41, s7, s17
    s_min_i32 s41, s41, 4096
    """)
    srd_off(A, 36, 20, 21, 's40', 's41')
    PFK = 'nok2pf' not in OPT
    if PFK:
        srd_off(A, 28, 44, 45, 's22', 's16')
        srd_off(A, 32, 50, 51, 's22', 's16')
        A(f"""
        s_lshl_b32 s40, s23, 10
        v_lshlrev_b32 v96, 8, v3
        s_getpc_b64 s[42:43]
        k1_pc:
        s_add_u32 s42, s42, k2_kernel - k1_pc
        s_addc_u32 s43, s43, 0
        s_lshl_b32 s41, s23, 8
        v_lshlrev_b32 v97, 7, v3
        v_add_u32 v97, s41, v97
        v_cmp_gt_u32 vcc, k2_kernel_end - k2_kernel - 4, v97
        s_and_b32 vcc_lo, vcc_lo, 3
        s_mov_b32 vcc_hi, 0
        """)
    A(f"""
    v_lshlrev_b32 v6, 10, v4
    v_lshl_or_b32 v6, v5, 4, v6
    s_mov_b32 s16, {hex(NLOG2E)}
    s_mov_b32 s17, {hex(NLOG2E)}
    s_waitcnt vmcnt(4)
    s_barrier
    s_barrier
    """)
    stamp(A, prof, 1)
    XF = 16
    WF = 32
    AC = 64
    steps = [(s, m, c) for s in range(4) for m in range(2) for c in range(4)]
    PD = 4
    def rd(i):
        s, m, c = steps[i]; b = WF + 4 * (i % 8)
        for u in range(2):
            A(f'ds_read_b64_tr_b16 v[{b+2*u}:{b+2*u+1}], v{12+c} offset:{m*16384 + (32*s+4*u)*128}')
    for i in range(PD): rd(i)
    A('s_waitcnt vmcnt(0)')
    if PFK:
        A("""
        s_cmp_lg_u32 s4, 4
        s_cbranch_scc1 k1_nopf
        s_mov_b64 exec, 15
        buffer_load_dword v98, v96, s[28:31], s40 offen
        buffer_load_dword v98, v96, s[32:35], s40 offen
        s_mov_b64 exec, vcc
        s_cbranch_execz k1_nopf
        global_load_dword v98, v97, s[42:43]
        k1_nopf:
        s_mov_b64 exec, -1
        """)
    stamp(A, prof, 2)
    for s in range(4):
        A(f'ds_read_b128 v[{XF+4*s}:{XF+4*s+3}], v{8+s} offset:{XB}')
    A('s_waitcnt lgkmcnt(0)')
    for i in range(32):
        s, m, c = steps[i]; b = WF + 4 * (i % 8)
        if i + PD < 32:
            rd(i + PD); A(f's_waitcnt lgkmcnt({2*PD})')
        else:
            A(f's_waitcnt lgkmcnt({2*(31-i)})')
        acc = AC + 16 * m + 4 * c
        cin = '0' if s == 0 else f'v[{acc}:{acc+3}]'
        A(f'v_mfma_f32_16x16x32_bf16 v[{acc}:{acc+3}], v[{XF+4*s}:{XF+4*s+3}], v[{b}:{b+3}], {cin}')
    stamp(A, prof, 3)
    A('s_nop 3')
    for c in range(4):
        for u in range(2):
            A(f'v_pk_mul_f32 v[{AC+4*c+2*u}:{AC+4*c+2*u+1}], v[{AC+4*c+2*u}:{AC+4*c+2*u+1}], s[16:17]')
    for i in range(4):
        o = 16 + 4 * i
        A(f'v_cvt_pk_bf16_f32 v{o}, v{AC+i}, v{AC+4+i}')
        A(f'v_cvt_pk_bf16_f32 v{o+1}, v{AC+8+i}, v{AC+12+i}')
        A(f'v_cvt_pk_bf16_f32 v{o+2}, v{AC+16+i}, v{AC+20+i}')
        A(f'v_cvt_pk_bf16_f32 v{o+3}, v{AC+24+i}, v{AC+28+i}')
        A(f'buffer_store_dwordx4 v[{o}:{o+3}], v6, s[36:39], 0 offen offset:{256*i}')
    A(f"""
    s_or_b32 s40, s4, s3
    s_cmp_lg_u32 s40, 0
    s_cbranch_scc1 k1_nonull
    s_mul_i32 s40, s6, {TABH}
    s_add_u32 s40, s40, {N*256}
    """)
    srd_off(A, 24, 20, 21, 's40', 256)
    A("""
    v_mov_b32 v32, 0x7f7f7f7f
    v_mov_b32 v33, 0x7f7f7f7f
    v_mov_b32 v34, 0
    v_mov_b32 v35, 0
    v_lshlrev_b32 v7, 4, v3
    buffer_store_dwordx4 v[32:35], v7, s[24:27], 0 offen
    k1_nonull:
    """)
    stamp(A, prof, 6)
    if prof:
        A('s_waitcnt vmcnt(0)\ns_add_u32 s4, s4, 5')
        stamp(A, prof, 7)
        stamp_out(A, prof, 20, 21, 4, 0)
    if 'dbg' in OPT: A('s_add_u32 s4, s4, 5')
    dbg_end(A, 1)
    A('k1_exit:')
    A('s_endpgm')
    A('k1_kernel_end:')
    return A.text(), LDS

def gen_k2(prof):
    A = Asm()
    HEAD = 81920
    XB = HEAD; WA = XB + 20480; WU = WA + 16384
    EL = HEAD + 32768; CAPR = 3904; PL = EL + CAPR * 8
    CAPT = CAPR - 16
    CNT = PL + CAPR * 4; STA = CNT + 512; HIN = STA + 512; MISC = HIN + 640; ZER = MISC + 16
    NZ = (ZER + 96 - CNT) // 16
    LDS = ZER + 96
    assert LDS <= 163840 and WU + 16384 <= CNT
    RC = 42
    R_ = 8
    MK = 60
    TA = 74; TB = 82
    def pr(a): return f'v[{a}:{a+1}]'
    WC = WU + 16384
    assert WC + 512 <= CNT
    PF = 0 if 'nopf' in OPT else int(([o[2:] for o in OPT if o.startswith('pf')] + ['14'])[0])
    PA = int(([o[2:] for o in OPT if o.startswith('pa')] + ['0'])[0])
    A('k2_kernel:')
    dbg_start(A)
    stamp(A, prof, 0)
    A("""
    s_cmp_ge_u32 s2, 256
    s_cbranch_scc1 k2_exit
    s_load_dwordx2 s[18:19], s[0:1], 88
    s_load_dwordx2 s[8:9], s[0:1], 0
    s_load_dwordx2 s[10:11], s[0:1], 32
    s_load_dwordx4 s[12:15], s[0:1], 48
    s_load_dwordx2 s[16:17], s[0:1], 72
    v_lshrrev_b32 v1, 6, v0
    v_and_b32 v3, 63, v0
    v_readfirstlane_b32 s4, v1
    s_bfe_u32 s3, s2, 0x20001
    s_lshl_b32 s3, s3, 5
    s_lshr_b32 s78, s2, 3
    s_add_u32 s3, s3, s78
    s_and_b32 s5, s2, 1
    s_mul_i32 s6, s3, 625
    s_add_u32 s7, s6, 632
    s_add_u32 s6, s6, 7
    s_lshr_b32 s6, s6, 3
    s_lshr_b32 s7, s7, 3
    s_sub_u32 s7, s7, s6
    v_lshrrev_b32 v1, 2, v0
    v_lshlrev_b32 v2, 9, v1
    s_lshl_b32 s20, s3, 2
    v_lshrrev_b32 v66, 4, v3
    v_and_b32 v67, 15, v3
    v_xor_b32 v68, v67, v66
    v_lshlrev_b32 v68, 4, v68
    v_lshl_or_b32 v68, v66, 8, v68
    s_and_b32 s21, s4, 3
    s_lshl_b32 s21, s21, 6
    v_xor_b32 v68, s21, v68
    v_lshrrev_b32 v69, 3, v3
    v_and_b32 v70, 7, v3
    v_lshlrev_b32 v73, 4, v70
    v_lshl_or_b32 v73, v69, 8, v73
    v_and_b32 v71, 2, v69
    v_xor_b32 v70, v70, v71
    v_lshlrev_b32 v70, 4, v70
    v_lshl_or_b32 v70, v69, 8, v70
    s_and_b32 s21, s4, 1
    s_lshl_b32 s21, s21, 6
    v_xor_b32 v70, s21, v70
    s_waitcnt lgkmcnt(0)
    """)
    srd_off(A, 24, 18, 19, HDRO, NPROD * 512)
    A('buffer_load_dword v2, v2, s[24:27], s20 offen')
    A('s_lshl_b32 s20, s6, 8')
    A(f's_sub_u32 s21, {N*256}, s20')
    srd_off(A, 28, 8, 9, 's20', 's21')
    A('s_lshl_b32 s22, s5, 7\ns_sub_u32 s23, 32768, s22')
    srd_off(A, 32, 10, 11, 's22', 's23')
    srd_off(A, 36, 14, 15, 's22', 's23')
    A('s_sub_u32 s23, 1024, s22')
    srd_off(A, 40, 12, 13, 's22', 's23')
    if 'nohb' not in OPT: A('s_barrier')
    A(f"""
    s_lshl_b32 s20, s4, 10
    s_lshl_b32 s21, s4, 11
    s_add_u32 m0, s20, {XB}
    s_nop 0
    buffer_load_dwordx4 v68, s[28:31], s20 offen lds
    s_add_u32 m0, s20, {WA}
    s_nop 0
    buffer_load_dwordx4 v70, s[32:35], s21 offen lds
    s_add_u32 m0, s20, {WU}
    s_nop 0
    buffer_load_dwordx4 v70, s[36:39], s21 offen lds
    s_cmp_ge_u32 s4, 5
    s_cbranch_scc1 k2_nox2
    s_cmp_eq_u32 s4, 4
    s_cbranch_scc1 k2_wc
    s_add_u32 s20, s20, 16384
    s_add_u32 m0, s20, {XB}
    s_nop 0
    buffer_load_dwordx4 v68, s[28:31], s20 offen lds
    s_branch k2_nox2
    k2_wc:
    s_mov_b32 m0, {WC}
    s_mov_b32 exec_hi, 0
    buffer_load_dwordx4 v73, s[40:43], 0 offen lds
    s_mov_b64 exec, -1
    k2_nox2:
    """)
    A(f's_mul_i32 s20, s5, {TABH}')
    srd_off(A, 48, 18, 19, 's20', N + 1, stride=(1 if 'row0' in OPT else 256))
    if PF or PA:
        A(f"""
        s_mul_i32 s20, s78, 313
        s_mul_i32 s21, s4, {(PF + PA) // 2}
        s_add_u32 s20, s20, s21
        v_lshrrev_b32 v10, 1, v3
        v_add_u32 v10, s20, v10
        v_and_b32 v11, 1, v3
        v_lshlrev_b32 v11, 7, v11
        s_mov_b32 s80, {hex((((1 << PF) - 1) << PA) & 0xffffffff)}
        s_mov_b32 s81, {hex((((1 << PF) - 1) << PA) >> 32)}
        """)
    if PA:
        A(f's_mov_b64 exec, {hex((1 << PA) - 1)}\nbuffer_load_dword v122, v[10:11], s[48:51], 0 idxen offen\ns_mov_b64 exec, -1')
    A(f"""
    v_mov_b32 v74, 0
    v_mov_b32 v75, 0
    v_mov_b32 v76, 0
    v_mov_b32 v77, 0
    v_lshrrev_b32 v78, 5, v0
    v_and_b32 v79, 31, v0
    v_lshlrev_b32 v79, 4, v79
    v_lshl_or_b32 v78, v78, 10, v79
    ds_write_b128 v78, v[74:77]
    ds_write_b128 v78, v[74:77] offset:32768
    s_cmp_ge_u32 s4, 8
    s_cbranch_scc1 k2_noz
    v_add_u32 v78, 0x10000, v78
    ds_write_b128 v78, v[74:77]
    k2_noz:
    v_lshlrev_b32 v78, 4, v0
    v_add_u32 v78, {CNT}, v78
    v_cmp_gt_u32 vcc, {NZ}, v0
    s_and_saveexec_b64 s[20:21], vcc
    ds_write_b128 v78, v[74:77]
    s_mov_b64 exec, s[20:21]
    """)
    srd_off(A, 44, 18, 19, RECO, NPROD * CH * 12)
    A('s_lshl_b32 s20, s6, 8\ns_add_u32 s20, s20, s22\ns_lshl_b32 s21, s7, 8\ns_sub_u32 s21, s21, s22')
    srd_off(A, 52, 16, 17, 's20', 's21')
    A(f"""
    v_mul_u32_u24 v1, {CH*12}, v1
    v_and_b32 v78, 3, v0
    """)
    A(f's_waitcnt vmcnt({4 if PA else 3})')
    stamp(A, prof, 1)
    A(f"""
    v_and_b32 v79, 0xffff, v2
    v_add_u32 v79, v79, v78
    v_mad_u32_u24 v1, v79, 12, v1
    v_lshrrev_b32 v2, 16, v2
    v_sub_u32 v2, v2, v78
    """)
    A('k2_loadrec:')
    A(f's_mov_b32 s79, {4*R_}')
    for r in range(R_):
        A(f'v_cmp_lt_i32 s[{MK+2*r}:{MK+2*r+1}], {4*r}, v2')
    for r in range(R_):
        A(f's_mov_b32 s89, {r}')
        A(f's_mov_b64 exec, s[{MK+2*r}:{MK+2*r+1}]')
        A(f's_cbranch_execz k2_ldiss')
        A(f'buffer_load_dwordx3 v[{RC+4*r}:{RC+4*r+2}], v1, s[44:47], 0 offen offset:{48*r}')
    A(f's_mov_b32 s89, {R_}')
    A('k2_ldiss:\ns_mov_b64 exec, -1')
    stamp(A, prof, 16)
    A(f"""
    s_cmp_eq_u32 s7, 0
    s_cbranch_scc1 k2_noaddr
    v_and_b32 v78, 1, v3
    v_lshlrev_b32 v78, 4, v78
    v_mov_b32 v79, 0x3f80
    v_lshlrev_b32 v79, v78, v79
    v_and_b32 v78, 2, v3
    v_cmp_eq_u32 vcc, 0, v78
    s_mov_b32 s56, {hex(C60)}
    s_mov_b32 s57, {hex(C60)}
    v_cndmask_b32 v12, 0, v79, vcc
    v_cndmask_b32 v13, v79, v74, vcc
    s_mov_b32 s58, 0x22221111
    s_mov_b32 s59, 0x88884444
    v_lshlrev_b32 v25, 1, v3
    v_add_u32 v25, {WC}, v25
    s_cmp_ge_u32 s4, 10
    s_cbranch_scc1 k2_noaddr
    v_lshrrev_b32 v76, 4, v3
    v_and_b32 v77, 15, v3
    v_lshrrev_b32 v24, 3, v0
    v_bfe_u32 v4, v0, 2, 1
    v_lshl_or_b32 v4, s5, 3, v4
    v_xor_b32 v4, v4, v24
    v_and_b32 v4, 15, v4
    v_lshlrev_b32 v4, 4, v4
    v_lshl_or_b32 v4, v24, 8, v4
    v_and_b32 v24, 3, v0
    v_lshl_or_b32 v4, v24, 2, v4
    v_add_u32 v4, {XB}, v4
    v_xor_b32 v5, 32, v4
    v_xor_b32 v6, 64, v4
    v_xor_b32 v7, 96, v4
    s_lshr_b32 s22, s4, 1
    s_and_b32 s21, s4, 1
    s_lshl_b32 s23, s22, 12
    s_add_u32 s23, s23, {XB}
    v_xor_b32 v18, v76, v77
    v_lshlrev_b32 v18, 4, v18
    v_lshl_or_b32 v18, v77, 8, v18
    v_add_u32 v18, s23, v18
    v_xor_b32 v19, 64, v18
    v_xor_b32 v20, 128, v18
    v_xor_b32 v21, 192, v18
    v_bfe_u32 v22, v3, 2, 2
    v_lshl_add_u32 v14, v76, 3, v22
    v_lshlrev_b32 v14, 7, v14
    v_lshrrev_b32 v22, 1, v22
    v_and_b32 v23, 1, v76
    v_lshl_or_b32 v22, v23, 1, v22
    v_lshl_or_b32 v14, v22, 5, v14
    v_lshl_or_b32 v14, v24, 3, v14
    s_lshl_b32 s23, s21, 14
    s_add_u32 s23, s23, {WA}
    v_add_u32 v14, s23, v14
    v_xor_b32 v15, 32, v14
    v_xor_b32 v16, 64, v14
    v_xor_b32 v17, 96, v14
    s_lshl_b32 s23, s22, 14
    s_lshl_b32 s22, s21, 8
    s_add_u32 s23, s23, s22
    s_add_u32 s23, s23, 512
    v_lshlrev_b32 v22, 12, v76
    v_lshl_or_b32 v22, v77, 4, v22
    v_add_u32 v22, s23, v22
    s_cmp_eq_u32 s21, 0
    s_cselect_b32 s76, {hex(NLOG2E)}, 1.0
    s_cselect_b32 s21, {hex(M60)}, 0
    v_mov_b32 v23, s21
    k2_noaddr:
    """)
    order = [4, 5, 3, 6, 2, 7, 8, 1]
    for r in order:
        A(f's_cmp_eq_u32 s89, {r}\ns_cbranch_scc1 k2_ld{r}')
    A('s_waitcnt vmcnt(0)\ns_branch k2_lddone')
    for r in order[::-1]:
        A(f'k2_ld{r}:\ns_waitcnt vmcnt({r})')
        if r != order[0]: A('s_branch k2_lddone')
    A('k2_lddone:')
    A('s_waitcnt lgkmcnt(0)\ns_barrier')
    stamp(A, prof, 2)
    A('s_cmp_eq_u32 s7, 0\ns_cbranch_scc1 k2_gemmdone')
    XF = 74; WF = 90; AC = 26
    steps = [(s, c) for s in range(4) for c in range(4)]
    PD = 4
    def rd(i):
        s, c = steps[i]; b = WF + 4 * (i % 8)
        for u in range(2):
            A(f'ds_read_b64_tr_b16 v[{b+2*u}:{b+2*u+1}], v{14+c} offset:{(32*s+4*u)*128}')
    A('s_cmp_ge_u32 s4, 10\ns_cbranch_scc1 k2_nogemm')
    for s in range(4):
        A(f'ds_read_b128 v[{XF+4*s}:{XF+4*s+3}], v{18+s}')
    for i in range(PD): rd(i)
    for i in range(16):
        s, c = steps[i]; b = WF + 4 * (i % 8)
        if i + PD < 16:
            rd(i + PD); A(f's_waitcnt lgkmcnt({2*PD})')
        else:
            A(f's_waitcnt lgkmcnt({2*(15-i)})')
        acc = AC + 4 * c
        cin = '0' if s == 0 else f'v[{acc}:{acc+3}]'
        A(f'v_mfma_f32_16x16x32_bf16 v[{acc}:{acc+3}], v[{XF+4*s}:{XF+4*s+3}], v[{b}:{b+3}], {cin}')
    for c in range(4):
        A(f'ds_read_b32 v{4+c}, v{4+c}')
    A('s_nop 3')
    for i in range(4):
        for c in range(4):
            A(f'v_fma_f32 v{XF+4*i+c}, v{AC+4*c+i}, s76, v23')
        A(f'ds_write_b128 v22, v[{XF+4*i}:{XF+4*i+3}] offset:{i*1024}')
    A(f"""
    k2_nogemm:
    ds_read_u16 v14, v25
    ds_read_u16 v15, v25 offset:128
    ds_read_u16 v16, v25 offset:256
    ds_read_u16 v17, v25 offset:384
    s_mov_b32 s20, {hex(NLOG2E)}
    s_waitcnt lgkmcnt(0)
    """)
    for k in range(4):
        A(f'v_lshlrev_b32 v{14+k}, 16, v{14+k}')
    for k in range(4):
        A(f'v_mul_f32 v{14+k}, s20, v{14+k}')
    A('v_cvt_pk_bf16_f32 v8, v14, v15\nv_cvt_pk_bf16_f32 v9, v16, v17')
    A('k2_gemmdone:')
    stamp(A, prof, 3)
    A(f'v_mov_b32 v14, 1\nv_mov_b32 v15, {CNT}\ns_waitcnt vmcnt(0)')
    if PF:
        A('s_mov_b64 exec, s[80:81]\nbuffer_load_dword v122, v[10:11], s[48:51], 0 idxen offen')
    stamp(A, prof, 4)
    A('k2_rank:')
    for r in range(R_):
        A(f's_mov_b64 exec, s[{MK+2*r}:{MK+2*r+1}]')
        A(f's_cbranch_execz k2_rankdone')
        A(f'v_lshrrev_b32 v{TA+r}, 14, v{RC+4*r+2}')
        A(f'v_add_u32 v{TA+r}, v15, v{TA+r}')
        A(f'ds_add_rtn_u32 v{RC+4*r+3}, v{TA+r}, v14')
    A(f"""
    v_cmp_lt_i32 vcc, {4*R_}, v2
    s_and_b64 exec, exec, vcc
    s_cbranch_execz k2_rankdone
    ds_write_b32 v15, v14 offset:{MISC - CNT}
    k2_rankdone:
    s_mov_b64 exec, -1
    s_waitcnt lgkmcnt(0)
    s_barrier
    """)
    stamp(A, prof, 5)
    A(f"""
    s_cmp_lg_u32 s4, 0
    s_cbranch_scc1 k2_noscan
    v_lshl_add_u32 v16, v3, 3, v15
    ds_read_b64 v[18:19], v16
    s_waitcnt lgkmcnt(0)
    v_add_u32 v18, 1, v18
    v_add_u32 v19, 1, v19
    v_and_b32 v18, -2, v18
    v_and_b32 v19, -2, v19
    v_add_u32 v20, v18, v19
    v_mov_b32 v21, v20
    """)
    scan64(A, 20)
    A(f"""
    v_sub_u32 v20, v20, v21
    v_add_u32 v21, v20, v18
    ds_write_b64 v16, v[20:21] offset:{STA - CNT}
    s_waitcnt lgkmcnt(0)
    k2_noscan:
    s_barrier
    """)
    stamp(A, prof, 6)
    A(f"""
    ds_read_b32 v16, v15 offset:{STA - CNT + 4*100}
    ds_read_b32 v17, v15 offset:{MISC - CNT}
    """)
    for r in range(R_):
        A(f's_mov_b64 exec, s[{MK+2*r}:{MK+2*r+1}]')
        A(f's_cbranch_execz k2_st')
        A(f'ds_read_b32 v{TB+r}, v{TA+r} offset:{STA - CNT}')
    A(f"""
    k2_st:
    s_mov_b64 exec, -1
    v_lshl_add_u32 v18, v0, 2, v15
    s_cmp_ge_u32 s4, 2
    s_cbranch_scc1 k2_nopad0
    ds_read_b32 v19, v18
    ds_read_b32 v20, v18 offset:{STA - CNT}
    k2_nopad0:
    s_mov_b32 s20, {EL}
    s_mov_b32 s21, {PL}
    s_waitcnt lgkmcnt(0)
    v_readfirstlane_b32 s22, v16
    v_readfirstlane_b32 s86, v17
    s_cmp_gt_u32 s22, {CAPT}
    s_cbranch_scc1 k2_shrink
    s_cmp_ge_u32 s4, 2
    s_cbranch_scc1 k2_nopad
    v_subrev_u32 v21, 80, v0
    v_cmp_gt_u32 vcc, 80, v0
    v_mov_b32 v22, 0
    v_mov_b32 v23, 0
    v_min_u32 v24, 79, v0
    v_lshlrev_b32 v24, 16, v24
    v_or_b32 v24, {N}, v24
    v_cndmask_b32 v25, v21, v19, vcc
    v_add_u32 v20, v20, v25
    v_and_b32 v19, 1, v19
    v_cmp_eq_u32 vcc, 1, v19
    v_cmp_gt_u32 s[76:77], 8, v21
    s_or_b64 exec, vcc, s[76:77]
    s_cbranch_execz k2_nopad
    v_lshl_add_u32 v25, v20, 3, s20
    v_lshl_add_u32 v20, v20, 2, s21
    ds_write_b64 v25, v[22:23]
    ds_write_b32 v20, v24
    k2_nopad:
    """)
    for r in range(R_):
        A(f's_mov_b64 exec, s[{MK+2*r}:{MK+2*r+1}]')
        A(f's_cbranch_execz k2_scat')
        A(f'v_add_u32 v{TB+r}, v{TB+r}, v{RC+4*r+3}')
        A(f'v_lshl_add_u32 v{TA+r}, v{TB+r}, 3, s20')
        A(f'v_lshl_add_u32 v{TB+r}, v{TB+r}, 2, s21')
        A(f'ds_write_b64 v{TA+r}, v[{RC+4*r}:{RC+4*r+1}]')
        A(f'ds_write_b32 v{TB+r}, v{RC+4*r+2}')
    A(f"""
    k2_scat:
    s_mov_b64 exec, -1
    v_lshrrev_b32 v16, 4, v3
    v_bfe_u32 v17, v3, 2, 2
    s_add_u32 s22, s22, 6
    s_lshr_b32 s22, s22, 3
    s_lshr_b32 s23, s22, 4
    s_and_b32 s22, s22, 15
    s_mul_i32 s87, s23, s4
    s_min_u32 s88, s4, s22
    s_add_u32 s87, s87, s88
    s_cmp_lt_u32 s4, s22
    s_addc_u32 s23, s23, 0
    s_lshl_b32 s87, s87, 2
    v_mov_b32 v18, s87
    v_mad_u32_u24 v14, v16, s23, v18
    v_mad_u32_u24 v17, v17, s23, v18
    v_lshl_add_u32 v14, v14, 3, s21
    v_lshl_add_u32 v15, v17, 4, s20
    v_and_b32 v19, 15, v3
    v_lshlrev_b32 v23, 4, v19
    v_mov_b32 v25, v23
    s_lshl_b32 s88, s4, 2
    v_add_u32 v21, s88, v16
    v_lshl_add_u32 v18, v21, 9, v23
    v_add_u32 v18, {HEAD}, v18
    v_add_u32 v21, 1, v21
    v_mov_b32 v20, 1
    v_mov_b32 v26, {ZER}
    v_mov_b32 v10, 32
    v_cndmask_b32 v15, v26, v15, s[58:59]
    v_cndmask_b32 v11, 0, 64, s[58:59]
    v_mov_b64 v[34:35], 0
    v_mov_b64 v[36:37], 0
    v_mov_b64 v[38:39], 0
    v_mov_b64 v[40:41], 0
    s_mov_b32 s76, 0x00010001
    s_mov_b32 s77, 0x00010001
    s_mov_b64 s[82:83], 0
    s_mov_b64 s[84:85], 0
    """)
    TP = 50
    for k in range(8):
        A(f'v_mov_b32 v{TP+2*k+1}, v23')
    A('s_waitcnt lgkmcnt(0)\ns_barrier')
    stamp(A, prof, 7)
    dbg_mid(A, 92)
    RB = 70; DD = [42, 102]; ND = [16, 17, 19, 110]; MS = [82, 84]
    Ha = 50; Hb = 54; P = 58; Sg = 62; Q = 66; DEN = 34; NUM = 38
    def y1(d): return f'v_mfma_f32_16x16x16_bf16 v[{d}:{d+3}], v[26:27], v[8:9], v[30:33]'
    def y2(d): return f'v_mfma_f32_16x16x16_bf16 v[{d+4}:{d+7}], v[28:29], v[8:9], v[30:33]'
    def y3(d, r): return f'v_mfma_f32_4x4x4_16b_bf16 v[{d}:{d+3}], v[12:13], v[{r}:{r+1}], v[{d}:{d+3}]'
    def y4(d, r): return f'v_mfma_f32_4x4x4_16b_bf16 v[{d+4}:{d+7}], v[12:13], v[{r+4}:{r+5}], v[{d+4}:{d+7}]'
    A('s_sub_u32 s23, s23, 1\ns_cbranch_scc1 k2_loopdone')
    for k in range(8):
        A(f'ds_read_u16 v{TP+2*k}, v14 offset:{4*k}')
    A(f"""
    ds_read_u16 v{ND[0]}, v14 offset:2
    ds_read_b128 v[26:29], v15
    ds_read_u16 v{ND[1]}, v14 offset:10
    ds_read_u16 v{ND[2]}, v14 offset:18
    ds_read_u16 v22, v14 offset:32
    ds_read_u16 v24, v14 offset:36
    """)
    for k in range(4):
        A(f's_waitcnt lgkmcnt({12-2*k})')
        A(f'buffer_load_dwordx4 v[{RB+8*k}:{RB+8*k+3}], v[{TP+4*k}:{TP+4*k+1}], s[48:51], 0 idxen offen')
        A(f'buffer_load_dwordx4 v[{RB+8*k+4}:{RB+8*k+7}], v[{TP+4*k+2}:{TP+4*k+3}], s[48:51], 0 idxen offen')
    A(f"""
    s_waitcnt lgkmcnt(5)
    v_lshl_add_u32 v58, v{ND[0]}, 10, v23
    ds_read_b128 v[30:33], v58 offset:512
    v_lshlrev_b32 v58, 3, v{ND[0]}
    v_add_u32 v58, {HIN}, v58
    s_mov_b64 exec, s[76:77]
    ds_add_u32 v58, v20
    ds_max_u32 v58, v21 offset:4
    s_mov_b64 exec, -1
    s_waitcnt lgkmcnt(2)
    {y1(DD[0])}
    v_cmp_ne_u32 s[{MS[0]}:{MS[0]+1}], v{ND[0]}, v{ND[1]}
    v_lshl_add_u32 v58, v{ND[1]}, 10, v23
    {y2(DD[0])}
    ds_read_b128 v[26:29], v15 offset:16
    ds_read_b128 v[30:33], v58 offset:512
    s_waitcnt vmcnt(6)
    s_nop 2
    {y3(DD[0], RB)}
    {y4(DD[0], RB)}
    s_waitcnt lgkmcnt(0)
    s_nop 1
    """)
    stamp(A, prof, 17)
    A('k2_loop:')
    for u in range(4):
        D = DD[u & 1]; Dn = DD[(u + 1) & 1]; Da = D; Db = D + 4
        Rc = RB + 8 * u; Rn = RB + 8 * ((u + 1) % 4)
        g0 = 's_nop 0' if 'nogather' in OPT else f'buffer_load_dwordx4 v[{Rc}:{Rc+3}], v[22:23], s[48:51], 0 idxen offen'
        g1 = 's_nop 0' if 'nogather' in OPT else f'buffer_load_dwordx4 v[{Rc+4}:{Rc+7}], v[24:25], s[48:51], 0 idxen offen'
        e = [f'v_exp_f32_e64 v{D+i}, v{D+i} clamp' for i in range(8)]
        if 'noprio' not in OPT: A(f's_setprio {3-u}')
        A(f"""
        v_mfma_f32_4x4x4_16b_bf16 v[{Ha}:{Ha+3}], v[12:13], v[{Rc+2}:{Rc+3}], 0
        {e[0]}
        v_mfma_f32_4x4x4_16b_bf16 v[{Hb}:{Hb+3}], v[12:13], v[{Rc+6}:{Rc+7}], 0
        {e[1]}
        {y1(Dn)}
        {e[2]}
        {g0}
        {e[3]}
        {g1}
        {e[4]}
        {y2(Dn)}
        {e[5]}
        ds_read_b128 v[26:29], v15 offset:{(u+2)*16}
        ds_read_u16 v22, v14 offset:{(u+5)*8}
        {e[6]}
        ds_read_u16 v24, v14 offset:{(u+5)*8+4}
        ds_read_u16 v{ND[(u+3)%4]}, v14 offset:{(u+3)*8+2}
        v_cmp_ne_u32 vcc, v{ND[(u+1)%4]}, v{ND[(u+2)%4]}
        {e[7]}
        {'s_nop 0' if 'noev' in OPT else f's_cbranch_vccnz k2_eva{u}'}
        k2_bka{u}:
        v_pk_add_f32 {pr(Da)}, {pr(Da)}, s[56:57]
        v_pk_add_f32 {pr(Db)}, {pr(Db)}, s[56:57]
        v_pk_add_f32 {pr(Da+2)}, {pr(Da+2)}, s[56:57]
        v_pk_add_f32 {pr(Db+2)}, {pr(Db+2)}, s[56:57]
        v_pk_mul_f32 {pr(P)}, {pr(Da)}, {pr(Db)}
        v_pk_mul_f32 {pr(P+2)}, {pr(Da+2)}, {pr(Db+2)}
        v_pk_mul_f32 {pr(Q)}, {pr(Db)}, {pr(Ha)}
        s_waitcnt vmcnt(6) lgkmcnt(4)
        {y3(Dn, Rn)}
        v_rcp_f32 v{P}, v{P}
        {y4(Dn, Rn)}
        v_rcp_f32 v{P+1}, v{P+1}
        v_rcp_f32 v{P+2}, v{P+2}
        v_rcp_f32 v{P+3}, v{P+3}
        v_pk_mul_f32 {pr(Q+2)}, {pr(Db+2)}, {pr(Ha+2)}
        v_pk_add_f32 {pr(Sg)}, {pr(Da)}, {pr(Db)}
        v_pk_add_f32 {pr(Sg+2)}, {pr(Da+2)}, {pr(Db+2)}
        v_pk_fma_f32 {pr(Q)}, {pr(Da)}, {pr(Hb)}, {pr(Q)}
        v_pk_fma_f32 {pr(Q+2)}, {pr(Da+2)}, {pr(Hb+2)}, {pr(Q+2)}
        """)
        if u == 3:
            A('v_lshl_add_u64 v[14:15], v[14:15], 0, v[10:11]')
        A(f"""
        v_pk_fma_f32 {pr(DEN)}, {pr(Sg)}, {pr(P)}, {pr(DEN)}
        v_pk_fma_f32 {pr(DEN+2)}, {pr(Sg+2)}, {pr(P+2)}, {pr(DEN+2)}
        v_pk_fma_f32 {pr(NUM)}, {pr(Q)}, {pr(P)}, {pr(NUM)}
        v_pk_fma_f32 {pr(NUM+2)}, {pr(Q+2)}, {pr(P+2)}, {pr(NUM+2)}
        s_sub_u32 s23, s23, 1
        s_cbranch_scc1 k2_flush
        s_waitcnt lgkmcnt(0)
        s_cmp_lg_u64 s[{MS[u&1]}:{MS[u&1]+1}], 0
        """)
        if u == 3:
            A('s_cbranch_scc0 k2_loop')
        else:
            A(f's_cbranch_scc1 k2_evb{u}\nk2_bkb{u}:')
    for u in (3, 0, 1, 2):
        m = MS[u & 1]
        A(f"""
        k2_evb{u}:
        s_mov_b64 exec, s[{m}:{m+1}]
        ds_write_b128 v18, v[34:37]
        ds_write_b128 v18, v[38:41] offset:256
        v_lshl_add_u32 v18, v{ND[(u+1)%4]}, 10, v23
        s_mov_b64 s[{m}:{m+1}], 0
        ds_read_b128 v[34:37], v18
        ds_read_b128 v[38:41], v18 offset:256
        s_mov_b64 exec, -1
        s_branch {'k2_loop' if u == 3 else f'k2_bkb{u}'}
        """)
    for u in range(4):
        m = MS[(u + 1) & 1]
        A(f"""
        k2_eva{u}:
        s_mov_b64 exec, vcc
        v_lshl_add_u32 v111, v{ND[(u+2)%4]}, 10, v23
        s_mov_b64 s[{m}:{m+1}], vcc
        ds_read_b128 v[30:33], v111 offset:512
        s_mov_b64 exec, -1
        s_branch k2_bka{u}
        """)
    A("""
    k2_flush:
    s_setprio 0
    ds_write_b128 v18, v[34:37]
    ds_write_b128 v18, v[38:41] offset:256
    k2_loopdone:
    """)
    stamp(A, prof, 8)
    A(f"""
    v_lshrrev_b32 v14, 3, v0
    v_and_b32 v15, 7, v0
    v_lshlrev_b32 v17, 5, v15
    v_lshl_or_b32 v16, v14, 10, v17
    v_lshlrev_b32 v15, 2, v15
    v_lshl_or_b32 v15, v14, 8, v15
    v_lshlrev_b32 v14, 3, v14
    v_add_u32 v14, {HIN}, v14
    v_add_u32 v17, {HEAD - 512}, v17
    s_waitcnt lgkmcnt(0)
    s_barrier
    """)
    stamp(A, prof, 9)
    dbg_mid(A, 90)
    A(f"""
    s_cmp_ge_u32 s4, 10
    s_cbranch_scc1 k2_merged
    ds_read_b64 v[18:19], v14
    ds_read_b128 v[20:23], v16
    ds_read_b128 v[24:27], v16 offset:16
    ds_read_b128 v[28:31], v16 offset:256
    ds_read_b128 v[32:35], v16 offset:272
    ds_read_b128 v[36:39], v16 offset:768
    ds_read_b128 v[40:43], v16 offset:784
    s_waitcnt lgkmcnt(6)
    v_lshl_add_u32 v19, v19, 9, v17
    k2_mloop:
    v_cmp_lt_u32 vcc, 0, v18
    s_and_b64 exec, exec, vcc
    s_cbranch_execz k2_mdone
    ds_read_b128 v[44:47], v19
    ds_read_b128 v[48:51], v19 offset:16
    ds_read_b128 v[52:55], v19 offset:256
    ds_read_b128 v[56:59], v19 offset:272
    v_subrev_u32 v18, 1, v18
    v_subrev_u32 v19, 512, v19
    s_waitcnt lgkmcnt(0)
    """)
    for k in range(8):
        A(f'v_pk_add_f32 {pr(20+2*k)}, {pr(20+2*k)}, {pr(44+2*k)}')
    A(f"""
    s_branch k2_mloop
    k2_mdone:
    s_mov_b64 exec, -1
    s_waitcnt lgkmcnt(0)
    k2_merged:
    s_cmp_lg_u32 s86, 0
    s_cbranch_scc1 k2_more
    s_cmp_ge_u32 s4, 10
    s_cbranch_scc1 k2_fin
    s_mov_b32 s20, {hex(EPS60)}
    s_mov_b32 s21, {hex(EPS60)}
    """)
    for k in range(4):
        A(f'v_pk_add_f32 {pr(20+2*k)}, {pr(20+2*k)}, s[20:21]')
    for k in range(8):
        A(f'v_rcp_f32 v{20+k}, v{20+k}')
    for k in range(4):
        A(f'v_lshlrev_b32 v{44+k}, 16, v{4+k}')
        A(f'v_and_b32 v{48+k}, 0xffff0000, v{4+k}')
    for k in range(4):
        A(f'v_pk_fma_f32 {pr(28+2*k)}, {pr(28+2*k)}, {pr(20+2*k)}, {pr(36+2*k)}')
    for k in range(8):
        A(f'v_max_f32 v{28+k}, 0, v{28+k}')
    for k in range(4):
        A(f'v_pk_add_f32 {pr(28+2*k)}, {pr(28+2*k)}, {pr(44+2*k)}')
    for k in range(4):
        A(f'v_cvt_pk_bf16_f32 v{20+k}, v{28+k}, v{32+k}')
        A(f'buffer_store_dword v{20+k}, v15, s[52:55], 0 offen offset:{32*k}' + (' nt' if 'nto' in OPT else ''))
    A('k2_fin:')
    stamp(A, prof, 10)
    if prof:
        A('s_waitcnt vmcnt(0)')
        stamp(A, prof, 11)
        stamp_out(A, prof, 18, 19, 4, 1)
    dbg_end(A, 2)
    A('k2_exit:\ns_endpgm')
    zero_misc = f"""
    v_mov_b32 v74, 0
    v_mov_b32 v75, 0
    v_mov_b32 v76, 0
    v_mov_b32 v77, 0
    v_lshlrev_b32 v78, 4, v0
    v_add_u32 v78, {CNT}, v78
    v_cmp_gt_u32 vcc, {NZ}, v0
    s_and_saveexec_b64 s[20:21], vcc
    ds_write_b128 v78, v[74:77]
    s_mov_b64 exec, s[20:21]
    """
    A(f"""
    k2_more:
    s_waitcnt vmcnt(0)
    s_cmp_ge_u32 s4, 10
    s_cbranch_scc1 k2_more1
    ds_write_b128 v16, v[20:23]
    ds_write_b128 v16, v[24:27] offset:16
    ds_write_b128 v16, v[28:31] offset:256
    ds_write_b128 v16, v[32:35] offset:272
    k2_more1:
    s_waitcnt lgkmcnt(0)
    s_barrier
    """)
    A(zero_misc)
    A(f"""
    s_mul_i32 s20, s79, 12
    v_add_u32 v1, s20, v1
    v_subrev_u32 v2, s79, v2
    s_mov_b32 s7, 0
    s_branch k2_loadrec
    k2_shrink:
    s_barrier
    """)
    A(zero_misc)
    A(f"""
    s_mov_b64 s[{MK+6}:{MK+7}], 0
    s_mov_b32 s79, 12
    s_waitcnt lgkmcnt(0)
    s_barrier
    ds_write_b32 v15, v14 offset:{MISC - CNT}
    s_branch k2_rank
    k2_kernel_end:
    """)
    return A.text(), LDS

KD = '''.amdhsa_kernel {name}
  .amdhsa_next_free_vgpr {vgpr}
  .amdhsa_next_free_sgpr {sgpr}
  .amdhsa_accum_offset {acc}
  .amdhsa_group_segment_fixed_size 0
  .amdhsa_kernarg_size 96
  .amdhsa_user_sgpr_count 2
  .amdhsa_user_sgpr_kernarg_segment_ptr 1
  .amdhsa_system_sgpr_workgroup_id_x 1
  .amdhsa_float_denorm_mode_32 3
  .amdhsa_dx10_clamp 0
.end_amdhsa_kernel'''

def build(prof=False):
    k1, l1 = gen_k1(prof)
    k2, l2 = gen_k2(prof)
    head = open('standalone__edge_featured_mpnn_gatedgcn__graph.s.ref').read().split('\n')
    head = [h for h in head[:14]]
    out = head + [f'; @launch kernel=k1_kernel grid=(256,1,1) block=(640,1,1) lds={l1}',
                  *([f'; @launch kernel=k2_kernel grid=(256,1,1) block=(1024,1,1) lds={l2}'] * (2 if 'k2x2' in OPT else 1)),
                  '.amdgcn_target "amdgcn-amd-amdhsa--gfx950"', '.text']
    for nm, body in (('k1_kernel', k1), ('k2_kernel', k2)):
        out += [f'.globl {nm}', '.p2align 8', f'.type {nm},@function', body]
    out += ['.section .rodata,"a"', '.p2align 6', KD.format(name='k1_kernel', vgpr=128 if prof else 100, sgpr=102 if (prof or 'dbg' in OPT) else 56, acc=128 if prof else 100),
            '.p2align 6', KD.format(name='k2_kernel', vgpr=128 if prof else 124, sgpr=102 if (prof or 'dbg' in OPT) else 90, acc=128 if prof else 124)]
    return '\n'.join(out) + '\n'

if __name__ == '__main__':
    prof = '--prof' in sys.argv
    for a in sys.argv[2:]:
        if a.startswith('-O'): OPT.add(a[2:])
    dst = sys.argv[1]
    open(dst, 'w').write(build(prof))
```

```python
import sys

N = 10000; E = 320000
TABH = 10016 * 256
NPROD = 250
CH = 1280
HDRO = 2 * TABH
RECO = HDRO + 0x20000
STAMPO = 0x1000000
MAGIC = 214749
NLOG2E = 0xbfb8aa3b
C60 = 0x21800000
EPS60 = 0x538637bd
M60 = 0xc2700000

OPT = set()
class Asm:
    def __init__(self): self.L = []
    def __call__(self, s):
        for x in s.strip('\n').split('\n'): self.L.append('    ' + x.strip() if not x.strip().endswith(':') else x.strip())
    def text(self): return '\n'.join(self.L)

def srd(A, d, lo, hi, size, stride=0):
    A(f's_mov_b32 s{d}, s{lo}')
    if stride:
        A(f's_and_b32 s{d+1}, s{hi}, 0xffff')
        A(f's_or_b32 s{d+1}, s{d+1}, {hex(stride << 16)}')
    else:
        A(f's_mov_b32 s{d+1}, s{hi}')
    A(f's_mov_b32 s{d+2}, {size}')
    A(f's_mov_b32 s{d+3}, 0x00020000')

def srd_off(A, d, lo, hi, off, size, stride=0):
    A(f's_add_u32 s{d}, s{lo}, {off}')
    A(f's_addc_u32 s{d+1}, s{hi}, 0')
    if stride:
        A(f's_and_b32 s{d+1}, s{d+1}, 0xffff')
        A(f's_or_b32 s{d+1}, s{d+1}, {hex(stride << 16)}')
    A(f's_mov_b32 s{d+2}, {size}')
    A(f's_mov_b32 s{d+3}, 0x00020000')

def scan64(A, v):
    for sh in (1, 2, 4, 8):
        A('s_nop 1')
        A(f'v_add_u32_dpp v{v}, v{v}, v{v} row_shr:{sh} row_mask:0xf bank_mask:0xf bound_ctrl:0')
    A('s_nop 1')
    A(f'v_add_u32_dpp v{v}, v{v}, v{v} row_bcast:15 row_mask:0xa bank_mask:0xf')
    A('s_nop 1')
    A(f'v_add_u32_dpp v{v}, v{v}, v{v} row_bcast:31 row_mask:0xc bank_mask:0xf')

def stamp(A, prof, k, sb=90):
    if not prof: return
    A(f's_memtime s[{sb}:{sb+1}]')
    A('s_waitcnt lgkmcnt(0)')
    A(f'v_writelane_b32 v127, s{sb}, {k}')
    if k == 0:
        A(f's_memrealtime s[{sb}:{sb+1}]')
        A('s_waitcnt lgkmcnt(0)')
        A(f'v_writelane_b32 v127, s{sb}, 12')

def stamp_out(A, prof, wslo, wshi, slot_expr_sgpr, kernel_id):
    if not prof: return
    A('s_memrealtime s[90:91]')
    A('s_waitcnt lgkmcnt(0)')
    A('v_writelane_b32 v127, s90, 13')
    A('s_mov_b32 exec_lo, -1\ns_mov_b32 exec_hi, 0')
    A(f's_add_u32 s92, s{wslo}, {STAMPO + kernel_id * 0x80000}')
    A(f's_addc_u32 s93, s{wshi}, 0')
    A('s_mov_b32 s94, 0x80000')
    A('s_mov_b32 s95, 0x00020000')
    A(f's_lshl_b32 s96, s2, 4')
    A(f's_add_u32 s96, s96, s{slot_expr_sgpr}')
    A('s_lshl_b32 s96, s96, 7')
    A('s_getreg_b32 s90, hwreg(HW_REG_HW_ID)')
    A('s_getreg_b32 s91, hwreg(HW_REG_XCC_ID)')
    A('v_writelane_b32 v127, s90, 14')
    A('v_writelane_b32 v127, s91, 15')
    A('v_mbcnt_lo_u32_b32 v126, -1, 0')
    A('v_lshlrev_b32 v126, 2, v126')
    A('buffer_store_dword v127, v126, s[92:95], s96 offen')
    A('s_waitcnt vmcnt(0)')

def dbg_start(A):
    if 'dbg' not in OPT: return
    A('s_memrealtime s[96:97]')
    A('s_load_dwordx2 s[98:99], s[0:1], 80')

def dbg_mid(A, r):
    if 'dbg' not in OPT: return
    A(f's_memrealtime s[{r}:{r+1}]\ns_waitcnt lgkmcnt(0)')

def dbg_end(A, k):
    if 'dbg' not in OPT: return
    A('s_waitcnt vmcnt(0)')
    A('s_memrealtime s[94:95]')
    A('s_waitcnt lgkmcnt(0)')
    A('s_not_b32 s96, s96')
    if k < 2:
        A(f's_lshl_b32 s97, s2, 4\ns_add_u32 s97, s97, s4\ns_lshl_b32 s97, s97, 3\ns_add_u32 s97, s97, {STAMPO}')
        A('s_add_u32 s20, s20, s97\ns_addc_u32 s21, s21, 0')
        A('s_mov_b64 exec, 1')
        A('v_mov_b32 v0, 0\nv_mov_b32 v2, s96\nv_mov_b32 v3, s94')
        A('global_store_dwordx2 v0, v[2:3], s[20:21]\ns_waitcnt vmcnt(0)')
        return
    A('s_cmp_lg_u32 s4, 15\ns_cbranch_scc1 k2_exit')
    A('s_mov_b64 exec, 1')
    A('s_not_b32 s93, s92')
    A('v_mov_b32 v0, 0\nv_mov_b32 v1, s96\nv_mov_b32 v2, s94\nv_mov_b32 v3, s92\nv_mov_b32 v4, s93\nv_mov_b32 v5, s90')
    for q, v in enumerate((1, 2, 3, 4, 5)):
        A(f'global_atomic_umax v0, v{v}, s[98:99] offset:{4*q}')
    A(f's_lshr_b32 s97, s2, 4\ns_lshl_b32 s97, s97, 3\ns_and_b32 s95, s2, 7\ns_or_b32 s97, s97, s95\ns_cmp_ge_u32 s97, 125\ns_cbranch_scc1 k2_exit')
    A(f's_lshl_b32 s97, s2, 7\ns_add_u32 s97, s97, {STAMPO}')
    A('s_add_u32 s18, s18, s97\ns_addc_u32 s19, s19, 0')
    A('s_mov_b64 exec, 0x3ff')
    A('v_mbcnt_lo_u32_b32 v6, -1, 0\nv_lshlrev_b32 v6, 3, v6\nv_mov_b32 v0, 0')
    A('global_load_dwordx2 v[8:9], v6, s[18:19]\ns_waitcnt vmcnt(0)')
    A('s_bfe_u32 s97, s2, 0x10003\ns_lshl_b32 s97, s97, 3\nv_mov_b32 v0, s97')
    A('global_atomic_umax v0, v8, s[98:99] offset:32')
    A('global_atomic_umax v0, v9, s[98:99] offset:36')
    A('s_waitcnt vmcnt(0)')

def prefetch_code(A, nbytes, nthreads, vtmp, label):
    A(f's_getpc_b64 s[88:89]')
    A(f'v_lshlrev_b32 v{vtmp}, 6, v0')
    A(f'v_cmp_gt_u32 vcc, {label}_end - {label} - 64, v{vtmp}')
    A('s_and_saveexec_b64 s[86:87], vcc')
    A(f's_cbranch_execz {label}_pf')
    A(f'global_load_dword v{vtmp+1}, v{vtmp}, s[88:89]')
    A(f'{label}_pf:')
    A('s_mov_b64 exec, s[86:87]')

def gen_k1(prof):
    A = Asm()
    XB = 0; WB = 20480; WV = WB + 16384
    STG = WV + 16384; CNT = STG + CH * 12; STA = CNT + 512
    FLG = STA + 512
    LDS = CNT + 1280
    B2AT = int(([o[2:] for o in OPT if o.startswith('b2')] + ['6'])[0])
    B3AT = int(([o[2:] for o in OPT if o.startswith('b3')] + ['24'])[0])
    A('k1_kernel:')
    dbg_start(A)
    stamp(A, prof, 0)
    A("""
    s_cmp_ge_u32 s2, 256
    s_cbranch_scc1 k1_exit
    s_load_dwordx4 s[8:11], s[0:1], 0
    s_load_dwordx4 s[12:15], s[0:1], 16
    s_load_dwordx4 s[44:47], s[0:1], 32
    s_load_dwordx4 s[48:51], s[0:1], 48
    s_load_dwordx2 s[18:19], s[0:1], 64
    s_load_dwordx2 s[20:21], s[0:1], 88
    v_lshrrev_b32 v1, 6, v0
    v_and_b32 v3, 63, v0
    v_readfirstlane_b32 s4, v1
    s_and_b32 s6, s2, 1
    s_lshr_b32 s23, s2, 3
    s_cmp_ge_u32 s4, 5
    s_cbranch_scc1 k1_gemm
    """)
    A(f"""
    s_cmp_ge_u32 s2, {NPROD}
    s_cbranch_scc1 k1_exit
    v_lshlrev_b32 v1, 4, v0
    v_lshlrev_b32 v2, 5, v0
    s_mul_i32 s5, s2, {CH*4}
    s_mul_i32 s7, s2, {CH*8}
    v_mov_b32 v32, 0
    v_mov_b32 v33, 1
    v_lshlrev_b32 v34, 2, v0
    v_add_u32 v34, {CNT}, v34
    s_waitcnt lgkmcnt(0)
    """)
    srd_off(A, 24, 14, 15, 's5', CH * 4)
    NT = ' nt' if 'nt1' in OPT or 'nte' in OPT else ''
    A(f'buffer_load_dwordx4 v[4:7], v1, s[24:27], 0 offen{NT}')
    srd_off(A, 28, 12, 13, 's5', CH * 4)
    A(f'buffer_load_dwordx4 v[8:11], v1, s[28:31], 0 offen{NT}')
    srd_off(A, 32, 10, 11, 's7', CH * 8)
    A(f'buffer_load_dwordx4 v[12:15], v2, s[32:35], 0 offen{NT}')
    A(f'buffer_load_dwordx4 v[16:19], v2, s[32:35], 0 offen offset:16{NT}')
    A(f"""
    ds_write_b32 v34, v32
    s_mul_i32 s5, s2, {CH*12}
    s_add_u32 s5, s5, {RECO}
    """)
    srd_off(A, 36, 20, 21, 's5', CH * 12)
    A(f's_lshl_b32 s5, s2, 9\ns_add_u32 s5, s5, {HDRO}')
    srd_off(A, 40, 20, 21, 's5', 512)
    A(f's_mov_b32 s5, {MAGIC}\ns_movk_i32 s6, 625\ns_mov_b32 s7, {CNT}\ns_mov_b32 s22, {STG}')
    A('s_waitcnt lgkmcnt(0)\ns_barrier')
    stamp(A, prof, 1)
    A('s_waitcnt vmcnt(3)')
    stamp(A, prof, 2)
    for i in range(4):
        A(f'v_mul_u32_u24 v{20+i}, s5, v{4+i}')
    for i in range(4):
        A(f'v_lshrrev_b32 v{20+i}, 24, v{20+i}')
    for i in range(4):
        A(f'v_lshl_add_u32 v{28+i}, v{20+i}, 2, s7')
        A(f'ds_add_rtn_u32 v{24+i}, v{28+i}, v33')
    for i in range(4):
        A(f'v_mad_u32_u24 v{20+i}, v{20+i}, s6, 7')
    for i in range(4):
        A(f'v_lshrrev_b32 v{20+i}, 3, v{20+i}')
    for i in range(4):
        A(f'v_sub_u32 v{4+i}, v{4+i}, v{20+i}')
    A(f'v_lshl_add_u32 v35, v0, 3, s7\nv_lshlrev_b32 v34, 3, v0')
    A('s_waitcnt lgkmcnt(0)\ns_barrier')
    stamp(A, prof, 3)
    A(f"""
    s_cmp_lg_u32 s4, 0
    s_cbranch_scc1 k1_noscan
    ds_read_b64 v[36:37], v35
    s_waitcnt lgkmcnt(0)
    v_add_u32 v38, v36, v37
    v_mov_b32 v39, v38
    """)
    scan64(A, 38)
    A(f"""
    v_sub_u32 v38, v38, v39
    v_add_u32 v39, v38, v36
    ds_write_b64 v35, v[38:39] offset:512
    v_lshl_or_b32 v36, v36, 16, v38
    v_lshl_or_b32 v37, v37, 16, v39
    buffer_store_dwordx2 v[36:37], v34, s[40:43], 0 offen
    s_waitcnt lgkmcnt(0)
    k1_noscan:
    s_barrier
    """)
    stamp(A, prof, 4)
    for i in range(4):
        A(f'ds_read_b32 v{20+i}, v{28+i} offset:512')
    A('v_mov_b32 v34, s22\ns_waitcnt vmcnt(0)')
    for i in range(4):
        A(f'v_lshl_or_b32 v{8+i}, v{4+i}, 16, v{8+i}')
    A('s_waitcnt lgkmcnt(0)')
    for i in range(4):
        A(f'v_add_u32 v{20+i}, v{20+i}, v{24+i}')
        A(f'v_mad_u32_u24 v{20+i}, v{20+i}, 12, v34')
        A(f'ds_write2_b32 v{20+i}, v{12+2*i}, v{13+2*i} offset0:0 offset1:1')
        A(f'ds_write_b32 v{20+i}, v{8+i} offset:8')
    A(f"""
    v_add_u32 v2, {CH*4}, v1
    v_add_u32 v3, {CH*8}, v1
    v_mov_b32 v34, {FLG}
    s_waitcnt lgkmcnt(0)
    s_mov_b64 exec, 1
    ds_add_u32 v34, v33
    k1_spin:
    ds_read_b32 v35, v34
    s_waitcnt lgkmcnt(0)
    v_readfirstlane_b32 s5, v35
    s_cmp_lt_u32 s5, 5
    s_cbranch_scc1 k1_spin
    s_mov_b64 exec, -1
    """)
    stamp(A, prof, 5)
    for j in range(3):
        A(f'ds_read_b128 v[{4+4*j}:{7+4*j}], v1 offset:{STG + CH*4*j}')
    for j in range(3):
        A(f's_waitcnt lgkmcnt({2-j})')
        A(f'buffer_store_dwordx4 v[{4+4*j}:{7+4*j}], v{1+j}, s[36:39], 0 offen')
    stamp(A, prof, 6)
    if prof:
        A('s_waitcnt vmcnt(0)')
        stamp(A, prof, 7)
        stamp_out(A, prof, 20, 21, 4, 0)
    dbg_end(A, 0)
    A('s_endpgm')
    A('k1_gemm:')
    A(f"""
    s_sub_u32 s4, s4, 5
    s_bfe_u32 s3, s2, 0x20001
    s_lshl_b32 s3, s3, 5
    s_add_u32 s3, s3, s23
    s_mul_i32 s5, s3, 625
    s_add_u32 s5, s5, 7
    s_lshr_b32 s5, s5, 3
    s_lshl_b32 s5, s5, 8
    s_sub_u32 s7, {N*256}, s5
    s_lshl_b32 s22, s6, 7
    s_sub_u32 s16, 32768, s22
    v_lshrrev_b32 v4, 4, v3
    v_and_b32 v5, 15, v3
    v_xor_b32 v6, v5, v4
    v_lshlrev_b32 v6, 4, v6
    v_lshl_or_b32 v6, v4, 8, v6
    v_lshrrev_b32 v8, 3, v3
    v_and_b32 v7, 7, v3
    v_and_b32 v9, 2, v8
    v_xor_b32 v7, v7, v9
    v_lshlrev_b32 v7, 4, v7
    v_lshl_or_b32 v7, v8, 8, v7
    s_waitcnt lgkmcnt(0)
    """)
    srd_off(A, 24, 8, 9, 's5', 's7')
    srd_off(A, 28, 46, 47, 's22', 's16')
    srd_off(A, 32, 18, 19, 's22', 's16')
    A('s_barrier')
    for j in range(4):
        if j == 3:
            A('s_cmp_ge_u32 s4, 1\ns_cbranch_scc1 k1_dmadone')
        A(f"""
        s_add_u32 s17, s4, {5*j}
        s_and_b32 s40, s17, 1
        s_lshl_b32 s40, s40, 6
        s_lshl_b32 s41, s17, 11
        s_lshl_b32 s17, s17, 10
        v_xor_b32 v8, s40, v7
        s_add_u32 m0, s17, {WB}
        s_nop 0
        buffer_load_dwordx4 v8, s[28:31], s41 offen lds
        s_add_u32 m0, s17, {WV}
        s_nop 0
        buffer_load_dwordx4 v8, s[32:35], s41 offen lds
        """)
    A('k1_dmadone:')
    for j in range(4):
        A(f"""
        s_lshl_b32 s17, s4, 12
        s_add_u32 s17, s17, {1024*j}
        v_xor_b32 v8, {64*j}, v6
        s_mov_b32 m0, s17
        s_nop 0
        buffer_load_dwordx4 v8, s[24:27], s17 offen{' nt' if 'nt1' in OPT else ''} lds
        """)
    A(f"""
    s_lshl_b32 s17, s4, 12
    v_xor_b32 v8, v4, v5
    v_lshlrev_b32 v8, 4, v8
    v_lshl_or_b32 v8, v5, 8, v8
    v_add_u32 v8, s17, v8
    v_xor_b32 v9, 64, v8
    v_xor_b32 v10, 128, v8
    v_xor_b32 v11, 192, v8
    v_bfe_u32 v13, v3, 2, 2
    v_lshl_add_u32 v12, v4, 3, v13
    v_lshlrev_b32 v12, 7, v12
    v_lshrrev_b32 v13, 1, v13
    v_and_b32 v14, 1, v4
    v_lshl_or_b32 v13, v14, 1, v13
    v_lshl_or_b32 v12, v13, 5, v12
    v_and_b32 v13, 3, v3
    v_lshl_or_b32 v12, v13, 3, v12
    v_add_u32 v12, {WB}, v12
    v_xor_b32 v13, 32, v12
    v_xor_b32 v14, 64, v12
    v_xor_b32 v15, 96, v12
    s_mul_i32 s40, s6, {TABH}
    s_add_u32 s40, s40, s5
    s_add_u32 s40, s40, s17
    s_sub_i32 s41, s7, s17
    s_min_i32 s41, s41, 4096
    """)
    srd_off(A, 36, 20, 21, 's40', 's41')
    PFK = 'nok2pf' not in OPT
    if PFK:
        srd_off(A, 28, 44, 45, 's22', 's16')
        srd_off(A, 32, 50, 51, 's22', 's16')
        A(f"""
        s_lshl_b32 s40, s23, 10
        v_lshlrev_b32 v96, 8, v3
        s_getpc_b64 s[42:43]
        k1_pc:
        s_add_u32 s42, s42, k2_kernel - k1_pc
        s_addc_u32 s43, s43, 0
        s_lshl_b32 s41, s23, 8
        v_lshlrev_b32 v97, 7, v3
        v_add_u32 v97, s41, v97
        v_cmp_gt_u32 vcc, k2_kernel_end - k2_kernel - 4, v97
        s_and_b32 vcc_lo, vcc_lo, 3
        s_mov_b32 vcc_hi, 0
        """)
    A(f"""
    v_lshlrev_b32 v6, 10, v4
    v_lshl_or_b32 v6, v5, 4, v6
    s_mov_b32 s16, {hex(NLOG2E)}
    s_mov_b32 s17, {hex(NLOG2E)}
    s_waitcnt vmcnt(4)
    s_barrier
    s_barrier
    """)
    stamp(A, prof, 1)
    XF = 16
    WF = 32
    AC = 64
    steps = [(s, m, c) for s in range(4) for m in range(2) for c in range(4)]
    PD = 4
    def rd(i):
        s, m, c = steps[i]; b = WF + 4 * (i % 8)
        for u in range(2):
            A(f'ds_read_b64_tr_b16 v[{b+2*u}:{b+2*u+1}], v{12+c} offset:{m*16384 + (32*s+4*u)*128}')
    for i in range(PD): rd(i)
    A('s_waitcnt vmcnt(0)')
    if PFK:
        A("""
        s_cmp_lg_u32 s4, 4
        s_cbranch_scc1 k1_nopf
        s_mov_b64 exec, 15
        buffer_load_dword v98, v96, s[28:31], s40 offen
        buffer_load_dword v98, v96, s[32:35], s40 offen
        s_mov_b64 exec, vcc
        s_cbranch_execz k1_nopf
        global_load_dword v98, v97, s[42:43]
        k1_nopf:
        s_mov_b64 exec, -1
        """)
    stamp(A, prof, 2)
    for s in range(4):
        A(f'ds_read_b128 v[{XF+4*s}:{XF+4*s+3}], v{8+s} offset:{XB}')
    A('s_waitcnt lgkmcnt(0)')
    for i in range(32):
        s, m, c = steps[i]; b = WF + 4 * (i % 8)
        if i + PD < 32:
            rd(i + PD); A(f's_waitcnt lgkmcnt({2*PD})')
        else:
            A(f's_waitcnt lgkmcnt({2*(31-i)})')
        acc = AC + 16 * m + 4 * c
        cin = '0' if s == 0 else f'v[{acc}:{acc+3}]'
        A(f'v_mfma_f32_16x16x32_bf16 v[{acc}:{acc+3}], v[{XF+4*s}:{XF+4*s+3}], v[{b}:{b+3}], {cin}')
    stamp(A, prof, 3)
    A('s_nop 3')
    for c in range(4):
        for u in range(2):
            A(f'v_pk_mul_f32 v[{AC+4*c+2*u}:{AC+4*c+2*u+1}], v[{AC+4*c+2*u}:{AC+4*c+2*u+1}], s[16:17]')
    for i in range(4):
        o = 16 + 4 * i
        A(f'v_cvt_pk_bf16_f32 v{o}, v{AC+i}, v{AC+4+i}')
        A(f'v_cvt_pk_bf16_f32 v{o+1}, v{AC+8+i}, v{AC+12+i}')
        A(f'v_cvt_pk_bf16_f32 v{o+2}, v{AC+16+i}, v{AC+20+i}')
        A(f'v_cvt_pk_bf16_f32 v{o+3}, v{AC+24+i}, v{AC+28+i}')
        A(f'buffer_store_dwordx4 v[{o}:{o+3}], v6, s[36:39], 0 offen offset:{256*i}')
    A(f"""
    s_or_b32 s40, s4, s3
    s_cmp_lg_u32 s40, 0
    s_cbranch_scc1 k1_nonull
    s_mul_i32 s40, s6, {TABH}
    s_add_u32 s40, s40, {N*256}
    """)
    srd_off(A, 24, 20, 21, 's40', 256)
    A("""
    v_mov_b32 v32, 0x7f7f7f7f
    v_mov_b32 v33, 0x7f7f7f7f
    v_mov_b32 v34, 0
    v_mov_b32 v35, 0
    v_lshlrev_b32 v7, 4, v3
    buffer_store_dwordx4 v[32:35], v7, s[24:27], 0 offen
    k1_nonull:
    """)
    stamp(A, prof, 6)
    if prof:
        A('s_waitcnt vmcnt(0)\ns_add_u32 s4, s4, 5')
        stamp(A, prof, 7)
        stamp_out(A, prof, 20, 21, 4, 0)
    if 'dbg' in OPT: A('s_add_u32 s4, s4, 5')
    dbg_end(A, 1)
    A('k1_exit:')
    A('s_endpgm')
    A('k1_kernel_end:')
    return A.text(), LDS

def gen_k2(prof):
    A = Asm()
    HEAD = 81920
    XB = HEAD; WA = XB + 20480; WU = WA + 16384
    EL = HEAD + 32768; CAPR = 3904; PL = EL + CAPR * 8
    CAPT = CAPR - 16
    CNT = PL + CAPR * 4; STA = CNT + 512; HIN = STA + 512; MISC = HIN + 640; ZER = MISC + 16
    NZ = (ZER + 96 - CNT) // 16
    LDS = ZER + 96
    assert LDS <= 163840 and WU + 16384 <= CNT
    RC = 42
    R_ = 8
    MK = 60
    TA = 74; TB = 82
    def pr(a): return f'v[{a}:{a+1}]'
    WC = WU + 16384
    assert WC + 512 <= CNT
    PF = 0 if 'nopf' in OPT else int(([o[2:] for o in OPT if o.startswith('pf')] + ['14'])[0])
    PA = int(([o[2:] for o in OPT if o.startswith('pa')] + ['0'])[0])
    A('k2_kernel:')
    dbg_start(A)
    stamp(A, prof, 0)
    A("""
    s_cmp_ge_u32 s2, 256
    s_cbranch_scc1 k2_exit
    s_load_dwordx2 s[18:19], s[0:1], 88
    s_load_dwordx2 s[8:9], s[0:1], 0
    s_load_dwordx2 s[10:11], s[0:1], 32
    s_load_dwordx4 s[12:15], s[0:1], 48
    s_load_dwordx2 s[16:17], s[0:1], 72
    s_mov_b32 s100, 1
    v_lshrrev_b32 v1, 6, v0
    v_and_b32 v3, 63, v0
    v_readfirstlane_b32 s4, v1
    s_bfe_u32 s3, s2, 0x20001
    s_lshl_b32 s3, s3, 5
    s_lshr_b32 s78, s2, 3
    s_add_u32 s3, s3, s78
    s_and_b32 s5, s2, 1
    s_mul_i32 s6, s3, 625
    s_add_u32 s7, s6, 632
    s_add_u32 s6, s6, 7
    s_lshr_b32 s6, s6, 3
    s_lshr_b32 s7, s7, 3
    s_sub_u32 s7, s7, s6
    v_lshrrev_b32 v1, 2, v0
    v_lshlrev_b32 v2, 9, v1
    s_lshl_b32 s20, s3, 2
    v_lshrrev_b32 v66, 4, v3
    v_and_b32 v67, 15, v3
    v_xor_b32 v72, v67, v66
    v_lshlrev_b32 v72, 4, v72
    v_lshl_or_b32 v68, v66, 8, v72
    s_and_b32 s21, s4, 3
    s_lshl_b32 s21, s21, 6
    v_xor_b32 v68, s21, v68
    v_lshrrev_b32 v69, 3, v3
    v_and_b32 v70, 7, v3
    v_lshlrev_b32 v70, 4, v70
    v_lshl_or_b32 v73, v69, 8, v70
    v_and_b32 v71, 16, v3
    s_and_b32 s21, s4, 1
    s_lshl_b32 s21, s21, 6
    v_lshl_or_b32 v71, v71, 1, s21
    v_xor_b32 v70, v73, v71
    v_and_b32 v24, 3, v0
    """)
    A(f"""
    v_mul_u32_u24 v1, {CH*12}, v1
    v_lshlrev_b32 v25, 1, v3
    s_cmp_ge_u32 s4, 10
    s_cbranch_scc1 k2_noaddr
    v_lshrrev_b32 v74, 3, v0
    v_bfe_u32 v4, v0, 2, 1
    v_lshl_or_b32 v4, s5, 3, v4
    v_xor_b32 v4, v4, v74
    v_and_b32 v4, 15, v4
    v_lshlrev_b32 v74, 8, v74
    v_lshl_or_b32 v4, v4, 4, v74
    v_lshl_or_b32 v4, v24, 2, v4
    v_add_u32 v4, {XB}, v4
    v_xor_b32 v5, 32, v4
    v_xor_b32 v6, 64, v4
    v_xor_b32 v7, 96, v4
    s_lshr_b32 s22, s4, 1
    s_and_b32 s21, s4, 1
    s_lshl_b32 s23, s22, 12
    s_add_u32 s23, s23, {XB}
    v_lshl_or_b32 v18, v67, 8, v72
    v_add_u32 v18, s23, v18
    v_xor_b32 v19, 64, v18
    v_xor_b32 v20, 128, v18
    v_xor_b32 v21, 192, v18
    v_bfe_u32 v22, v3, 2, 2
    v_lshl_add_u32 v14, v66, 3, v22
    v_bfe_u32 v22, v3, 3, 2
    v_lshlrev_b32 v22, 5, v22
    v_lshl_or_b32 v14, v14, 7, v22
    v_lshl_or_b32 v14, v24, 3, v14
    s_lshl_b32 s23, s21, 14
    s_add_u32 s23, s23, {WA}
    v_add_u32 v14, s23, v14
    v_xor_b32 v15, 32, v14
    v_xor_b32 v16, 64, v14
    v_xor_b32 v17, 96, v14
    s_lshl_b32 s23, s22, 14
    s_lshl_b32 s22, s21, 8
    s_add_u32 s23, s23, s22
    s_add_u32 s23, s23, 512
    v_lshlrev_b32 v22, 12, v66
    v_lshl_or_b32 v22, v67, 4, v22
    v_add_u32 v22, s23, v22
    s_cmp_eq_u32 s21, 0
    s_cselect_b32 s76, {hex(NLOG2E)}, 1.0
    s_cselect_b32 s21, {hex(M60)}, 0
    v_mov_b32 v23, s21
    k2_noaddr:
    s_waitcnt lgkmcnt(0)
    """)
    srd_off(A, 24, 18, 19, HDRO, NPROD * 512)
    A('buffer_load_dword v2, v2, s[24:27], s20 offen')
    A('s_lshl_b32 s20, s6, 8')
    A(f's_sub_u32 s21, {N*256}, s20')
    srd_off(A, 28, 8, 9, 's20', 's21')
    A('s_lshl_b32 s22, s5, 7\ns_sub_u32 s23, 32768, s22')
    srd_off(A, 32, 10, 11, 's22', 's23')
    srd_off(A, 36, 14, 15, 's22', 's23')
    A('s_sub_u32 s23, 1024, s22')
    srd_off(A, 40, 12, 13, 's22', 's23')
    if 'hb' in OPT: A('s_barrier')
    A(f"""
    s_lshl_b32 s20, s4, 10
    s_lshl_b32 s21, s4, 11
    s_add_u32 m0, s20, {XB}
    s_nop 0
    buffer_load_dwordx4 v68, s[28:31], s20 offen lds
    s_add_u32 m0, s20, {WA}
    s_nop 0
    buffer_load_dwordx4 v70, s[32:35], s21 offen lds
    s_add_u32 m0, s20, {WU}
    s_nop 0
    buffer_load_dwordx4 v70, s[36:39], s21 offen lds
    s_cmp_ge_u32 s4, 5
    s_cbranch_scc1 k2_nox2
    s_cmp_eq_u32 s4, 4
    s_cbranch_scc1 k2_wc
    s_add_u32 s20, s20, 16384
    s_add_u32 m0, s20, {XB}
    s_nop 0
    buffer_load_dwordx4 v68, s[28:31], s20 offen lds
    s_branch k2_nox2
    k2_wc:
    s_mov_b32 m0, {WC}
    s_mov_b32 exec_hi, 0
    buffer_load_dwordx4 v73, s[40:43], 0 offen lds
    s_mov_b64 exec, -1
    k2_nox2:
    """)
    srd_off(A, 44, 18, 19, RECO, NPROD * CH * 12)
    A(f"""
    v_mov_b64 v[74:75], 0
    v_mov_b64 v[76:77], 0
    v_lshrrev_b32 v78, 5, v0
    v_and_b32 v79, 31, v0
    v_lshlrev_b32 v79, 4, v79
    v_lshl_or_b32 v78, v78, 10, v79
    ds_write_b128 v78, v[74:77]
    ds_write_b128 v78, v[74:77] offset:32768
    s_cmp_ge_u32 s4, 8
    s_cbranch_scc1 k2_noz
    v_add_u32 v78, 0x10000, v78
    ds_write_b128 v78, v[74:77]
    s_cmp_ge_u32 s4, 2
    s_cbranch_scc1 k2_noz
    v_lshlrev_b32 v78, 4, v0
    v_add_u32 v78, {CNT}, v78
    v_cmp_gt_u32 vcc, {NZ}, v0
    s_and_saveexec_b64 s[20:21], vcc
    ds_write_b128 v78, v[74:77]
    s_mov_b64 exec, s[20:21]
    k2_noz:
    """)
    A('s_lshl_b32 s20, s6, 8\ns_add_u32 s20, s20, s22\ns_lshl_b32 s21, s7, 8\ns_sub_u32 s21, s21, s22')
    srd_off(A, 52, 16, 17, 's20', 's21')
    A(f's_mul_i32 s20, s5, {TABH}')
    srd_off(A, 48, 18, 19, 's20', N + 1, stride=(1 if 'row0' in OPT else 256))
    A(f"""
    v_and_b32 v78, 1, v3
    v_lshlrev_b32 v78, 4, v78
    v_mov_b32 v79, 0x3f80
    v_lshlrev_b32 v79, v78, v79
    v_and_b32 v78, 2, v3
    v_cmp_eq_u32 vcc, 0, v78
    s_mov_b32 s56, {hex(C60)}
    s_mov_b32 s57, {hex(C60)}
    v_cndmask_b32 v12, 0, v79, vcc
    v_cndmask_b32 v13, v79, v74, vcc
    s_mov_b32 s58, 0x22221111
    s_mov_b32 s59, 0x88884444
    v_add_u32 v25, {WC}, v25
    s_waitcnt vmcnt(3)
    v_and_b32 v79, 0xffff, v2
    v_add_u32 v79, v79, v24
    v_mad_u32_u24 v1, v79, 12, v1
    v_lshrrev_b32 v2, 16, v2
    v_sub_u32 v2, v2, v24
    """)
    stamp(A, prof, 1)
    A('k2_loadrec:')
    A(f's_mov_b32 s79, {4*R_}')
    A('s_waitcnt vmcnt(0) lgkmcnt(0)\ns_barrier')
    stamp(A, prof, 2)
    for r in range(R_):
        A(f'v_cmp_lt_i32 s[{MK+2*r}:{MK+2*r+1}], {4*r}, v2')
        if r == 0: continue
        q = r - 1
        A(f's_mov_b64 exec, s[{MK+2*q}:{MK+2*q+1}]')
        A(f's_cbranch_execz k2_ldiss')
        A(f'buffer_load_dwordx3 v[{RC+4*q}:{RC+4*q+2}], v1, s[44:47], 0 offen offset:{48*q}')
    q = R_ - 1
    A(f's_mov_b64 exec, s[{MK+2*q}:{MK+2*q+1}]')
    A(f's_cbranch_execz k2_ldiss')
    A(f'buffer_load_dwordx3 v[{RC+4*q}:{RC+4*q+2}], v1, s[44:47], 0 offen offset:{48*q}')
    A('k2_ldiss:\ns_mov_b64 exec, -1')
    stamp(A, prof, 16)
    A('s_cmp_eq_u32 s100, 0\ns_cbranch_scc1 k2_gemmdone')
    XF = 74; WF = 90; AC = 26
    steps = [(s, c) for s in range(4) for c in range(4)]
    PD = 7
    def rd(i):
        s, c = steps[i]; b = WF + 4 * (i % 8)
        for u in range(2):
            A(f'ds_read_b64_tr_b16 v[{b+2*u}:{b+2*u+1}], v{14+c} offset:{(32*s+4*u)*128}')
    A('s_cmp_ge_u32 s4, 10\ns_cbranch_scc1 k2_nogemm')
    for s in range(4):
        A(f'ds_read_b128 v[{XF+4*s}:{XF+4*s+3}], v{18+s}')
    for i in range(5): rd(i)
    A('s_waitcnt lgkmcnt(10)')
    rd(5); rd(6)
    for i in range(16):
        s, c = steps[i]; b = WF + 4 * (i % 8)
        A(f's_waitcnt lgkmcnt({2*min(PD-1, 15-i)})')
        acc = AC + 4 * c
        cin = '0' if s == 0 else f'v[{acc}:{acc+3}]'
        A(f'v_mfma_f32_16x16x32_bf16 v[{acc}:{acc+3}], v[{XF+4*s}:{XF+4*s+3}], v[{b}:{b+3}], {cin}')
        if i + PD < 16: rd(i + PD)
    for c in range(4):
        A(f'ds_read_b32 v{4+c}, v{4+c}')
    A('s_nop 3')
    for i in range(4):
        for c in range(4):
            A(f'v_fma_f32 v{XF+4*i+c}, v{AC+4*c+i}, s76, v23')
        A(f'ds_write_b128 v22, v[{XF+4*i}:{XF+4*i+3}] offset:{i*1024}')
    A(f"""
    k2_nogemm:
    ds_read_u16 v14, v25
    ds_read_u16 v15, v25 offset:128
    ds_read_u16 v16, v25 offset:256
    ds_read_u16 v17, v25 offset:384
    s_mov_b32 s20, {hex(NLOG2E)}
    s_waitcnt lgkmcnt(0)
    """)
    for k in range(4):
        A(f'v_lshlrev_b32 v{14+k}, 16, v{14+k}')
    for k in range(4):
        A(f'v_mul_f32 v{14+k}, s20, v{14+k}')
    A('v_cvt_pk_bf16_f32 v8, v14, v15\nv_cvt_pk_bf16_f32 v9, v16, v17')
    A('k2_gemmdone:')
    stamp(A, prof, 3)
    TP = 102
    A(f"""
    v_and_b32 v23, 15, v3
    v_lshlrev_b32 v23, 4, v23
    v_mov_b32 v25, v23
    v_lshrrev_b32 v122, 4, v3
    s_lshl_b32 s88, s4, 2
    v_add_u32 v21, s88, v122
    v_lshl_add_u32 v24, v21, 9, v23
    v_add_u32 v24, {HEAD}, v24
    v_add_u32 v22, 1, v21
    v_bfe_u32 v123, v3, 2, 2
    v_mov_b32 v10, 32
    v_cndmask_b32 v11, 0, 64, s[58:59]
    v_mov_b64 v[34:35], 0
    v_mov_b64 v[36:37], 0
    v_mov_b64 v[38:39], 0
    v_mov_b64 v[40:41], 0
    s_mov_b64 s[82:83], 0
    s_mov_b64 s[84:85], 0
    v_mov_b32 v14, 1
    v_mov_b32 v15, {CNT}
    """)
    for k in range(8):
        A(f'v_mov_b32 v{TP+2*k+1}, v23')
    if PF:
        A(f"""
        s_mul_i32 s20, s78, 313
        s_mul_i32 s21, s4, {PF // 2}
        s_add_u32 s20, s20, s21
        v_lshrrev_b32 v120, 1, v3
        v_add_u32 v120, s20, v120
        v_and_b32 v121, 1, v3
        v_lshlrev_b32 v121, 7, v121
        """)
    A('s_waitcnt vmcnt(0)')
    if PF:
        A(f's_mov_b32 exec_lo, {hex(((1 << PF) - 1) & 0xffffffff)}\ns_mov_b32 exec_hi, {hex(((1 << PF) - 1) >> 32)}')
        A('buffer_load_dword v124, v[120:121], s[48:51], 0 idxen offen')
    stamp(A, prof, 4)
    A('k2_rank:')
    for r in range(R_):
        A(f's_mov_b64 exec, s[{MK+2*r}:{MK+2*r+1}]')
        A(f's_cbranch_execz k2_rankdone')
        A(f'v_lshrrev_b32 v{TA+r}, 14, v{RC+4*r+2}')
        A(f'v_add_u32 v{TA+r}, v15, v{TA+r}')
        A(f'ds_add_rtn_u32 v{RC+4*r+3}, v{TA+r}, v14')
    A(f"""
    v_cmp_lt_i32 vcc, {4*R_}, v2
    s_and_b64 exec, exec, vcc
    s_cbranch_execz k2_rankdone
    ds_write_b32 v15, v14 offset:{MISC - CNT}
    k2_rankdone:
    s_mov_b64 exec, -1
    s_waitcnt lgkmcnt(0)
    s_barrier
    """)
    stamp(A, prof, 5)
    A(f"""
    s_cmp_lg_u32 s4, 0
    s_cbranch_scc1 k2_noscan
    v_lshl_add_u32 v16, v3, 3, v15
    ds_read_b64 v[18:19], v16
    s_waitcnt lgkmcnt(0)
    v_add_u32 v18, 1, v18
    v_add_u32 v19, 1, v19
    v_and_b32 v18, -2, v18
    v_and_b32 v19, -2, v19
    v_add_u32 v26, v18, v19
    v_mov_b32 v27, v26
    """)
    scan64(A, 26)
    A(f"""
    v_sub_u32 v26, v26, v27
    v_add_u32 v27, v26, v18
    ds_write_b64 v16, v[26:27] offset:{STA - CNT}
    s_waitcnt lgkmcnt(0)
    k2_noscan:
    s_barrier
    """)
    stamp(A, prof, 6)
    A(f"""
    ds_read_b32 v16, v15 offset:{STA - CNT + 4*100}
    ds_read_b32 v17, v15 offset:{MISC - CNT}
    """)
    for r in range(R_):
        A(f's_mov_b64 exec, s[{MK+2*r}:{MK+2*r+1}]')
        A(f's_cbranch_execz k2_st')
        A(f'ds_read_b32 v{TB+r}, v{TA+r} offset:{STA - CNT}')
    A(f"""
    k2_st:
    s_mov_b64 exec, -1
    v_lshl_add_u32 v18, v0, 2, v15
    s_cmp_ge_u32 s4, 2
    s_cbranch_scc1 k2_nopad0
    ds_read_b32 v19, v18
    ds_read_b32 v20, v18 offset:{STA - CNT}
    k2_nopad0:
    s_mov_b32 s20, {EL}
    s_mov_b32 s21, {PL}
    s_waitcnt lgkmcnt(0)
    v_readfirstlane_b32 s22, v16
    v_readfirstlane_b32 s86, v17
    s_cmp_gt_u32 s22, {CAPT}
    s_cbranch_scc1 k2_shrink
    s_cmp_ge_u32 s4, 2
    s_cbranch_scc1 k2_nopad
    v_subrev_u32 v26, 80, v0
    v_cmp_gt_u32 vcc, 80, v0
    v_min_u32 v27, 79, v0
    v_lshlrev_b32 v27, 16, v27
    v_or_b32 v27, {N}, v27
    v_cndmask_b32 v28, v26, v19, vcc
    v_add_u32 v20, v20, v28
    v_and_b32 v19, 1, v19
    v_cmp_eq_u32 vcc, 1, v19
    v_cmp_gt_u32 s[76:77], 8, v26
    s_or_b64 exec, vcc, s[76:77]
    s_cbranch_execz k2_nopad
    v_lshl_add_u32 v28, v20, 3, s20
    v_lshl_add_u32 v20, v20, 2, s21
    ds_write_b64 v28, v[34:35]
    ds_write_b32 v20, v27
    k2_nopad:
    """)
    for r in range(R_):
        A(f's_mov_b64 exec, s[{MK+2*r}:{MK+2*r+1}]')
        A(f's_cbranch_execz k2_scat')
        A(f'v_add_u32 v{TB+r}, v{TB+r}, v{RC+4*r+3}')
        A(f'v_lshl_add_u32 v{TA+r}, v{TB+r}, 3, s20')
        A(f'v_lshl_add_u32 v{TB+r}, v{TB+r}, 2, s21')
        A(f'ds_write_b64 v{TA+r}, v[{RC+4*r}:{RC+4*r+1}]')
        A(f'ds_write_b32 v{TB+r}, v{RC+4*r+2}')
    A(f"""
    k2_scat:
    s_mov_b64 exec, -1
    s_add_u32 s22, s22, 6
    s_lshr_b32 s22, s22, 3
    s_lshr_b32 s23, s22, 4
    s_and_b32 s22, s22, 15
    s_mul_i32 s87, s23, s4
    s_min_u32 s88, s4, s22
    s_add_u32 s87, s87, s88
    s_cmp_lt_u32 s4, s22
    s_addc_u32 s23, s23, 0
    s_lshl_b32 s87, s87, 5
    s_add_u32 s21, s21, s87
    s_lshl_b32 s87, s87, 1
    s_add_u32 s20, s20, s87
    v_mul_u32_u24 v16, s23, v122
    v_mul_u32_u24 v17, s23, v123
    v_mov_b32 v26, {ZER}
    v_mov_b32 v20, v14
    v_lshl_add_u32 v14, v16, 3, s21
    v_lshl_add_u32 v15, v17, 4, s20
    v_mov_b32 v18, v24
    v_mov_b32 v21, v22
    v_cndmask_b32 v15, v26, v15, s[58:59]
    s_mov_b32 s76, 0x00010001
    s_mov_b32 s77, 0x00010001
    s_waitcnt lgkmcnt(0)
    s_barrier
    """)
    stamp(A, prof, 7)
    dbg_mid(A, 92)
    RB = 70; DD = [42, 102]; ND = [16, 17, 19, 119]; MS = [82, 84]
    Ha = 50; Hb = 54; P = 58; Sg = 62; Q = 66; DEN = 34; NUM = 38
    def y1(d): return f'v_mfma_f32_16x16x16_bf16 v[{d}:{d+3}], v[26:27], v[8:9], v[30:33]'
    def y2(d): return f'v_mfma_f32_16x16x16_bf16 v[{d+4}:{d+7}], v[28:29], v[8:9], v[30:33]'
    def y3(d, r): return f'v_mfma_f32_4x4x4_16b_bf16 v[{d}:{d+3}], v[12:13], v[{r}:{r+1}], v[{d}:{d+3}]'
    def y4(d, r): return f'v_mfma_f32_4x4x4_16b_bf16 v[{d+4}:{d+7}], v[12:13], v[{r+4}:{r+5}], v[{d+4}:{d+7}]'
    A('s_setprio 3\ns_sub_u32 s23, s23, 1\ns_cbranch_scc1 k2_loopdone')
    for k in range(8):
        A(f'ds_read_u16 v{TP+2*k}, v14 offset:{4*k}')
    A(f"""
    ds_read_u16 v{ND[0]}, v14 offset:2
    ds_read_b128 v[26:29], v15
    ds_read_u16 v{ND[1]}, v14 offset:10
    ds_read_u16 v{ND[2]}, v14 offset:18
    ds_read_u16 v22, v14 offset:32
    ds_read_u16 v24, v14 offset:36
    """)
    def G(k):
        A(f'buffer_load_dwordx4 v[{RB+8*k}:{RB+8*k+3}], v[{TP+4*k}:{TP+4*k+1}], s[48:51], 0 idxen offen')
        A(f'buffer_load_dwordx4 v[{RB+8*k+4}:{RB+8*k+7}], v[{TP+4*k+2}:{TP+4*k+3}], s[48:51], 0 idxen offen')
    NG0 = int(([o[2:] for o in OPT if o.startswith('g0')] + ['2'])[0])
    for k in range(NG0):
        A(f's_waitcnt lgkmcnt({12-2*k})')
        G(k)
    A(f"""
    s_waitcnt lgkmcnt(5)
    v_lshl_add_u32 v118, v{ND[0]}, 10, v23
    ds_read_b128 v[30:33], v118 offset:512
    v_lshlrev_b32 v118, 3, v{ND[0]}
    v_add_u32 v118, {HIN}, v118
    s_mov_b64 exec, s[76:77]
    ds_add_u32 v118, v20
    ds_max_u32 v118, v21 offset:4
    s_mov_b64 exec, -1
    s_waitcnt lgkmcnt(2)
    {y1(DD[0])}
    v_cmp_ne_u32 s[{MS[0]}:{MS[0]+1}], v{ND[0]}, v{ND[1]}
    v_lshl_add_u32 v118, v{ND[1]}, 10, v23
    {y2(DD[0])}
    ds_read_b128 v[26:29], v15 offset:16
    ds_read_b128 v[30:33], v118 offset:512
    s_waitcnt vmcnt({2*NG0-2})
    s_nop 2
    {y3(DD[0], RB)}
    {y4(DD[0], RB)}
    """)
    for k in range(NG0, 4): G(k)
    A('s_waitcnt lgkmcnt(0)\ns_nop 1')
    stamp(A, prof, 17)
    A('k2_loop:')
    TH = [int(x) for x in ([o[2:] for o in OPT if o.startswith('th')] + ['12_8_4'])[0].split('_')]
    for u in range(4):
        D = DD[u & 1]; Dn = DD[(u + 1) & 1]; Da = D; Db = D + 4
        Rc = RB + 8 * u; Rn = RB + 8 * ((u + 1) % 4)
        g0 = 's_nop 0' if 'nogather' in OPT else f'buffer_load_dwordx4 v[{Rc}:{Rc+3}], v[22:23], s[48:51], 0 idxen offen'
        g1 = 's_nop 0' if 'nogather' in OPT else f'buffer_load_dwordx4 v[{Rc+4}:{Rc+7}], v[24:25], s[48:51], 0 idxen offen'
        e = [f'v_exp_f32_e64 v{D+i}, v{D+i} clamp' for i in range(8)]
        if 'modprio' in OPT: A(f's_setprio {3-u}')
        elif u == 0 and 'noprio' not in OPT:
            A(f's_cmp_lt_u32 s23, {TH[0]}\ns_cbranch_scc1 k2_setp\nk2_bkp:')
        A(f"""
        v_mfma_f32_4x4x4_16b_bf16 v[{Ha}:{Ha+3}], v[12:13], v[{Rc+2}:{Rc+3}], 0
        {e[0]}
        v_mfma_f32_4x4x4_16b_bf16 v[{Hb}:{Hb+3}], v[12:13], v[{Rc+6}:{Rc+7}], 0
        {e[1]}
        {y1(Dn)}
        {e[2]}
        {g0}
        {e[3]}
        {g1}
        {e[4]}
        {y2(Dn)}
        {e[5]}
        ds_read_b128 v[26:29], v15 offset:{(u+2)*16}
        ds_read_u16 v22, v14 offset:{(u+5)*8}
        {e[6]}
        ds_read_u16 v24, v14 offset:{(u+5)*8+4}
        ds_read_u16 v{ND[(u+3)%4]}, v14 offset:{(u+3)*8+2}
        v_cmp_ne_u32 vcc, v{ND[(u+1)%4]}, v{ND[(u+2)%4]}
        {e[7]}
        {'s_nop 0' if 'noev' in OPT else f's_cbranch_vccnz k2_eva{u}'}
        k2_bka{u}:
        v_pk_add_f32 {pr(Da)}, {pr(Da)}, s[56:57]
        v_pk_add_f32 {pr(Db)}, {pr(Db)}, s[56:57]
        v_pk_add_f32 {pr(Da+2)}, {pr(Da+2)}, s[56:57]
        v_pk_add_f32 {pr(Db+2)}, {pr(Db+2)}, s[56:57]
        v_pk_mul_f32 {pr(P)}, {pr(Da)}, {pr(Db)}
        v_pk_mul_f32 {pr(P+2)}, {pr(Da+2)}, {pr(Db+2)}
        v_pk_mul_f32 {pr(Q)}, {pr(Db)}, {pr(Ha)}
        s_waitcnt vmcnt(6) lgkmcnt(4)
        {y3(Dn, Rn)}
        v_rcp_f32 v{P}, v{P}
        {y4(Dn, Rn)}
        v_rcp_f32 v{P+1}, v{P+1}
        v_rcp_f32 v{P+2}, v{P+2}
        v_rcp_f32 v{P+3}, v{P+3}
        v_pk_mul_f32 {pr(Q+2)}, {pr(Db+2)}, {pr(Ha+2)}
        v_pk_add_f32 {pr(Sg)}, {pr(Da)}, {pr(Db)}
        v_pk_add_f32 {pr(Sg+2)}, {pr(Da+2)}, {pr(Db+2)}
        v_pk_fma_f32 {pr(Q)}, {pr(Da)}, {pr(Hb)}, {pr(Q)}
        v_pk_fma_f32 {pr(Q+2)}, {pr(Da+2)}, {pr(Hb+2)}, {pr(Q+2)}
        """)
        if u == 3:
            A('v_lshl_add_u64 v[14:15], v[14:15], 0, v[10:11]')
        A(f"""
        v_pk_fma_f32 {pr(DEN)}, {pr(Sg)}, {pr(P)}, {pr(DEN)}
        v_pk_fma_f32 {pr(DEN+2)}, {pr(Sg+2)}, {pr(P+2)}, {pr(DEN+2)}
        v_pk_fma_f32 {pr(NUM)}, {pr(Q)}, {pr(P)}, {pr(NUM)}
        v_pk_fma_f32 {pr(NUM+2)}, {pr(Q+2)}, {pr(P+2)}, {pr(NUM+2)}
        s_sub_u32 s23, s23, 1
        s_cbranch_scc1 k2_flush
        s_waitcnt lgkmcnt(0)
        s_cmp_lg_u64 s[{MS[u&1]}:{MS[u&1]+1}], 0
        """)
        if u == 3:
            A('s_cbranch_scc0 k2_loop')
        else:
            A(f's_cbranch_scc1 k2_evb{u}\nk2_bkb{u}:')
    for u in (3, 0, 1, 2):
        m = MS[u & 1]
        A(f"""
        k2_evb{u}:
        s_mov_b64 exec, s[{m}:{m+1}]
        ds_write_b128 v18, v[34:37]
        ds_write_b128 v18, v[38:41] offset:256
        v_lshl_add_u32 v18, v{ND[(u+1)%4]}, 10, v23
        s_mov_b64 s[{m}:{m+1}], 0
        ds_read_b128 v[34:37], v18
        ds_read_b128 v[38:41], v18 offset:256
        s_mov_b64 exec, -1
        s_branch {'k2_loop' if u == 3 else f'k2_bkb{u}'}
        """)
    for u in range(4):
        m = MS[(u + 1) & 1]
        A(f"""
        k2_eva{u}:
        s_mov_b64 exec, vcc
        v_lshl_add_u32 v118, v{ND[(u+2)%4]}, 10, v23
        s_mov_b64 s[{m}:{m+1}], vcc
        ds_read_b128 v[30:33], v118 offset:512
        s_mov_b64 exec, -1
        s_branch k2_bka{u}
        """)
    A(f"""
    k2_setp:
    s_setprio 2
    s_cmp_ge_u32 s23, {TH[1]}
    s_cbranch_scc1 k2_bkp
    s_setprio 1
    s_cmp_ge_u32 s23, {TH[2]}
    s_cbranch_scc1 k2_bkp
    s_setprio 0
    s_branch k2_bkp
    """) if 'modprio' not in OPT and 'noprio' not in OPT else None
    A("""
    k2_flush:
    ds_write_b128 v18, v[34:37]
    ds_write_b128 v18, v[38:41] offset:256
    k2_loopdone:
    s_setprio 0
    """)
    stamp(A, prof, 8)
    A(f"""
    v_lshrrev_b32 v14, 3, v0
    v_and_b32 v15, 7, v0
    v_lshlrev_b32 v17, 5, v15
    v_lshl_or_b32 v16, v14, 10, v17
    s_cmp_ge_u32 s4, 10
    s_cbranch_scc1 k2_nostat
    ds_read_b128 v[36:39], v16 offset:768
    ds_read_b128 v[40:43], v16 offset:784
    v_lshlrev_b32 v15, 2, v15
    v_lshl_or_b32 v15, v14, 8, v15
    v_lshlrev_b32 v14, 3, v14
    v_add_u32 v14, {HIN}, v14
    v_add_u32 v17, {HEAD - 512}, v17
    s_mov_b32 s20, {hex(EPS60)}
    s_mov_b32 s21, {hex(EPS60)}
    """)
    for k in range(4):
        A(f'v_lshlrev_b32 v{60+k}, 16, v{4+k}')
        A(f'v_and_b32 v{64+k}, 0xffff0000, v{4+k}')
    A('k2_nostat:\ns_waitcnt lgkmcnt(0)\ns_barrier')
    stamp(A, prof, 9)
    dbg_mid(A, 90)
    A(f"""
    s_cmp_ge_u32 s4, 10
    s_cbranch_scc1 k2_merged
    ds_read_b64 v[18:19], v14
    ds_read_b128 v[20:23], v16
    ds_read_b128 v[24:27], v16 offset:16
    ds_read_b128 v[28:31], v16 offset:256
    ds_read_b128 v[32:35], v16 offset:272
    s_waitcnt lgkmcnt(4)
    v_cmp_lt_u32 vcc, 0, v18
    v_lshl_add_u32 v19, v19, 9, v17
    s_and_b64 exec, exec, vcc
    s_cbranch_execz k2_mdone
    k2_mloop:
    ds_read_b128 v[44:47], v19
    ds_read_b128 v[48:51], v19 offset:16
    ds_read_b128 v[52:55], v19 offset:256
    ds_read_b128 v[56:59], v19 offset:272
    v_cmp_lt_u32 vcc, 1, v18
    v_subrev_u32 v18, 1, v18
    v_subrev_u32 v19, 512, v19
    s_waitcnt lgkmcnt(2)
    """)
    for k in range(8):
        if k == 4: A('s_waitcnt lgkmcnt(0)')
        A(f'v_pk_add_f32 {pr(20+2*k)}, {pr(20+2*k)}, {pr(44+2*k)}')
    A(f"""
    s_and_b64 exec, exec, vcc
    s_cbranch_execnz k2_mloop
    k2_mdone:
    s_mov_b64 exec, -1
    s_waitcnt lgkmcnt(0)
    k2_merged:
    s_cmp_lg_u32 s86, 0
    s_cbranch_scc1 k2_more
    s_cmp_ge_u32 s4, 10
    s_cbranch_scc1 k2_fin
    """)
    for k in range(4):
        A(f'v_pk_add_f32 {pr(20+2*k)}, {pr(20+2*k)}, s[20:21]')
    for k in range(8):
        A(f'v_rcp_f32 v{20+k}, v{20+k}')
    A('s_nop 0')
    for k in range(4):
        A(f'v_pk_fma_f32 {pr(28+2*k)}, {pr(28+2*k)}, {pr(20+2*k)}, {pr(36+2*k)}')
    for k in range(8):
        A(f'v_max_f32 v{28+k}, 0, v{28+k}')
    for k in range(4):
        A(f'v_pk_add_f32 {pr(28+2*k)}, {pr(28+2*k)}, {pr(60+2*k)}')
    for k in range(4):
        A(f'v_cvt_pk_bf16_f32 v{20+k}, v{28+k}, v{32+k}')
        A(f'buffer_store_dword v{20+k}, v15, s[52:55], 0 offen offset:{32*k}' + (' nt' if 'nto' in OPT else ''))
    A('k2_fin:')
    stamp(A, prof, 10)
    if prof:
        A('s_waitcnt vmcnt(0)')
        stamp(A, prof, 11)
        stamp_out(A, prof, 18, 19, 4, 1)
    dbg_end(A, 2)
    A('k2_exit:\ns_endpgm')
    zero_misc = f"""
    v_mov_b32 v74, 0
    v_mov_b32 v75, 0
    v_mov_b32 v76, 0
    v_mov_b32 v77, 0
    v_lshlrev_b32 v78, 4, v0
    v_add_u32 v78, {CNT}, v78
    v_cmp_gt_u32 vcc, {NZ}, v0
    s_and_saveexec_b64 s[20:21], vcc
    ds_write_b128 v78, v[74:77]
    s_mov_b64 exec, s[20:21]
    """
    A(f"""
    k2_more:
    s_waitcnt vmcnt(0)
    s_cmp_ge_u32 s4, 10
    s_cbranch_scc1 k2_more1
    ds_write_b128 v16, v[20:23]
    ds_write_b128 v16, v[24:27] offset:16
    ds_write_b128 v16, v[28:31] offset:256
    ds_write_b128 v16, v[32:35] offset:272
    k2_more1:
    s_waitcnt lgkmcnt(0)
    s_barrier
    """)
    A(zero_misc)
    A(f"""
    s_mul_i32 s20, s79, 12
    v_add_u32 v1, s20, v1
    v_subrev_u32 v2, s79, v2
    s_mov_b32 s100, 0
    s_branch k2_loadrec
    k2_shrink:
    s_barrier
    """)
    A(zero_misc)
    A(f"""
    s_mov_b64 s[{MK+6}:{MK+7}], 0
    s_mov_b32 s79, 12
    s_waitcnt lgkmcnt(0)
    s_barrier
    ds_write_b32 v15, v14 offset:{MISC - CNT}
    s_branch k2_rank
    k2_kernel_end:
    """)
    return A.text(), LDS

KD = '''.amdhsa_kernel {name}
  .amdhsa_next_free_vgpr {vgpr}
  .amdhsa_next_free_sgpr {sgpr}
  .amdhsa_accum_offset {acc}
  .amdhsa_group_segment_fixed_size 0
  .amdhsa_kernarg_size 96
  .amdhsa_user_sgpr_count 2
  .amdhsa_user_sgpr_kernarg_segment_ptr 1
  .amdhsa_system_sgpr_workgroup_id_x 1
  .amdhsa_float_denorm_mode_32 3
  .amdhsa_dx10_clamp 0
.end_amdhsa_kernel'''

def build(prof=False):
    k1, l1 = gen_k1(prof)
    k2, l2 = gen_k2(prof)
    head = open('standalone__edge_featured_mpnn_gatedgcn__graph.s.ref').read().split('\n')
    head = [h for h in head[:14]]
    out = head + [f'; @launch kernel=k1_kernel grid=(256,1,1) block=(640,1,1) lds={l1}',
                  *([f'; @launch kernel=k2_kernel grid=(256,1,1) block=(1024,1,1) lds={l2}'] * (2 if 'k2x2' in OPT else 1)),
                  '.amdgcn_target "amdgcn-amd-amdhsa--gfx950"', '.text']
    for nm, body in (('k1_kernel', k1), ('k2_kernel', k2)):
        out += [f'.globl {nm}', '.p2align 8', f'.type {nm},@function', body]
    out += ['.section .rodata,"a"', '.p2align 6', KD.format(name='k1_kernel', vgpr=128 if prof else 100, sgpr=102 if (prof or 'dbg' in OPT) else 56, acc=128 if prof else 100),
            '.p2align 6', KD.format(name='k2_kernel', vgpr=128, sgpr=102, acc=128)]
    return '\n'.join(out) + '\n'

if __name__ == '__main__':
    prof = '--prof' in sys.argv
    for a in sys.argv[2:]:
        if a.startswith('-O'): OPT.add(a[2:])
    dst = sys.argv[1]
    open(dst, 'w').write(build(prof))
```

```python
import sys

N = 10000; E = 320000
TABH = 10016 * 256
NPROD = 250
CH = 1280
HDRO = 2 * TABH
RECO = HDRO + 0x20000
STAMPO = 0x1000000
MAGIC = 214749
NLOG2E = 0xbfb8aa3b
C60 = 0x21800000
EPS60 = 0x538637bd
M60 = 0xc2700000

OPT = set()
class Asm:
    def __init__(self): self.L = []
    def __call__(self, s):
        for x in s.strip('\n').split('\n'): self.L.append('    ' + x.strip() if not x.strip().endswith(':') else x.strip())
    def text(self): return '\n'.join(self.L)

def srd(A, d, lo, hi, size, stride=0):
    A(f's_mov_b32 s{d}, s{lo}')
    if stride:
        A(f's_and_b32 s{d+1}, s{hi}, 0xffff')
        A(f's_or_b32 s{d+1}, s{d+1}, {hex(stride << 16)}')
    else:
        A(f's_mov_b32 s{d+1}, s{hi}')
    A(f's_mov_b32 s{d+2}, {size}')
    A(f's_mov_b32 s{d+3}, 0x00020000')

def srd_off(A, d, lo, hi, off, size, stride=0):
    A(f's_add_u32 s{d}, s{lo}, {off}')
    A(f's_addc_u32 s{d+1}, s{hi}, 0')
    if stride:
        A(f's_and_b32 s{d+1}, s{d+1}, 0xffff')
        A(f's_or_b32 s{d+1}, s{d+1}, {hex(stride << 16)}')
    A(f's_mov_b32 s{d+2}, {size}')
    A(f's_mov_b32 s{d+3}, 0x00020000')

def scan64(A, v):
    for sh in (1, 2, 4, 8):
        A('s_nop 1')
        A(f'v_add_u32_dpp v{v}, v{v}, v{v} row_shr:{sh} row_mask:0xf bank_mask:0xf bound_ctrl:0')
    A('s_nop 1')
    A(f'v_add_u32_dpp v{v}, v{v}, v{v} row_bcast:15 row_mask:0xa bank_mask:0xf')
    A('s_nop 1')
    A(f'v_add_u32_dpp v{v}, v{v}, v{v} row_bcast:31 row_mask:0xc bank_mask:0xf')

def stamp(A, prof, k, sb=90):
    if not prof: return
    A(f's_memtime s[{sb}:{sb+1}]')
    A('s_waitcnt lgkmcnt(0)')
    A(f'v_writelane_b32 v127, s{sb}, {k}')
    if k in (0, 7, 9):
        A(f's_memrealtime s[{sb}:{sb+1}]')
        A('s_waitcnt lgkmcnt(0)')
        A(f'v_writelane_b32 v127, s{sb}, {dict([(0, 12), (7, 18), (9, 19)])[k]}')

def stamp_out(A, prof, wslo, wshi, slot_expr_sgpr, kernel_id):
    if not prof: return
    A('s_memrealtime s[90:91]')
    A('s_waitcnt lgkmcnt(0)')
    A('v_writelane_b32 v127, s90, 13')
    A('s_mov_b32 exec_lo, -1\ns_mov_b32 exec_hi, 0')
    A(f's_add_u32 s92, s{wslo}, {STAMPO + kernel_id * 0x80000}')
    A(f's_addc_u32 s93, s{wshi}, 0')
    A('s_mov_b32 s94, 0x80000')
    A('s_mov_b32 s95, 0x00020000')
    A(f's_lshl_b32 s96, s2, 4')
    A(f's_add_u32 s96, s96, s{slot_expr_sgpr}')
    A('s_lshl_b32 s96, s96, 7')
    A('s_getreg_b32 s90, hwreg(HW_REG_HW_ID)')
    A('s_getreg_b32 s91, hwreg(HW_REG_XCC_ID)')
    A('v_writelane_b32 v127, s90, 14')
    A('v_writelane_b32 v127, s91, 15')
    A('v_mbcnt_lo_u32_b32 v126, -1, 0')
    A('v_lshlrev_b32 v126, 2, v126')
    A('buffer_store_dword v127, v126, s[92:95], s96 offen')
    A('s_waitcnt vmcnt(0)')

def dbg_start(A):
    if 'dbg' not in OPT: return
    A('s_memrealtime s[96:97]')
    A('s_load_dwordx2 s[98:99], s[0:1], 80')

def dbg_mid(A, r):
    if 'dbg' not in OPT: return
    A(f's_memrealtime s[{r}:{r+1}]\ns_waitcnt lgkmcnt(0)')

def dbg_end(A, k):
    if 'dbg' not in OPT: return
    A('s_waitcnt vmcnt(0)')
    A('s_memrealtime s[94:95]')
    A('s_waitcnt lgkmcnt(0)')
    A('s_not_b32 s96, s96')
    if k < 2:
        A(f's_lshl_b32 s97, s2, 4\ns_add_u32 s97, s97, s4\ns_lshl_b32 s97, s97, 3\ns_add_u32 s97, s97, {STAMPO}')
        A('s_add_u32 s20, s20, s97\ns_addc_u32 s21, s21, 0')
        A('s_mov_b64 exec, 1')
        A('v_mov_b32 v0, 0\nv_mov_b32 v2, s96\nv_mov_b32 v3, s94')
        A('global_store_dwordx2 v0, v[2:3], s[20:21]\ns_waitcnt vmcnt(0)')
        return
    A('s_cmp_lg_u32 s4, 15\ns_cbranch_scc1 k2_exit')
    A('s_mov_b64 exec, 1')
    A('s_not_b32 s93, s92')
    A('v_mov_b32 v0, 0\nv_mov_b32 v1, s96\nv_mov_b32 v2, s94\nv_mov_b32 v3, s92\nv_mov_b32 v4, s93\nv_mov_b32 v5, s90')
    for q, v in enumerate((1, 2, 3, 4, 5)):
        A(f'global_atomic_umax v0, v{v}, s[98:99] offset:{4*q}')
    A(f's_lshr_b32 s97, s2, 4\ns_lshl_b32 s97, s97, 3\ns_and_b32 s95, s2, 7\ns_or_b32 s97, s97, s95\ns_cmp_ge_u32 s97, 125\ns_cbranch_scc1 k2_exit')
    A(f's_lshl_b32 s97, s2, 7\ns_add_u32 s97, s97, {STAMPO}')
    A('s_add_u32 s18, s18, s97\ns_addc_u32 s19, s19, 0')
    A('s_mov_b64 exec, 0x3ff')
    A('v_mbcnt_lo_u32_b32 v6, -1, 0\nv_lshlrev_b32 v6, 3, v6\nv_mov_b32 v0, 0')
    A('global_load_dwordx2 v[8:9], v6, s[18:19]\ns_waitcnt vmcnt(0)')
    A('s_bfe_u32 s97, s2, 0x10003\ns_lshl_b32 s97, s97, 3\nv_mov_b32 v0, s97')
    A('global_atomic_umax v0, v8, s[98:99] offset:32')
    A('global_atomic_umax v0, v9, s[98:99] offset:36')
    A('s_waitcnt vmcnt(0)')

def prefetch_code(A, nbytes, nthreads, vtmp, label):
    A(f's_getpc_b64 s[88:89]')
    A(f'v_lshlrev_b32 v{vtmp}, 6, v0')
    A(f'v_cmp_gt_u32 vcc, {label}_end - {label} - 64, v{vtmp}')
    A('s_and_saveexec_b64 s[86:87], vcc')
    A(f's_cbranch_execz {label}_pf')
    A(f'global_load_dword v{vtmp+1}, v{vtmp}, s[88:89]')
    A(f'{label}_pf:')
    A('s_mov_b64 exec, s[86:87]')

def gen_k1(prof):
    A = Asm()
    XB = 0; WB = 20480; WV = WB + 16384
    STG = WV + 16384; CNT = STG + CH * 12; STA = CNT + 512
    FLG = STA + 512
    LDS = CNT + 1280
    B2AT = int(([o[2:] for o in OPT if o.startswith('b2')] + ['6'])[0])
    B3AT = int(([o[2:] for o in OPT if o.startswith('b3')] + ['24'])[0])
    A('k1_kernel:')
    dbg_start(A)
    stamp(A, prof, 0)
    A("""
    s_cmp_ge_u32 s2, 256
    s_cbranch_scc1 k1_exit
    s_load_dwordx4 s[8:11], s[0:1], 0
    s_load_dwordx4 s[12:15], s[0:1], 16
    s_load_dwordx4 s[44:47], s[0:1], 32
    s_load_dwordx4 s[48:51], s[0:1], 48
    s_load_dwordx2 s[18:19], s[0:1], 64
    s_load_dwordx2 s[20:21], s[0:1], 88
    v_lshrrev_b32 v1, 6, v0
    v_and_b32 v3, 63, v0
    v_readfirstlane_b32 s4, v1
    s_and_b32 s6, s2, 1
    s_lshr_b32 s23, s2, 3
    s_cmp_ge_u32 s4, 5
    s_cbranch_scc1 k1_gemm
    """)
    A(f"""
    s_cmp_ge_u32 s2, {NPROD}
    s_cbranch_scc1 k1_exit
    v_lshlrev_b32 v1, 4, v0
    v_lshlrev_b32 v2, 5, v0
    s_mul_i32 s5, s2, {CH*4}
    s_mul_i32 s7, s2, {CH*8}
    v_mov_b32 v32, 0
    v_mov_b32 v33, 1
    v_lshlrev_b32 v34, 2, v0
    v_add_u32 v34, {CNT}, v34
    s_waitcnt lgkmcnt(0)
    """)
    srd_off(A, 24, 14, 15, 's5', CH * 4)
    NT = ' nt' if 'nt1' in OPT or 'nte' in OPT else ''
    A(f'buffer_load_dwordx4 v[4:7], v1, s[24:27], 0 offen{NT}')
    srd_off(A, 28, 12, 13, 's5', CH * 4)
    A(f'buffer_load_dwordx4 v[8:11], v1, s[28:31], 0 offen{NT}')
    srd_off(A, 32, 10, 11, 's7', CH * 8)
    A(f'buffer_load_dwordx4 v[12:15], v2, s[32:35], 0 offen{NT}')
    A(f'buffer_load_dwordx4 v[16:19], v2, s[32:35], 0 offen offset:16{NT}')
    A(f"""
    ds_write_b32 v34, v32
    s_mul_i32 s5, s2, {CH*12}
    s_add_u32 s5, s5, {RECO}
    """)
    srd_off(A, 36, 20, 21, 's5', CH * 12)
    A(f's_lshl_b32 s5, s2, 9\ns_add_u32 s5, s5, {HDRO}')
    srd_off(A, 40, 20, 21, 's5', 512)
    A(f's_mov_b32 s5, {MAGIC}\ns_movk_i32 s6, 625\ns_mov_b32 s7, {CNT}\ns_mov_b32 s22, {STG}')
    A('s_waitcnt lgkmcnt(0)\ns_barrier')
    stamp(A, prof, 1)
    A('s_waitcnt vmcnt(3)')
    stamp(A, prof, 2)
    for i in range(4):
        A(f'v_mul_u32_u24 v{20+i}, s5, v{4+i}')
    for i in range(4):
        A(f'v_lshrrev_b32 v{20+i}, 24, v{20+i}')
    for i in range(4):
        A(f'v_lshl_add_u32 v{28+i}, v{20+i}, 2, s7')
        A(f'ds_add_rtn_u32 v{24+i}, v{28+i}, v33')
    for i in range(4):
        A(f'v_mad_u32_u24 v{20+i}, v{20+i}, s6, 7')
    for i in range(4):
        A(f'v_lshrrev_b32 v{20+i}, 3, v{20+i}')
    for i in range(4):
        A(f'v_sub_u32 v{4+i}, v{4+i}, v{20+i}')
    A(f'v_lshl_add_u32 v35, v0, 3, s7\nv_lshlrev_b32 v34, 3, v0')
    A('s_waitcnt lgkmcnt(0)\ns_barrier')
    stamp(A, prof, 3)
    A(f"""
    s_cmp_lg_u32 s4, 0
    s_cbranch_scc1 k1_noscan
    ds_read_b64 v[36:37], v35
    s_waitcnt lgkmcnt(0)
    v_add_u32 v38, v36, v37
    v_mov_b32 v39, v38
    """)
    scan64(A, 38)
    A(f"""
    v_sub_u32 v38, v38, v39
    v_add_u32 v39, v38, v36
    ds_write_b64 v35, v[38:39] offset:512
    v_lshl_or_b32 v36, v36, 16, v38
    v_lshl_or_b32 v37, v37, 16, v39
    buffer_store_dwordx2 v[36:37], v34, s[40:43], 0 offen
    s_waitcnt lgkmcnt(0)
    k1_noscan:
    s_barrier
    """)
    stamp(A, prof, 4)
    for i in range(4):
        A(f'ds_read_b32 v{20+i}, v{28+i} offset:512')
    A('v_mov_b32 v34, s22\ns_waitcnt vmcnt(0)')
    for i in range(4):
        A(f'v_lshl_or_b32 v{8+i}, v{4+i}, 16, v{8+i}')
    A('s_waitcnt lgkmcnt(0)')
    for i in range(4):
        A(f'v_add_u32 v{20+i}, v{20+i}, v{24+i}')
        A(f'v_mad_u32_u24 v{20+i}, v{20+i}, 12, v34')
        A(f'ds_write2_b32 v{20+i}, v{12+2*i}, v{13+2*i} offset0:0 offset1:1')
        A(f'ds_write_b32 v{20+i}, v{8+i} offset:8')
    A(f"""
    v_add_u32 v2, {CH*4}, v1
    v_add_u32 v3, {CH*8}, v1
    v_mov_b32 v34, {FLG}
    s_waitcnt lgkmcnt(0)
    s_mov_b64 exec, 1
    ds_add_u32 v34, v33
    k1_spin:
    ds_read_b32 v35, v34
    s_waitcnt lgkmcnt(0)
    v_readfirstlane_b32 s5, v35
    s_cmp_lt_u32 s5, 5
    s_cbranch_scc1 k1_spin
    s_mov_b64 exec, -1
    """)
    stamp(A, prof, 5)
    for j in range(3):
        A(f'ds_read_b128 v[{4+4*j}:{7+4*j}], v1 offset:{STG + CH*4*j}')
    for j in range(3):
        A(f's_waitcnt lgkmcnt({2-j})')
        A(f'buffer_store_dwordx4 v[{4+4*j}:{7+4*j}], v{1+j}, s[36:39], 0 offen')
    stamp(A, prof, 6)
    if prof:
        A('s_waitcnt vmcnt(0)')
        stamp(A, prof, 7)
        stamp_out(A, prof, 20, 21, 4, 0)
    dbg_end(A, 0)
    A('s_endpgm')
    A('k1_gemm:')
    A(f"""
    s_sub_u32 s4, s4, 5
    s_bfe_u32 s3, s2, 0x20001
    s_lshl_b32 s3, s3, 5
    s_add_u32 s3, s3, s23
    s_mul_i32 s5, s3, 625
    s_add_u32 s5, s5, 7
    s_lshr_b32 s5, s5, 3
    s_lshl_b32 s5, s5, 8
    s_sub_u32 s7, {N*256}, s5
    s_lshl_b32 s22, s6, 7
    s_sub_u32 s16, 32768, s22
    v_lshrrev_b32 v4, 4, v3
    v_and_b32 v5, 15, v3
    v_xor_b32 v6, v5, v4
    v_lshlrev_b32 v6, 4, v6
    v_lshl_or_b32 v6, v4, 8, v6
    v_lshrrev_b32 v8, 3, v3
    v_and_b32 v7, 7, v3
    v_and_b32 v9, 2, v8
    v_xor_b32 v7, v7, v9
    v_lshlrev_b32 v7, 4, v7
    v_lshl_or_b32 v7, v8, 8, v7
    s_waitcnt lgkmcnt(0)
    """)
    srd_off(A, 24, 8, 9, 's5', 's7')
    srd_off(A, 28, 46, 47, 's22', 's16')
    srd_off(A, 32, 18, 19, 's22', 's16')
    A('s_barrier')
    for j in range(4):
        if j == 3:
            A('s_cmp_ge_u32 s4, 1\ns_cbranch_scc1 k1_dmadone')
        A(f"""
        s_add_u32 s17, s4, {5*j}
        s_and_b32 s40, s17, 1
        s_lshl_b32 s40, s40, 6
        s_lshl_b32 s41, s17, 11
        s_lshl_b32 s17, s17, 10
        v_xor_b32 v8, s40, v7
        s_add_u32 m0, s17, {WB}
        s_nop 0
        buffer_load_dwordx4 v8, s[28:31], s41 offen lds
        s_add_u32 m0, s17, {WV}
        s_nop 0
        buffer_load_dwordx4 v8, s[32:35], s41 offen lds
        """)
    A('k1_dmadone:')
    for j in range(4):
        A(f"""
        s_lshl_b32 s17, s4, 12
        s_add_u32 s17, s17, {1024*j}
        v_xor_b32 v8, {64*j}, v6
        s_mov_b32 m0, s17
        s_nop 0
        buffer_load_dwordx4 v8, s[24:27], s17 offen{' nt' if 'nt1' in OPT else ''} lds
        """)
    A(f"""
    s_lshl_b32 s17, s4, 12
    v_xor_b32 v8, v4, v5
    v_lshlrev_b32 v8, 4, v8
    v_lshl_or_b32 v8, v5, 8, v8
    v_add_u32 v8, s17, v8
    v_xor_b32 v9, 64, v8
    v_xor_b32 v10, 128, v8
    v_xor_b32 v11, 192, v8
    v_bfe_u32 v13, v3, 2, 2
    v_lshl_add_u32 v12, v4, 3, v13
    v_lshlrev_b32 v12, 7, v12
    v_lshrrev_b32 v13, 1, v13
    v_and_b32 v14, 1, v4
    v_lshl_or_b32 v13, v14, 1, v13
    v_lshl_or_b32 v12, v13, 5, v12
    v_and_b32 v13, 3, v3
    v_lshl_or_b32 v12, v13, 3, v12
    v_add_u32 v12, {WB}, v12
    v_xor_b32 v13, 32, v12
    v_xor_b32 v14, 64, v12
    v_xor_b32 v15, 96, v12
    s_mul_i32 s40, s6, {TABH}
    s_add_u32 s40, s40, s5
    s_add_u32 s40, s40, s17
    s_sub_i32 s41, s7, s17
    s_min_i32 s41, s41, 4096
    """)
    srd_off(A, 36, 20, 21, 's40', 's41')
    PFK = 'nok2pf' not in OPT
    if PFK:
        srd_off(A, 28, 44, 45, 's22', 's16')
        srd_off(A, 32, 50, 51, 's22', 's16')
        A(f"""
        s_lshl_b32 s40, s23, 10
        v_lshlrev_b32 v96, 8, v3
        s_getpc_b64 s[42:43]
        k1_pc:
        s_add_u32 s42, s42, k2_kernel - k1_pc
        s_addc_u32 s43, s43, 0
        s_lshl_b32 s41, s23, 8
        v_lshlrev_b32 v97, 7, v3
        v_add_u32 v97, s41, v97
        v_cmp_gt_u32 vcc, k2_kernel_end - k2_kernel - 4, v97
        s_and_b32 vcc_lo, vcc_lo, 3
        s_mov_b32 vcc_hi, 0
        """)
    A(f"""
    v_lshlrev_b32 v6, 10, v4
    v_lshl_or_b32 v6, v5, 4, v6
    s_mov_b32 s16, {hex(NLOG2E)}
    s_mov_b32 s17, {hex(NLOG2E)}
    s_waitcnt vmcnt(4)
    s_barrier
    s_barrier
    """)
    stamp(A, prof, 1)
    XF = 16
    WF = 32
    AC = 64
    steps = [(s, m, c) for s in range(4) for m in range(2) for c in range(4)]
    PD = 4
    def rd(i):
        s, m, c = steps[i]; b = WF + 4 * (i % 8)
        for u in range(2):
            A(f'ds_read_b64_tr_b16 v[{b+2*u}:{b+2*u+1}], v{12+c} offset:{m*16384 + (32*s+4*u)*128}')
    for i in range(PD): rd(i)
    A('s_waitcnt vmcnt(0)')
    if PFK:
        A("""
        s_cmp_lg_u32 s4, 4
        s_cbranch_scc1 k1_nopf
        s_mov_b64 exec, 15
        buffer_load_dword v98, v96, s[28:31], s40 offen
        buffer_load_dword v98, v96, s[32:35], s40 offen
        s_mov_b64 exec, vcc
        s_cbranch_execz k1_nopf
        global_load_dword v98, v97, s[42:43]
        k1_nopf:
        s_mov_b64 exec, -1
        """)
    stamp(A, prof, 2)
    for s in range(4):
        A(f'ds_read_b128 v[{XF+4*s}:{XF+4*s+3}], v{8+s} offset:{XB}')
    A('s_waitcnt lgkmcnt(0)')
    for i in range(32):
        s, m, c = steps[i]; b = WF + 4 * (i % 8)
        if i + PD < 32:
            rd(i + PD); A(f's_waitcnt lgkmcnt({2*PD})')
        else:
            A(f's_waitcnt lgkmcnt({2*(31-i)})')
        acc = AC + 16 * m + 4 * c
        cin = '0' if s == 0 else f'v[{acc}:{acc+3}]'
        A(f'v_mfma_f32_16x16x32_bf16 v[{acc}:{acc+3}], v[{XF+4*s}:{XF+4*s+3}], v[{b}:{b+3}], {cin}')
    stamp(A, prof, 3)
    A('s_nop 3')
    for c in range(4):
        for u in range(2):
            A(f'v_pk_mul_f32 v[{AC+4*c+2*u}:{AC+4*c+2*u+1}], v[{AC+4*c+2*u}:{AC+4*c+2*u+1}], s[16:17]')
    for i in range(4):
        o = 16 + 4 * i
        A(f'v_cvt_pk_bf16_f32 v{o}, v{AC+i}, v{AC+4+i}')
        A(f'v_cvt_pk_bf16_f32 v{o+1}, v{AC+8+i}, v{AC+12+i}')
        A(f'v_cvt_pk_bf16_f32 v{o+2}, v{AC+16+i}, v{AC+20+i}')
        A(f'v_cvt_pk_bf16_f32 v{o+3}, v{AC+24+i}, v{AC+28+i}')
        A(f'buffer_store_dwordx4 v[{o}:{o+3}], v6, s[36:39], 0 offen offset:{256*i}')
    A(f"""
    s_or_b32 s40, s4, s3
    s_cmp_lg_u32 s40, 0
    s_cbranch_scc1 k1_nonull
    s_mul_i32 s40, s6, {TABH}
    s_add_u32 s40, s40, {N*256}
    """)
    srd_off(A, 24, 20, 21, 's40', 256)
    A("""
    v_mov_b32 v32, 0x7f7f7f7f
    v_mov_b32 v33, 0x7f7f7f7f
    v_mov_b32 v34, 0
    v_mov_b32 v35, 0
    v_lshlrev_b32 v7, 4, v3
    buffer_store_dwordx4 v[32:35], v7, s[24:27], 0 offen
    k1_nonull:
    """)
    stamp(A, prof, 6)
    if prof:
        A('s_waitcnt vmcnt(0)\ns_add_u32 s4, s4, 5')
        stamp(A, prof, 7)
        stamp_out(A, prof, 20, 21, 4, 0)
    if 'dbg' in OPT: A('s_add_u32 s4, s4, 5')
    dbg_end(A, 1)
    A('k1_exit:')
    A('s_endpgm')
    A('k1_kernel_end:')
    return A.text(), LDS

def gen_k2(prof):
    A = Asm()
    HEAD = 81920
    XB = HEAD; WA = XB + 20480; WU = WA + 16384
    EL = HEAD + 32768; CAPR = 3904; PL = EL + CAPR * 8
    CAPT = CAPR - 16
    CNT = PL + CAPR * 4; STA = CNT + 512; HIN = STA + 512; MISC = HIN + 640; ZER = MISC + 16
    NZ = (ZER + 96 - CNT) // 16
    LDS = ZER + 96
    assert LDS <= 163840 and WU + 16384 <= CNT
    RC = 42
    R_ = 8
    MK = 60
    TA = 74; TB = 82
    def pr(a): return f'v[{a}:{a+1}]'
    WC = WU + 16384
    assert WC + 512 <= CNT
    PF = 0 if 'nopf' in OPT else int(([o[2:] for o in OPT if o.startswith('pf')] + ['14'])[0])
    PA = int(([o[2:] for o in OPT if o.startswith('pa')] + ['0'])[0])
    A('k2_kernel:')
    dbg_start(A)
    stamp(A, prof, 0)
    A("""
    s_cmp_ge_u32 s2, 256
    s_cbranch_scc1 k2_exit
    s_load_dwordx2 s[18:19], s[0:1], 88
    s_load_dwordx2 s[8:9], s[0:1], 0
    s_load_dwordx2 s[10:11], s[0:1], 32
    s_load_dwordx4 s[12:15], s[0:1], 48
    s_load_dwordx2 s[16:17], s[0:1], 72
    s_mov_b32 s100, 1
    v_lshrrev_b32 v1, 6, v0
    v_and_b32 v3, 63, v0
    v_readfirstlane_b32 s4, v1
    s_bfe_u32 s3, s2, 0x20001
    s_lshl_b32 s3, s3, 5
    s_lshr_b32 s78, s2, 3
    s_add_u32 s3, s3, s78
    s_and_b32 s5, s2, 1
    s_mul_i32 s6, s3, 625
    s_add_u32 s7, s6, 632
    s_add_u32 s6, s6, 7
    s_lshr_b32 s6, s6, 3
    s_lshr_b32 s7, s7, 3
    s_sub_u32 s7, s7, s6
    v_lshrrev_b32 v1, 2, v0
    v_lshlrev_b32 v2, 9, v1
    s_lshl_b32 s20, s3, 2
    v_lshrrev_b32 v66, 4, v3
    v_and_b32 v67, 15, v3
    v_xor_b32 v72, v67, v66
    v_lshlrev_b32 v72, 4, v72
    v_lshl_or_b32 v68, v66, 8, v72
    s_and_b32 s21, s4, 3
    s_lshl_b32 s21, s21, 6
    v_xor_b32 v68, s21, v68
    v_lshrrev_b32 v69, 3, v3
    v_and_b32 v70, 7, v3
    v_lshlrev_b32 v70, 4, v70
    v_lshl_or_b32 v73, v69, 8, v70
    v_and_b32 v71, 16, v3
    s_and_b32 s21, s4, 1
    s_lshl_b32 s21, s21, 6
    v_lshl_or_b32 v71, v71, 1, s21
    v_xor_b32 v70, v73, v71
    v_and_b32 v24, 3, v0
    """)
    A(f"""
    v_mul_u32_u24 v1, {CH*12}, v1
    v_lshlrev_b32 v25, 1, v3
    s_cmp_ge_u32 s4, 10
    s_cbranch_scc1 k2_noaddr
    v_lshrrev_b32 v74, 3, v0
    v_bfe_u32 v4, v0, 2, 1
    v_lshl_or_b32 v4, s5, 3, v4
    v_xor_b32 v4, v4, v74
    v_and_b32 v4, 15, v4
    v_lshlrev_b32 v74, 8, v74
    v_lshl_or_b32 v4, v4, 4, v74
    v_lshl_or_b32 v4, v24, 2, v4
    v_add_u32 v4, {XB}, v4
    v_xor_b32 v5, 32, v4
    v_xor_b32 v6, 64, v4
    v_xor_b32 v7, 96, v4
    s_lshr_b32 s22, s4, 1
    s_and_b32 s21, s4, 1
    s_lshl_b32 s23, s22, 12
    s_add_u32 s23, s23, {XB}
    v_lshl_or_b32 v18, v67, 8, v72
    v_add_u32 v18, s23, v18
    v_xor_b32 v19, 64, v18
    v_xor_b32 v20, 128, v18
    v_xor_b32 v21, 192, v18
    v_bfe_u32 v22, v3, 2, 2
    v_lshl_add_u32 v14, v66, 3, v22
    v_bfe_u32 v22, v3, 3, 2
    v_lshlrev_b32 v22, 5, v22
    v_lshl_or_b32 v14, v14, 7, v22
    v_lshl_or_b32 v14, v24, 3, v14
    s_lshl_b32 s23, s21, 14
    s_add_u32 s23, s23, {WA}
    v_add_u32 v14, s23, v14
    v_xor_b32 v15, 32, v14
    v_xor_b32 v16, 64, v14
    v_xor_b32 v17, 96, v14
    s_lshl_b32 s23, s22, 14
    s_lshl_b32 s22, s21, 8
    s_add_u32 s23, s23, s22
    s_add_u32 s23, s23, 512
    v_lshlrev_b32 v22, 12, v66
    v_lshl_or_b32 v22, v67, 4, v22
    v_add_u32 v22, s23, v22
    s_cmp_eq_u32 s21, 0
    s_cselect_b32 s76, {hex(NLOG2E)}, 1.0
    s_cselect_b32 s21, {hex(M60)}, 0
    v_mov_b32 v23, s21
    k2_noaddr:
    s_waitcnt lgkmcnt(0)
    """)
    srd_off(A, 24, 18, 19, HDRO, NPROD * 512)
    A('buffer_load_dword v2, v2, s[24:27], s20 offen')
    A('s_lshl_b32 s20, s6, 8')
    A(f's_sub_u32 s21, {N*256}, s20')
    srd_off(A, 28, 8, 9, 's20', 's21')
    A('s_lshl_b32 s22, s5, 7\ns_sub_u32 s23, 32768, s22')
    srd_off(A, 32, 10, 11, 's22', 's23')
    srd_off(A, 36, 14, 15, 's22', 's23')
    A('s_sub_u32 s23, 1024, s22')
    srd_off(A, 40, 12, 13, 's22', 's23')
    if 'hb' in OPT: A('s_barrier')
    A(f"""
    s_lshl_b32 s20, s4, 10
    s_lshl_b32 s21, s4, 11
    s_add_u32 m0, s20, {XB}
    s_nop 0
    buffer_load_dwordx4 v68, s[28:31], s20 offen lds
    s_add_u32 m0, s20, {WA}
    s_nop 0
    buffer_load_dwordx4 v70, s[32:35], s21 offen lds
    s_add_u32 m0, s20, {WU}
    s_nop 0
    buffer_load_dwordx4 v70, s[36:39], s21 offen lds
    s_cmp_ge_u32 s4, 5
    s_cbranch_scc1 k2_nox2
    s_cmp_eq_u32 s4, 4
    s_cbranch_scc1 k2_wc
    s_add_u32 s20, s20, 16384
    s_add_u32 m0, s20, {XB}
    s_nop 0
    buffer_load_dwordx4 v68, s[28:31], s20 offen lds
    s_branch k2_nox2
    k2_wc:
    s_mov_b32 m0, {WC}
    s_mov_b32 exec_hi, 0
    buffer_load_dwordx4 v73, s[40:43], 0 offen lds
    s_mov_b64 exec, -1
    k2_nox2:
    """)
    srd_off(A, 44, 18, 19, RECO, NPROD * CH * 12)
    A(f"""
    v_mov_b64 v[74:75], 0
    v_mov_b64 v[76:77], 0
    v_lshrrev_b32 v78, 5, v0
    v_and_b32 v79, 31, v0
    v_lshlrev_b32 v79, 4, v79
    v_lshl_or_b32 v78, v78, 10, v79
    ds_write_b128 v78, v[74:77]
    ds_write_b128 v78, v[74:77] offset:32768
    s_cmp_ge_u32 s4, 8
    s_cbranch_scc1 k2_noz
    v_add_u32 v78, 0x10000, v78
    ds_write_b128 v78, v[74:77]
    s_cmp_ge_u32 s4, 2
    s_cbranch_scc1 k2_noz
    v_lshlrev_b32 v78, 4, v0
    v_add_u32 v78, {CNT}, v78
    v_cmp_gt_u32 vcc, {NZ}, v0
    s_and_saveexec_b64 s[20:21], vcc
    ds_write_b128 v78, v[74:77]
    s_mov_b64 exec, s[20:21]
    k2_noz:
    """)
    A('s_lshl_b32 s20, s6, 8\ns_add_u32 s20, s20, s22\ns_lshl_b32 s21, s7, 8\ns_sub_u32 s21, s21, s22')
    srd_off(A, 52, 16, 17, 's20', 's21')
    A(f's_mul_i32 s20, s5, {TABH}')
    srd_off(A, 48, 18, 19, 's20', N + 1, stride=(1 if 'row0' in OPT else 256))
    A(f"""
    v_and_b32 v78, 1, v3
    v_lshlrev_b32 v78, 4, v78
    v_mov_b32 v79, 0x3f80
    v_lshlrev_b32 v79, v78, v79
    v_and_b32 v78, 2, v3
    v_cmp_eq_u32 vcc, 0, v78
    s_mov_b32 s56, {hex(C60)}
    s_mov_b32 s57, {hex(C60)}
    v_cndmask_b32 v12, 0, v79, vcc
    v_cndmask_b32 v13, v79, v74, vcc
    s_mov_b32 s58, 0x22221111
    s_mov_b32 s59, 0x88884444
    v_add_u32 v25, {WC}, v25
    s_waitcnt vmcnt(3)
    v_and_b32 v79, 0xffff, v2
    v_add_u32 v79, v79, v24
    v_mad_u32_u24 v1, v79, 12, v1
    v_lshrrev_b32 v2, 16, v2
    v_sub_u32 v2, v2, v24
    """)
    stamp(A, prof, 1)
    A('k2_loadrec:')
    A(f's_mov_b32 s79, {4*R_}')
    A('s_waitcnt vmcnt(0) lgkmcnt(0)\ns_barrier')
    stamp(A, prof, 2)
    RS = int(([o[2:] for o in OPT if o.startswith('rs')] + ['2'])[0])
    def recload(r0, r1, out):
        for q in range(r0, r1):
            if q + 1 < R_: A(f'v_cmp_lt_i32 s[{MK+2*q+2}:{MK+2*q+3}], {4*q+4}, v2')
            A(f's_mov_b64 exec, s[{MK+2*q}:{MK+2*q+1}]')
            A(f's_cbranch_execz {out}')
            A(f'buffer_load_dwordx3 v[{RC+4*q}:{RC+4*q+2}], v1, s[44:47], 0 offen offset:{48*q}')
    A(f'v_cmp_lt_i32 s[{MK}:{MK+1}], 0, v2\ns_mov_b64 s[{MK+2*RS}:{MK+2*RS+1}], 0')
    recload(0, RS, 'k2_ldiss')
    A('k2_ldiss:\ns_mov_b64 exec, -1')
    stamp(A, prof, 16)
    A('s_cmp_eq_u32 s100, 0\ns_cbranch_scc1 k2_wcdone')
    XF = 74; WF = 90; AC = 26
    steps = [(s, c) for s in range(4) for c in range(4)]
    PD = 7
    def rd(i):
        s, c = steps[i]; b = WF + 4 * (i % 8)
        for u in range(2):
            A(f'ds_read_b64_tr_b16 v[{b+2*u}:{b+2*u+1}], v{14+c} offset:{(32*s+4*u)*128}')
    A('s_cmp_ge_u32 s4, 10\ns_cbranch_scc1 k2_nogemm')
    for s in range(4):
        A(f'ds_read_b128 v[{XF+4*s}:{XF+4*s+3}], v{18+s}')
    for i in range(5): rd(i)
    A('s_waitcnt lgkmcnt(10)')
    rd(5); rd(6)
    for i in range(16):
        s, c = steps[i]; b = WF + 4 * (i % 8)
        A(f's_waitcnt lgkmcnt({2*min(PD-1, 15-i)})')
        acc = AC + 4 * c
        cin = '0' if s == 0 else f'v[{acc}:{acc+3}]'
        A(f'v_mfma_f32_16x16x32_bf16 v[{acc}:{acc+3}], v[{XF+4*s}:{XF+4*s+3}], v[{b}:{b+3}], {cin}')
        if i + PD < 16: rd(i + PD)
    for c in range(4):
        A(f'ds_read_b32 v{4+c}, v{4+c}')
    A('s_nop 3')
    for i in range(4):
        for c in range(4):
            A(f'v_fma_f32 v{XF+4*i+c}, v{AC+4*c+i}, s76, v23')
        A(f'ds_write_b128 v22, v[{XF+4*i}:{XF+4*i+3}] offset:{i*1024}')
    A('k2_nogemm:')
    A(f"""
    ds_read_u16 v14, v25
    ds_read_u16 v15, v25 offset:128
    ds_read_u16 v16, v25 offset:256
    ds_read_u16 v17, v25 offset:384
    """)
    recload(RS, R_, 'k2_ldis2')
    A(f"""
    k2_ldis2:
    s_mov_b64 exec, -1
    s_mov_b32 s20, {hex(NLOG2E)}
    s_waitcnt lgkmcnt(0)
    """)
    for k in range(4):
        A(f'v_lshlrev_b32 v{14+k}, 16, v{14+k}')
    for k in range(4):
        A(f'v_mul_f32 v{14+k}, s20, v{14+k}')
    A('v_cvt_pk_bf16_f32 v8, v14, v15\nv_cvt_pk_bf16_f32 v9, v16, v17')
    A('s_branch k2_gemmdone\nk2_wcdone:')
    recload(RS, R_, 'k2_ldis3')
    A('k2_ldis3:\ns_mov_b64 exec, -1\nk2_gemmdone:')
    stamp(A, prof, 3)
    TP = 102
    A(f"""
    v_and_b32 v23, 15, v3
    v_lshlrev_b32 v23, 4, v23
    v_mov_b32 v25, v23
    v_lshrrev_b32 v122, 4, v3
    s_lshl_b32 s88, s4, 2
    v_add_u32 v21, s88, v122
    v_lshl_add_u32 v24, v21, 9, v23
    v_add_u32 v24, {HEAD}, v24
    v_add_u32 v22, 1, v21
    v_bfe_u32 v123, v3, 2, 2
    v_mov_b32 v10, 32
    v_cndmask_b32 v11, 0, 64, s[58:59]
    v_mov_b64 v[34:35], 0
    v_mov_b64 v[36:37], 0
    v_mov_b64 v[38:39], 0
    v_mov_b64 v[40:41], 0
    s_mov_b64 s[82:83], 0
    s_mov_b64 s[84:85], 0
    v_mov_b32 v14, 1
    v_mov_b32 v15, {CNT}
    """)
    for k in range(8):
        A(f'v_mov_b32 v{TP+2*k+1}, v23')
    if PF:
        A(f"""
        s_mul_i32 s20, s78, 313
        s_mul_i32 s21, s4, {PF // 2}
        s_add_u32 s20, s20, s21
        v_lshrrev_b32 v120, 1, v3
        v_add_u32 v120, s20, v120
        v_and_b32 v121, 1, v3
        v_lshlrev_b32 v121, 7, v121
        """)
    A('s_waitcnt vmcnt(0)')
    if PF:
        A(f's_mov_b32 exec_lo, {hex(((1 << PF) - 1) & 0xffffffff)}\ns_mov_b32 exec_hi, {hex(((1 << PF) - 1) >> 32)}')
        A('buffer_load_dword v124, v[120:121], s[48:51], 0 idxen offen')
    stamp(A, prof, 4)
    A('k2_rank:')
    for r in range(R_):
        A(f's_mov_b64 exec, s[{MK+2*r}:{MK+2*r+1}]')
        A(f's_cbranch_execz k2_rankdone')
        A(f'v_lshrrev_b32 v{TA+r}, 14, v{RC+4*r+2}')
        A(f'v_add_u32 v{TA+r}, v15, v{TA+r}')
        A(f'ds_add_rtn_u32 v{RC+4*r+3}, v{TA+r}, v14')
    A(f"""
    v_cmp_lt_i32 vcc, {4*R_}, v2
    s_and_b64 exec, exec, vcc
    s_cbranch_execz k2_rankdone
    ds_write_b32 v15, v14 offset:{MISC - CNT}
    k2_rankdone:
    s_mov_b64 exec, -1
    s_waitcnt lgkmcnt(0)
    s_barrier
    """)
    stamp(A, prof, 5)
    A(f"""
    s_cmp_lg_u32 s4, 0
    s_cbranch_scc1 k2_noscan
    v_lshl_add_u32 v16, v3, 3, v15
    ds_read_b64 v[18:19], v16
    s_waitcnt lgkmcnt(0)
    v_add_u32 v18, 1, v18
    v_add_u32 v19, 1, v19
    v_and_b32 v18, -2, v18
    v_and_b32 v19, -2, v19
    v_add_u32 v26, v18, v19
    v_mov_b32 v27, v26
    """)
    scan64(A, 26)
    A(f"""
    v_sub_u32 v26, v26, v27
    v_add_u32 v27, v26, v18
    ds_write_b64 v16, v[26:27] offset:{STA - CNT}
    s_waitcnt lgkmcnt(0)
    k2_noscan:
    s_barrier
    """)
    stamp(A, prof, 6)
    A(f"""
    ds_read_b32 v16, v15 offset:{STA - CNT + 4*100}
    ds_read_b32 v17, v15 offset:{MISC - CNT}
    """)
    for r in range(R_):
        A(f's_mov_b64 exec, s[{MK+2*r}:{MK+2*r+1}]')
        A(f's_cbranch_execz k2_st')
        A(f'ds_read_b32 v{TB+r}, v{TA+r} offset:{STA - CNT}')
    A(f"""
    k2_st:
    s_mov_b64 exec, -1
    v_lshl_add_u32 v18, v0, 2, v15
    s_cmp_ge_u32 s4, 2
    s_cbranch_scc1 k2_nopad0
    ds_read_b32 v19, v18
    ds_read_b32 v20, v18 offset:{STA - CNT}
    k2_nopad0:
    s_mov_b32 s20, {EL}
    s_mov_b32 s21, {PL}
    s_waitcnt lgkmcnt(0)
    v_readfirstlane_b32 s22, v16
    v_readfirstlane_b32 s86, v17
    s_cmp_gt_u32 s22, {CAPT}
    s_cbranch_scc1 k2_shrink
    s_cmp_ge_u32 s4, 2
    s_cbranch_scc1 k2_nopad
    v_subrev_u32 v26, 80, v0
    v_cmp_gt_u32 vcc, 80, v0
    v_min_u32 v27, 79, v0
    v_lshlrev_b32 v27, 16, v27
    v_or_b32 v27, {N}, v27
    v_cndmask_b32 v28, v26, v19, vcc
    v_add_u32 v20, v20, v28
    v_and_b32 v19, 1, v19
    v_cmp_eq_u32 vcc, 1, v19
    v_cmp_gt_u32 s[76:77], 8, v26
    s_or_b64 exec, vcc, s[76:77]
    s_cbranch_execz k2_nopad
    v_lshl_add_u32 v28, v20, 3, s20
    v_lshl_add_u32 v20, v20, 2, s21
    ds_write_b64 v28, v[34:35]
    ds_write_b32 v20, v27
    k2_nopad:
    """)
    for r in range(R_):
        A(f's_mov_b64 exec, s[{MK+2*r}:{MK+2*r+1}]')
        A(f's_cbranch_execz k2_scat')
        A(f'v_add_u32 v{TB+r}, v{TB+r}, v{RC+4*r+3}')
        A(f'v_lshl_add_u32 v{TA+r}, v{TB+r}, 3, s20')
        A(f'v_lshl_add_u32 v{TB+r}, v{TB+r}, 2, s21')
        A(f'ds_write_b64 v{TA+r}, v[{RC+4*r}:{RC+4*r+1}]')
        A(f'ds_write_b32 v{TB+r}, v{RC+4*r+2}')
    A(f"""
    k2_scat:
    s_mov_b64 exec, -1
    s_add_u32 s22, s22, 6
    s_lshr_b32 s22, s22, 3
    s_lshr_b32 s23, s22, 4
    s_and_b32 s22, s22, 15
    s_mul_i32 s87, s23, s4
    s_min_u32 s88, s4, s22
    s_add_u32 s87, s87, s88
    s_cmp_lt_u32 s4, s22
    s_addc_u32 s23, s23, 0
    s_lshl_b32 s87, s87, 5
    s_add_u32 s21, s21, s87
    s_lshl_b32 s87, s87, 1
    s_add_u32 s20, s20, s87
    v_mul_u32_u24 v16, s23, v122
    v_mul_u32_u24 v17, s23, v123
    v_mov_b32 v26, {ZER}
    v_mov_b32 v20, v14
    v_lshl_add_u32 v14, v16, 3, s21
    v_lshl_add_u32 v15, v17, 4, s20
    v_mov_b32 v18, v24
    v_mov_b32 v21, v22
    v_cndmask_b32 v15, v26, v15, s[58:59]
    s_mov_b32 s76, 0x00010001
    s_mov_b32 s77, 0x00010001
    s_waitcnt lgkmcnt(0)
    s_barrier
    """)
    stamp(A, prof, 7)
    dbg_mid(A, 92)
    RB = 70; DD = [42, 102]; ND = [16, 17, 19, 119]; MS = [82, 84]
    Ha = 50; Hb = 54; P = 58; Sg = 62; Q = 66; DEN = 34; NUM = 38
    def y1(d): return f'v_mfma_f32_16x16x16_bf16 v[{d}:{d+3}], v[26:27], v[8:9], v[30:33]'
    def y2(d): return f'v_mfma_f32_16x16x16_bf16 v[{d+4}:{d+7}], v[28:29], v[8:9], v[30:33]'
    def y3(d, r): return f'v_mfma_f32_4x4x4_16b_bf16 v[{d}:{d+3}], v[12:13], v[{r}:{r+1}], v[{d}:{d+3}]'
    def y4(d, r): return f'v_mfma_f32_4x4x4_16b_bf16 v[{d+4}:{d+7}], v[12:13], v[{r+4}:{r+5}], v[{d+4}:{d+7}]'
    A('s_setprio 3\ns_sub_u32 s23, s23, 1\ns_cbranch_scc1 k2_loopdone')
    for k in range(8):
        A(f'ds_read_u16 v{TP+2*k}, v14 offset:{4*k}')
    A(f"""
    ds_read_u16 v{ND[0]}, v14 offset:2
    ds_read_b128 v[26:29], v15
    ds_read_u16 v{ND[1]}, v14 offset:10
    ds_read_u16 v{ND[2]}, v14 offset:18
    ds_read_u16 v22, v14 offset:32
    ds_read_u16 v24, v14 offset:36
    """)
    def G(k):
        A(f'buffer_load_dwordx4 v[{RB+8*k}:{RB+8*k+3}], v[{TP+4*k}:{TP+4*k+1}], s[48:51], 0 idxen offen')
        A(f'buffer_load_dwordx4 v[{RB+8*k+4}:{RB+8*k+7}], v[{TP+4*k+2}:{TP+4*k+3}], s[48:51], 0 idxen offen')
    NG0 = int(([o[2:] for o in OPT if o.startswith('g0')] + ['2'])[0])
    for k in range(NG0):
        A(f's_waitcnt lgkmcnt({12-2*k})')
        G(k)
    A(f"""
    s_waitcnt lgkmcnt(5)
    v_lshl_add_u32 v118, v{ND[0]}, 10, v23
    ds_read_b128 v[30:33], v118 offset:512
    v_lshlrev_b32 v118, 3, v{ND[0]}
    v_add_u32 v118, {HIN}, v118
    s_mov_b64 exec, s[76:77]
    ds_add_u32 v118, v20
    ds_max_u32 v118, v21 offset:4
    s_mov_b64 exec, -1
    s_waitcnt lgkmcnt(2)
    {y1(DD[0])}
    v_cmp_ne_u32 s[{MS[0]}:{MS[0]+1}], v{ND[0]}, v{ND[1]}
    v_lshl_add_u32 v118, v{ND[1]}, 10, v23
    {y2(DD[0])}
    ds_read_b128 v[26:29], v15 offset:16
    ds_read_b128 v[30:33], v118 offset:512
    s_waitcnt vmcnt({2*NG0-2})
    s_nop 2
    {y3(DD[0], RB)}
    {y4(DD[0], RB)}
    """)
    for k in range(NG0, 4): G(k)
    A('s_waitcnt lgkmcnt(0)\ns_nop 1')
    stamp(A, prof, 17)
    A('k2_loop:')
    TH = [int(x) for x in ([o[2:] for o in OPT if o.startswith('th')] + ['12_8_4'])[0].split('_')]
    for u in range(4):
        D = DD[u & 1]; Dn = DD[(u + 1) & 1]; Da = D; Db = D + 4
        Rc = RB + 8 * u; Rn = RB + 8 * ((u + 1) % 4)
        g0 = 's_nop 0' if 'nogather' in OPT else f'buffer_load_dwordx4 v[{Rc}:{Rc+3}], v[22:23], s[48:51], 0 idxen offen'
        g1 = 's_nop 0' if 'nogather' in OPT else f'buffer_load_dwordx4 v[{Rc+4}:{Rc+7}], v[24:25], s[48:51], 0 idxen offen'
        e = [f'v_exp_f32_e64 v{D+i}, v{D+i} clamp' for i in range(8)]
        if 'modprio' in OPT: A(f's_setprio {3-u}')
        if 'oob' in OPT:
            A(f's_cmp_gt_u32 s23, 3\ns_cselect_b32 s50, {N+1}, 0')
        if u == 0 and 'noprio' not in OPT and 'modprio' not in OPT:
            A(f's_cmp_lt_u32 s23, {TH[0]}\ns_cbranch_scc1 k2_setp\nk2_bkp:')
        X = lambda tag, ins: 'v_mov_b32 v125, v3' if tag in OPT else ins
        A(f"""
        {X('xm3', f'v_mfma_f32_4x4x4_16b_bf16 v[{Ha}:{Ha+3}], v[12:13], v[{Rc+2}:{Rc+3}], 0')}
        {e[0]}
        {X('xm3', f'v_mfma_f32_4x4x4_16b_bf16 v[{Hb}:{Hb+3}], v[12:13], v[{Rc+6}:{Rc+7}], 0')}
        {e[1]}
        {X('xy12', y1(Dn))}
        {e[2]}
        {g0}
        {e[3]}
        {g1}
        {e[4]}
        {X('xy12', y2(Dn))}
        {e[5]}
        ds_read_b128 v[26:29], v15 offset:{(u+2)*16}
        ds_read_u16 v22, v14 offset:{(u+5)*8}
        {e[6]}
        ds_read_u16 v24, v14 offset:{(u+5)*8+4}
        ds_read_u16 v{ND[(u+3)%4]}, v14 offset:{(u+3)*8+2}
        v_cmp_ne_u32 vcc, v{ND[(u+1)%4]}, v{ND[(u+2)%4]}
        {e[7]}
        {'s_nop 0' if 'noev' in OPT else f's_cbranch_vccnz k2_eva{u}'}
        k2_bka{u}:
        v_pk_add_f32 {pr(Da)}, {pr(Da)}, s[56:57]
        v_pk_add_f32 {pr(Db)}, {pr(Db)}, s[56:57]
        v_pk_add_f32 {pr(Da+2)}, {pr(Da+2)}, s[56:57]
        v_pk_add_f32 {pr(Db+2)}, {pr(Db+2)}, s[56:57]
        v_pk_mul_f32 {pr(P)}, {pr(Da)}, {pr(Db)}
        v_pk_mul_f32 {pr(P+2)}, {pr(Da+2)}, {pr(Db+2)}
        v_pk_mul_f32 {pr(Q)}, {pr(Db)}, {pr(Ha)}
        s_waitcnt vmcnt(6) lgkmcnt(4)
        {X('xy34', y3(Dn, Rn))}
        v_rcp_f32 v{P}, v{P}
        {X('xy34', y4(Dn, Rn))}
        v_rcp_f32 v{P+1}, v{P+1}
        v_rcp_f32 v{P+2}, v{P+2}
        v_rcp_f32 v{P+3}, v{P+3}
        v_pk_mul_f32 {pr(Q+2)}, {pr(Db+2)}, {pr(Ha+2)}
        v_pk_add_f32 {pr(Sg)}, {pr(Da)}, {pr(Db)}
        v_pk_add_f32 {pr(Sg+2)}, {pr(Da+2)}, {pr(Db+2)}
        v_pk_fma_f32 {pr(Q)}, {pr(Da)}, {pr(Hb)}, {pr(Q)}
        v_pk_fma_f32 {pr(Q+2)}, {pr(Da+2)}, {pr(Hb+2)}, {pr(Q+2)}
        """)
        if u == 3:
            A('v_lshl_add_u64 v[14:15], v[14:15], 0, v[10:11]')
        A(f"""
        v_pk_fma_f32 {pr(DEN)}, {pr(Sg)}, {pr(P)}, {pr(DEN)}
        v_pk_fma_f32 {pr(DEN+2)}, {pr(Sg+2)}, {pr(P+2)}, {pr(DEN+2)}
        v_pk_fma_f32 {pr(NUM)}, {pr(Q)}, {pr(P)}, {pr(NUM)}
        v_pk_fma_f32 {pr(NUM+2)}, {pr(Q+2)}, {pr(P+2)}, {pr(NUM+2)}
        s_sub_u32 s23, s23, 1
        s_cbranch_scc1 k2_flush
        s_waitcnt lgkmcnt(0)
        s_cmp_lg_u64 s[{MS[u&1]}:{MS[u&1]+1}], 0
        """)
        if u == 3:
            A('s_cbranch_scc0 k2_loop')
        else:
            A(f's_cbranch_scc1 k2_evb{u}\nk2_bkb{u}:')
    for u in (3, 0, 1, 2):
        m = MS[u & 1]
        A(f"""
        k2_evb{u}:
        s_mov_b64 exec, s[{m}:{m+1}]
        ds_write_b128 v18, v[34:37]
        ds_write_b128 v18, v[38:41] offset:256
        v_lshl_add_u32 v18, v{ND[(u+1)%4]}, 10, v23
        s_mov_b64 s[{m}:{m+1}], 0
        ds_read_b128 v[34:37], v18
        ds_read_b128 v[38:41], v18 offset:256
        s_mov_b64 exec, -1
        s_branch {'k2_loop' if u == 3 else f'k2_bkb{u}'}
        """)
    for u in range(4):
        m = MS[(u + 1) & 1]
        A(f"""
        k2_eva{u}:
        s_mov_b64 exec, vcc
        v_lshl_add_u32 v118, v{ND[(u+2)%4]}, 10, v23
        s_mov_b64 s[{m}:{m+1}], vcc
        ds_read_b128 v[30:33], v118 offset:512
        s_mov_b64 exec, -1
        s_branch k2_bka{u}
        """)
    A(f"""
    k2_setp:
    s_setprio 2
    s_cmp_ge_u32 s23, {TH[1]}
    s_cbranch_scc1 k2_bkp
    s_setprio 1
    s_cmp_ge_u32 s23, {TH[2]}
    s_cbranch_scc1 k2_bkp
    s_setprio 0
    s_branch k2_bkp
    """) if 'modprio' not in OPT and 'noprio' not in OPT else None
    A("""
    k2_flush:
    ds_write_b128 v18, v[34:37]
    ds_write_b128 v18, v[38:41] offset:256
    k2_loopdone:
    s_setprio 0
    s_mov_b32 s50, 10001
    """)
    stamp(A, prof, 8)
    A(f"""
    v_lshrrev_b32 v14, 3, v0
    v_and_b32 v15, 7, v0
    v_lshlrev_b32 v17, 5, v15
    v_lshl_or_b32 v16, v14, 10, v17
    s_cmp_ge_u32 s4, 10
    s_cbranch_scc1 k2_nostat
    ds_read_b128 v[36:39], v16 offset:768
    ds_read_b128 v[40:43], v16 offset:784
    v_lshlrev_b32 v15, 2, v15
    v_lshl_or_b32 v15, v14, 8, v15
    v_lshlrev_b32 v14, 3, v14
    v_add_u32 v14, {HIN}, v14
    v_add_u32 v17, {HEAD - 512}, v17
    s_mov_b32 s20, {hex(EPS60)}
    s_mov_b32 s21, {hex(EPS60)}
    """)
    for k in range(4):
        A(f'v_lshlrev_b32 v{60+k}, 16, v{4+k}')
        A(f'v_and_b32 v{64+k}, 0xffff0000, v{4+k}')
    A('k2_nostat:\ns_waitcnt lgkmcnt(0)\ns_barrier')
    stamp(A, prof, 9)
    dbg_mid(A, 90)
    A(f"""
    s_cmp_ge_u32 s4, 10
    s_cbranch_scc1 k2_merged
    ds_read_b64 v[18:19], v14
    ds_read_b128 v[20:23], v16
    ds_read_b128 v[24:27], v16 offset:16
    ds_read_b128 v[28:31], v16 offset:256
    ds_read_b128 v[32:35], v16 offset:272
    s_waitcnt lgkmcnt(4)
    v_cmp_lt_u32 vcc, 0, v18
    v_lshl_add_u32 v19, v19, 9, v17
    s_and_b64 exec, exec, vcc
    s_cbranch_execz k2_mdone
    k2_mloop:
    ds_read_b128 v[44:47], v19
    ds_read_b128 v[48:51], v19 offset:16
    ds_read_b128 v[52:55], v19 offset:256
    ds_read_b128 v[56:59], v19 offset:272
    v_cmp_lt_u32 vcc, 1, v18
    v_subrev_u32 v18, 1, v18
    v_subrev_u32 v19, 512, v19
    s_waitcnt lgkmcnt(2)
    """)
    for k in range(8):
        if k == 4: A('s_waitcnt lgkmcnt(0)')
        A(f'v_pk_add_f32 {pr(20+2*k)}, {pr(20+2*k)}, {pr(44+2*k)}')
    A(f"""
    s_and_b64 exec, exec, vcc
    s_cbranch_execnz k2_mloop
    k2_mdone:
    s_mov_b64 exec, -1
    s_waitcnt lgkmcnt(0)
    k2_merged:
    s_cmp_lg_u32 s86, 0
    s_cbranch_scc1 k2_more
    s_cmp_ge_u32 s4, 10
    s_cbranch_scc1 k2_fin
    """)
    for k in range(4):
        A(f'v_pk_add_f32 {pr(20+2*k)}, {pr(20+2*k)}, s[20:21]')
    for k in range(8):
        A(f'v_rcp_f32 v{20+k}, v{20+k}')
    A('s_nop 0')
    for k in range(4):
        A(f'v_pk_fma_f32 {pr(28+2*k)}, {pr(28+2*k)}, {pr(20+2*k)}, {pr(36+2*k)}')
    for k in range(8):
        A(f'v_max_f32 v{28+k}, 0, v{28+k}')
    for k in range(4):
        A(f'v_pk_add_f32 {pr(28+2*k)}, {pr(28+2*k)}, {pr(60+2*k)}')
    for k in range(4):
        A(f'v_cvt_pk_bf16_f32 v{20+k}, v{28+k}, v{32+k}')
        A(f'buffer_store_dword v{20+k}, v15, s[52:55], 0 offen offset:{32*k}' + (' nt' if 'nto' in OPT else ''))
    A('k2_fin:')
    stamp(A, prof, 10)
    if prof:
        A('s_waitcnt vmcnt(0)')
        stamp(A, prof, 11)
        stamp_out(A, prof, 18, 19, 4, 1)
    dbg_end(A, 2)
    A('k2_exit:\ns_endpgm')
    zero_misc = f"""
    v_mov_b32 v74, 0
    v_mov_b32 v75, 0
    v_mov_b32 v76, 0
    v_mov_b32 v77, 0
    v_lshlrev_b32 v78, 4, v0
    v_add_u32 v78, {CNT}, v78
    v_cmp_gt_u32 vcc, {NZ}, v0
    s_and_saveexec_b64 s[20:21], vcc
    ds_write_b128 v78, v[74:77]
    s_mov_b64 exec, s[20:21]
    """
    A(f"""
    k2_more:
    s_waitcnt vmcnt(0)
    s_cmp_ge_u32 s4, 10
    s_cbranch_scc1 k2_more1
    ds_write_b128 v16, v[20:23]
    ds_write_b128 v16, v[24:27] offset:16
    ds_write_b128 v16, v[28:31] offset:256
    ds_write_b128 v16, v[32:35] offset:272
    k2_more1:
    s_waitcnt lgkmcnt(0)
    s_barrier
    """)
    A(zero_misc)
    A(f"""
    s_mul_i32 s20, s79, 12
    v_add_u32 v1, s20, v1
    v_subrev_u32 v2, s79, v2
    s_mov_b32 s100, 0
    s_branch k2_loadrec
    k2_shrink:
    s_barrier
    """)
    A(zero_misc)
    A(f"""
    s_mov_b64 s[{MK+6}:{MK+7}], 0
    s_mov_b32 s79, 12
    s_waitcnt lgkmcnt(0)
    s_barrier
    ds_write_b32 v15, v14 offset:{MISC - CNT}
    s_branch k2_rank
    k2_kernel_end:
    """)
    return A.text(), LDS

KD = '''.amdhsa_kernel {name}
  .amdhsa_next_free_vgpr {vgpr}
  .amdhsa_next_free_sgpr {sgpr}
  .amdhsa_accum_offset {acc}
  .amdhsa_group_segment_fixed_size 0
  .amdhsa_kernarg_size 96
  .amdhsa_user_sgpr_count 2
  .amdhsa_user_sgpr_kernarg_segment_ptr 1
  .amdhsa_system_sgpr_workgroup_id_x 1
  .amdhsa_float_denorm_mode_32 3
  .amdhsa_dx10_clamp 0
.end_amdhsa_kernel'''

def build(prof=False):
    k1, l1 = gen_k1(prof)
    k2, l2 = gen_k2(prof)
    head = open('standalone__edge_featured_mpnn_gatedgcn__graph.s.ref').read().split('\n')
    head = [h for h in head[:14]]
    out = head + [f'; @launch kernel=k1_kernel grid=(256,1,1) block=(640,1,1) lds={l1}',
                  *([f'; @launch kernel=k2_kernel grid=(256,1,1) block=(1024,1,1) lds={l2}'] * (2 if 'k2x2' in OPT else 1)),
                  '.amdgcn_target "amdgcn-amd-amdhsa--gfx950"', '.text']
    for nm, body in (('k1_kernel', k1), ('k2_kernel', k2)):
        out += [f'.globl {nm}', '.p2align 8', f'.type {nm},@function', body]
    out += ['.section .rodata,"a"', '.p2align 6', KD.format(name='k1_kernel', vgpr=128 if prof else 100, sgpr=102 if (prof or 'dbg' in OPT) else 56, acc=128 if prof else 100),
            '.p2align 6', KD.format(name='k2_kernel', vgpr=128, sgpr=102, acc=128)]
    return '\n'.join(out) + '\n'

if __name__ == '__main__':
    prof = '--prof' in sys.argv
    for a in sys.argv[2:]:
        if a.startswith('-O'): OPT.add(a[2:])
    dst = sys.argv[1]
    open(dst, 'w').write(build(prof))
```

```python
import sys
import gen as G
from gen import Asm, srd_off, scan64, stamp, stamp_out, N, TABH, MAGIC, NLOG2E, C60, EPS60, M60
OPT = G.OPT
NAME = 'standalone__edge_featured_mpnn_gatedgcn__graph_kernel'
NPROD = 250; CH = 1280
HDRO = 2 * TABH
RECO = HDRO + 0x40000
FLGO = RECO + NPROD * CH * 12
NONO = FLGO + 0x8000
TAG = 0x2A5
def opt(p, d): return ([o[len(p):] for o in OPT if o.startswith(p)] + [d])[0]

def gen(prof):
    A = Asm()
    def pr(a): return f'v[{a}:{a+1}]'
    ACC = 40960; HEAD = ACC + 40960; EL = HEAD + 32768; CAPR = 3904; PL = EL + CAPR * 8
    CAPT = CAPR - 16
    CNT = PL + CAPR * 4; STA = CNT + 512; HIN = STA + 512; MISC = HIN + 640; ZER = MISC + 16
    SYN = ZER + 96
    NZ1 = (SYN - CNT) // 16; NZ0 = NZ1 + 3
    LDS = SYN + 48
    assert LDS <= 163840
    WB = ACC; WA = HEAD; XB = EL; STG = XB + 20480; PST = STG + CH * 12; WC = PST + 2560; BCN = WC + 512
    assert BCN + 512 <= CNT
    RC = 42; R_ = 8; MK = 60; TA = 74; TB = 82
    PF = 0 if 'nopf' in OPT else int(opt('pf', '14'))
    SLP = int(opt('sl', '8'))
    SC = '' if 'plain' in OPT else ' sc1'
    def spin(lbl, off, val, vt=125, sl=0):
        A(f"""
        {lbl}:
        {f's_sleep {sl}' if sl else ''}
        ds_read_b32 v{vt}, v124 offset:{off}
        s_waitcnt lgkmcnt(0)
        v_readfirstlane_b32 s16, v{vt}
        s_cmp_lt_u32 s16, {val}
        s_cbranch_scc1 {lbl}
        """)
    A(f'{NAME}:')
    stamp(A, prof, 0)
    A(f"""
    s_cmp_ge_u32 s2, 256
    s_cbranch_scc1 k_exit
    s_load_dwordx8 s[8:15], s[0:1], 0
    s_load_dwordx16 s[60:75], s[0:1], 32
    s_mov_b32 s100, 1
    v_lshrrev_b32 v1, 6, v0
    v_and_b32 v3, 63, v0
    v_readfirstlane_b32 s4, v1
    s_bfe_u32 s3, s2, 0x20001
    s_lshl_b32 s3, s3, 5
    s_lshr_b32 s78, s2, 3
    s_add_u32 s3, s3, s78
    s_and_b32 s5, s2, 1
    s_mul_i32 s6, s3, 625
    s_add_u32 s7, s6, 632
    s_add_u32 s6, s6, 7
    s_lshr_b32 s6, s6, 3
    s_lshr_b32 s7, s7, 3
    s_sub_u32 s7, s7, s6
    s_lshl_b32 s6, s6, 8
    s_lshl_b32 s22, s5, 7
    v_mov_b32 v124, {SYN}
    v_mov_b32 v123, 1
    v_mov_b64 v[36:37], 0
    v_mov_b64 v[38:39], 0
    s_cmp_ge_u32 s4, 5
    s_cbranch_scc1 k_notbin
    """)
    A(f"""
    v_lshlrev_b32 v1, 4, v0
    v_lshlrev_b32 v2, 5, v0
    v_add_u32 v34, {CNT}, v1
    v_cmp_gt_u32 vcc, {NZ0}, v0
    s_and_saveexec_b64 s[20:21], vcc
    ds_write_b128 v34, v[36:39]
    s_mov_b64 exec, s[20:21]
    v_lshlrev_b32 v34, 3, v3
    v_add_u32 v35, {BCN}, v34
    ds_write_b64 v35, v[36:37]
    s_mul_i32 s20, s2, {CH*4}
    s_mul_i32 s21, s2, {CH*8}
    s_cmp_ge_u32 s2, {NPROD}
    s_cbranch_scc1 k_nobin
    s_waitcnt lgkmcnt(0)
    """)
    srd_off(A, 24, 14, 15, 's20', CH * 4)
    A('buffer_load_dwordx4 v[4:7], v1, s[24:27], 0 offen')
    srd_off(A, 28, 12, 13, 's20', CH * 4)
    A('buffer_load_dwordx4 v[8:11], v1, s[28:31], 0 offen')
    srd_off(A, 32, 10, 11, 's21', CH * 8)
    A('buffer_load_dwordx4 v[12:15], v2, s[32:35], 0 offen')
    A('buffer_load_dwordx4 v[16:19], v2, s[32:35], 0 offen offset:16')
    A('s_barrier\ns_setprio 2')
    A(f's_mul_i32 s20, s2, {CH*12}\ns_add_u32 s20, s20, {RECO}')
    srd_off(A, 36, 74, 75, 's20', CH * 12)
    A(f's_lshl_b32 s20, s2, 10\ns_add_u32 s20, s20, {HDRO}')
    srd_off(A, 40, 74, 75, 's20', 1024)
    A(f"""
    s_mov_b32 s17, {MAGIC}
    s_movk_i32 s18, 625
    s_mov_b32 s19, {BCN}
    s_lshl_b32 s20, s4, 9
    s_add_u32 s20, s20, {PST}
    v_add_u32 v33, s20, v34
    s_sub_u32 s20, s20, {BCN}
    v_mov_b32 v40, {STG}
    s_waitcnt vmcnt(3)
    """)
    stamp(A, prof, 20)
    for i in range(4):
        A(f'v_mul_u32_u24 v{20+i}, s17, v{4+i}')
    for i in range(4):
        A(f'v_lshrrev_b32 v{20+i}, 24, v{20+i}')
    for i in range(4):
        A(f'v_lshl_add_u32 v{28+i}, v{20+i}, 2, s19')
        A(f'ds_add_rtn_u32 v{24+i}, v{28+i}, v123')
    for i in range(4):
        A(f'v_mad_u32_u24 v{20+i}, v{20+i}, s18, 7')
    for i in range(4):
        A(f'v_lshrrev_b32 v{20+i}, 3, v{20+i}')
    for i in range(4):
        A(f'v_sub_u32 v{4+i}, v{4+i}, v{20+i}')
    for i in range(4):
        A(f'v_add_u32 v{28+i}, s20, v{28+i}')
    A('s_waitcnt lgkmcnt(0)\ns_mov_b64 exec, 1\nds_add_u32 v124, v123')
    spin('k_sp0', 0, 5)
    A('s_mov_b64 exec, -1')
    stamp(A, prof, 21)
    A("""
    ds_read_b64 v[36:37], v35
    s_waitcnt lgkmcnt(0)
    v_add_u32 v38, v36, v37
    v_mov_b32 v39, v38
    """)
    scan64(A, 38)
    A("""
    v_sub_u32 v38, v38, v39
    v_add_u32 v39, v38, v36
    ds_write_b64 v33, v[38:39]
    """)
    for i in range(4):
        A(f'ds_read_b32 v{20+i}, v{28+i}')
    A(f"""
    v_lshl_or_b32 v44, v36, 11, v38
    v_lshl_or_b32 v46, v37, 11, v39
    v_or_b32 v44, {hex(TAG << 22)}, v44
    v_or_b32 v46, {hex(TAG << 22)}, v46
    s_waitcnt vmcnt(0)
    """)
    for i in range(4):
        A(f'v_lshl_or_b32 v{8+i}, v{4+i}, 16, v{8+i}')
    A('s_waitcnt lgkmcnt(0)')
    stamp(A, prof, 22)
    for i in range(4):
        A(f'v_add_u32 v{20+i}, v{20+i}, v{24+i}')
        A(f'v_mad_u32_u24 v{20+i}, v{20+i}, 12, v40')
        A(f'ds_write2_b32 v{20+i}, v{12+2*i}, v{13+2*i} offset0:0 offset1:1')
        A(f'ds_write_b32 v{20+i}, v{8+i} offset:8')
    A(f"""
    v_add_u32 v2, {CH*4}, v1
    v_add_u32 v32, {CH*8}, v1
    v_add_u32 v40, v40, v1
    s_waitcnt lgkmcnt(0)
    s_mov_b64 exec, 1
    ds_add_u32 v124, v123 offset:4
    """)
    spin('k_sp1', 4, 5)
    A('s_mov_b64 exec, -1')
    stamp(A, prof, 23)
    for j in range(3):
        A(f'ds_read_b128 v[{4+4*j}:{7+4*j}], v40 offset:{CH*4*j}')
    for j, a in enumerate((1, 2, 32)):
        A(f's_waitcnt lgkmcnt({2-j})')
        A(f'buffer_store_dwordx4 v[{4+4*j}:{7+4*j}], v{a}, s[36:39], 0 offen sc1')
    A(f"""
    v_lshlrev_b32 v34, 4, v3
    s_waitcnt vmcnt(0)
    s_mov_b64 exec, 1
    ds_add_rtn_u32 v125, v124, v123 offset:8
    s_waitcnt lgkmcnt(0)
    v_readfirstlane_b32 s16, v125
    s_mov_b64 exec, -1
    s_cmp_lg_u32 s16, 4
    s_cbranch_scc1 k_p2
    """)
    spin('k_sp2', 28, 1)
    A(f"""
    ds_read_b32 v45, v124 offset:24
    ds_read_b32 v47, v124 offset:24
    s_waitcnt lgkmcnt(0)
    buffer_store_dwordx4 v[44:47], v34, s[40:43], 0 offen sc1
    v_mov_b32 v125, {3 - int(opt('os', '2'))}
    s_mov_b64 exec, 1
    ds_add_u32 v124, v125 offset:36
    s_mov_b64 exec, -1
    """)
    stamp(A, prof, 24)
    A('s_branch k_p2')
    A("""
    k_nobin:
    s_waitcnt lgkmcnt(0)
    s_barrier
    s_mov_b64 exec, 1
    ds_add_u32 v124, v123
    ds_add_u32 v124, v123 offset:4
    s_cmp_lg_u32 s4, 0
    s_cbranch_scc1 k_nobin1
    ds_add_u32 v124, v123 offset:36
    k_nobin1:
    s_mov_b64 exec, -1
    s_branch k_p2
    """)
    A(f"""
    k_notbin:
    s_cmp_eq_u32 s4, 15
    s_cbranch_scc1 k_w15
    s_sub_u32 s23, s4, 5
    s_cmp_ge_u32 s4, 10
    s_cselect_b32 s21, 1, 0
    s_mul_i32 s20, s21, 5
    s_sub_u32 s23, s23, s20
    s_mul_i32 s19, s21, {WA - WB}
    s_add_u32 s19, s19, {WB}
    v_lshrrev_b32 v4, 4, v3
    v_and_b32 v5, 15, v3
    v_xor_b32 v16, v5, v4
    v_lshlrev_b32 v16, 4, v16
    v_lshl_or_b32 v6, v4, 8, v16
    s_lshl_b32 s20, s21, 7
    v_xor_b32 v6, s20, v6
    v_lshrrev_b32 v8, 3, v3
    v_and_b32 v7, 7, v3
    v_lshlrev_b32 v7, 4, v7
    v_lshl_or_b32 v7, v8, 8, v7
    v_and_b32 v8, 16, v3
    v_lshlrev_b32 v8, 1, v8
    v_xor_b32 v7, v7, v8
    s_lshl_b32 s17, s23, 12
    s_add_u32 s20, s17, {XB}
    v_lshl_or_b32 v8, v5, 8, v16
    v_add_u32 v8, s20, v8
    v_xor_b32 v9, 64, v8
    v_xor_b32 v10, 128, v8
    v_xor_b32 v11, 192, v8
    v_bfe_u32 v13, v3, 2, 2
    v_lshl_add_u32 v12, v4, 3, v13
    v_bfe_u32 v13, v3, 3, 2
    v_lshlrev_b32 v13, 5, v13
    v_lshl_or_b32 v12, v12, 7, v13
    v_and_b32 v13, 3, v3
    v_lshl_or_b32 v12, v13, 3, v12
    v_add_u32 v12, s19, v12
    v_xor_b32 v13, 32, v12
    v_xor_b32 v14, 64, v12
    v_xor_b32 v15, 96, v12
    s_sub_u32 s18, {N*256}, s6
    s_sub_u32 s20, 32768, s22
    s_waitcnt lgkmcnt(0)
    s_cmp_eq_u32 s21, 0
    s_cselect_b32 s28, s62, s60
    s_cselect_b32 s29, s63, s61
    s_cselect_b32 s32, s68, s66
    s_cselect_b32 s33, s69, s67
    """)
    srd_off(A, 28, 28, 29, 's22', 's20')
    srd_off(A, 32, 32, 33, 's22', 's20')
    srd_off(A, 24, 8, 9, 's6', 's18')
    A(f"""
    s_lshl_b32 s40, s21, 11
    s_add_u32 s40, s40, s17
    s_barrier
    """)
    def wdma(t):
        A(f"""
        s_add_u32 s41, s23, {5*t}
        s_and_b32 s42, s41, 1
        s_lshl_b32 s42, s42, 6
        s_lshl_b32 s43, s41, 11
        s_lshl_b32 s41, s41, 10
        v_xor_b32 v17, s42, v7
        s_add_u32 s41, s41, s19
        s_mov_b32 m0, s41
        s_nop 0
        buffer_load_dwordx4 v17, s[28:31], s43 offen lds
        s_add_u32 m0, s41, 16384
        s_nop 0
        buffer_load_dwordx4 v17, s[32:35], s43 offen lds
        """)
    def xdma(j):
        A(f"""
        s_add_u32 s41, s40, {1024*j}
        s_add_u32 m0, s41, {XB}
        v_xor_b32 v17, {64*j}, v6
        buffer_load_dwordx4 v17, s[24:27], s41 offen lds
        """)
    xdma(0); xdma(1)
    A("""
    s_cmp_eq_u32 s21, 0
    s_cbranch_scc1 k_wnow
    s_waitcnt vmcnt(0)
    s_mov_b64 exec, 1
    ds_add_u32 v124, v123 offset:12
    """)
    spin('k_spw', int(opt('aw', '4')), 5, sl=1)
    A('s_mov_b64 exec, -1\nk_wnow:')
    wdma(0); wdma(1); wdma(2)
    A('s_cmp_ge_u32 s23, 1\ns_cbranch_scc1 k_dmadone')
    wdma(3)
    A(f"""
    k_dmadone:
    s_mul_i32 s40, s5, {TABH}
    s_add_u32 s40, s40, s6
    s_add_u32 s40, s40, s17
    s_sub_i32 s41, s18, s17
    s_min_i32 s41, s41, 4096
    """)
    srd_off(A, 36, 74, 75, 's40', 's41')
    A(f"""
    v_lshlrev_b32 v6, 10, v4
    v_lshl_or_b32 v6, v5, 4, v6
    s_lshl_b32 s40, s17, 1
    v_lshlrev_b32 v7, 11, v4
    v_lshl_or_b32 v7, v5, 4, v7
    v_add_u32 v7, s40, v7
    s_mov_b32 s18, {hex(NLOG2E)}
    s_mov_b32 s19, {hex(NLOG2E)}
    s_mul_i32 s40, s21, 20
    v_add_u32 v17, s40, v124
    s_waitcnt vmcnt(0)
    s_mov_b64 exec, 1
    ds_add_u32 v17, v123 offset:12
    """)
    spin('k_sp3', 12, 10)
    A('s_cmp_eq_u32 s21, 0\ns_cbranch_scc1 k_g0')
    spin('k_sp3b', 32, 5)
    A('k_g0:\ns_mov_b64 exec, -1')
    stamp(A, prof, 20)
    XF = 16; WF = 32; AC = 64
    steps = [(s, m, c) for s in range(4) for m in range(2) for c in range(4)]
    PD = 7
    def rd(i):
        s, m, c = steps[i]; b = WF + 4 * (i % 8)
        for u in range(2):
            A(f'ds_read_b64_tr_b16 v[{b+2*u}:{b+2*u+1}], v{12+c} offset:{m*16384 + (32*s+4*u)*128}')
    for s in range(4):
        A(f'ds_read_b128 v[{XF+4*s}:{XF+4*s+3}], v{8+s}')
    for i in range(5): rd(i)
    A('s_waitcnt lgkmcnt(10)')
    rd(5); rd(6)
    for i in range(32):
        s, m, c = steps[i]; b = WF + 4 * (i % 8)
        A(f's_waitcnt lgkmcnt({2*min(PD-1, 31-i)})')
        acc = AC + 16 * m + 4 * c
        cin = '0' if s == 0 else f'v[{acc}:{acc+3}]'
        A(f'v_mfma_f32_16x16x32_bf16 v[{acc}:{acc+3}], v[{XF+4*s}:{XF+4*s+3}], v[{b}:{b+3}], {cin}')
        if i + PD < 32: rd(i + PD)
    stamp(A, prof, 21)
    A("""
    s_cmp_lg_u32 s21, 0
    s_cbranch_scc1 k_epiau
    s_mov_b64 exec, 1
    ds_add_u32 v124, v123 offset:16
    s_mov_b64 exec, -1
    """)
    for c in range(4):
        for u in range(2):
            A(f'v_pk_mul_f32 v[{AC+4*c+2*u}:{AC+4*c+2*u+1}], v[{AC+4*c+2*u}:{AC+4*c+2*u+1}], s[18:19]')
    for i in range(4):
        o = 16 + 4 * i
        A(f'v_cvt_pk_bf16_f32 v{o}, v{AC+i}, v{AC+4+i}')
        A(f'v_cvt_pk_bf16_f32 v{o+1}, v{AC+8+i}, v{AC+12+i}')
        A(f'v_cvt_pk_bf16_f32 v{o+2}, v{AC+16+i}, v{AC+20+i}')
        A(f'v_cvt_pk_bf16_f32 v{o+3}, v{AC+24+i}, v{AC+28+i}')
        A(f'buffer_store_dwordx4 v[{o}:{o+3}], v6, s[36:39], 0 offen offset:{256*i} sc1')
    A(f"""
    s_or_b32 s40, s23, s3
    s_cmp_lg_u32 s40, 0
    s_cbranch_scc1 k_nonull
    s_mul_i32 s40, s5, {TABH}
    s_add_u32 s40, s40, {N*256}
    """)
    srd_off(A, 24, 74, 75, 's40', 256)
    A(f"""
    v_mov_b32 v32, 0x7f7f7f7f
    v_mov_b32 v33, 0x7f7f7f7f
    v_mov_b32 v34, 0
    v_mov_b32 v35, 0
    v_lshlrev_b32 v7, 4, v3
    buffer_store_dwordx4 v[32:35], v7, s[24:27], 0 offen sc1
    k_nonull:
    s_lshl_b32 s40, s5, 14
    s_lshl_b32 s41, s3, 7
    s_add_u32 s40, s40, s41
    s_add_u32 s40, s40, {FLGO}
    """)
    srd_off(A, 24, 74, 75, 's40', 128)
    A(f"""
    v_mov_b32 v27, {hex(TAG)}
    v_mov_b32 v28, 0
    s_waitcnt vmcnt(0)
    s_mov_b64 exec, 1
    ds_add_rtn_u32 v125, v124, v123 offset:20
    s_waitcnt lgkmcnt(0)
    v_readfirstlane_b32 s16, v125
    s_cmp_lg_u32 s16, 4
    s_cbranch_scc1 k_nosig
    """)
    spin('k_spb', 28, 1)
    A(f"""
    ds_read_b32 v26, v124 offset:24
    s_waitcnt lgkmcnt(0)
    buffer_store_dwordx2 v[26:27], v28, s[24:27], 0 offen sc1
    ds_add_u32 v124, v123 offset:36
    k_nosig:
    s_mov_b64 exec, -1
    s_branch k_p2
    k_epiau:
    v_mov_b32 v8, {hex(M60)}
    s_nop 2
    """)
    for i in range(4):
        for c in range(4):
            A(f'v_fma_f32 v{16+4*i+c}, v{AC+4*c+i}, s18, v8')
        A(f'ds_write_b128 v7, v[{16+4*i}:{19+4*i}] offset:{i*512}')
    for i in range(4):
        for c in range(4):
            A(f'v_mov_b32 v{32+4*i+c}, v{AC+16+4*c+i}')
        A(f'ds_write_b128 v7, v[{32+4*i}:{35+4*i}] offset:{i*512+256}')
    A('s_branch k_p2')
    A(f"""
    k_w15:
    v_lshrrev_b32 v4, 3, v3
    v_and_b32 v5, 7, v3
    v_lshlrev_b32 v5, 4, v5
    v_lshl_or_b32 v5, v4, 8, v5
    v_mov_b32 v6, 0
    s_sub_u32 s23, 1024, s22
    s_getpc_b64 s[42:43]
    k_pc:
    s_mul_i32 s20, s78, 384
    s_sub_u32 s42, s42, k_pc - {NAME}
    s_subb_u32 s43, s43, 0
    s_min_u32 s20, s20, k_end - {NAME} - 260
    s_and_b32 s20, s20, -4
    s_add_u32 s42, s42, s20
    s_addc_u32 s43, s43, 0
    s_waitcnt lgkmcnt(0)
    """)
    srd_off(A, 24, 72, 73, 0, 256)
    srd_off(A, 28, 74, 75, NONO, 64)
    srd_off(A, 32, 64, 65, 's22', 's23')
    A(f"""
    s_cmp_lg_u32 s2, 0
    s_cbranch_scc1 k_w15a
    buffer_load_dword v10, v6, s[28:31], 0 offen sc1
    s_barrier
    v_mov_b32 v11, 1
    s_waitcnt vmcnt(0)
    v_add_u32 v10, 1, v10
    s_mov_b64 exec, 1
    buffer_store_dwordx2 v[10:11], v6, s[24:27], 0 offen sc1
    buffer_store_dword v10, v6, s[28:31], 0 offen sc1
    s_mov_b64 exec, -1
    s_branch k_w15b
    k_w15a:
    s_barrier
    k_w15b:
    s_load_dword s40, s[42:43], 0
    s_load_dword s41, s[42:43], 128
    s_load_dword s20, s[42:43], 256
    s_mov_b32 m0, {WC}
    s_mov_b32 exec_hi, 0
    buffer_load_dwordx4 v5, s[32:35], 0 offen lds
    s_mov_b64 exec, 1
    """)
    spin('k_spe', 0, 5, sl=1)
    A(f"""
    s_mov_b32 s20, 0x4000
    k_sp4:
    buffer_load_dwordx2 v[10:11], v6, s[24:27], 0 offen sc1
    s_waitcnt vmcnt(0)
    v_readfirstlane_b32 s16, v11
    s_sub_u32 s20, s20, 1
    s_cbranch_scc1 k_sp4x
    s_cmp_lg_u32 s16, 0
    s_cbranch_scc1 k_sp4x
    s_sleep 4
    s_branch k_sp4
    k_sp4x:
    v_mov_b32 v11, 1
    ds_write_b64 v124, v[10:11] offset:24
    s_mov_b64 exec, -1
    """)
    stamp(A, prof, 20)
    A('k_p2:\ns_setprio 0')
    stamp(A, prof, 25)
    srd_off(A, 24, 74, 75, HDRO, NPROD * 1024)
    srd_off(A, 44, 74, 75, RECO, NPROD * CH * 12)
    A(f's_mul_i32 s20, s5, {TABH}')
    srd_off(A, 48, 74, 75, 's20', N + 1, stride=256)
    A('s_add_u32 s20, s6, s22\ns_lshl_b32 s21, s7, 8\ns_sub_u32 s21, s21, s22')
    srd_off(A, 52, 70, 71, 's20', 's21')
    A(f's_lshl_b32 s20, s5, 14\ns_add_u32 s20, s20, {FLGO}')
    srd_off(A, 80, 74, 75, 's20', 16384)
    if prof: A('s_mov_b32 s18, s74\ns_mov_b32 s19, s75')
    A(f"""
    v_lshrrev_b32 v1, 2, v0
    v_lshlrev_b32 v26, 10, v1
    v_cmp_gt_u32 s[76:77], {NPROD}, v1
    v_mul_u32_u24 v1, {CH*12}, v1
    v_and_b32 v24, 3, v0
    s_lshl_b32 s20, s3, 3
    """.replace(f'v_cmp_gt_u32 s[76:77], {NPROD}, v1', f'v_cmp_gt_u32 vcc, {NPROD}, v1\ns_mov_b64 s[76:77], vcc'))
    spin('k_sp5', 36, 2, sl=1)
    spin('k_sp5b', 28, 1)
    if int(opt('dl', '0')): A(f's_sleep {opt("dl", "0")}')
    A(f"""
    ds_read_b32 v125, v124 offset:24
    s_mov_b32 s21, 0x4000
    s_waitcnt lgkmcnt(0)
    v_readfirstlane_b32 s101, v125
    k_sp6:
    buffer_load_dwordx2 v[28:29], v26, s[24:27], s20 offen sc1
    s_waitcnt vmcnt(0)
    v_lshrrev_b32 v27, 22, v28
    v_cmp_eq_u32 vcc, s101, v29
    v_cmp_eq_u32 s[16:17], {TAG if TAG <= 64 else 's23'}, v27
    s_and_b64 vcc, vcc, s[16:17]
    s_andn2_b64 s[16:17], s[76:77], vcc
    s_cbranch_scc0 k_sp6x
    s_sleep {SLP}
    s_sub_u32 s21, s21, 1
    s_cbranch_scc0 k_sp6
    k_sp6x:
    s_and_b64 vcc, vcc, s[76:77]
    v_and_b32 v27, 0x7ff, v28
    v_bfe_u32 v2, v28, 11, 11
    v_add_u32 v27, v27, v24
    v_cndmask_b32 v2, 0, v2, vcc
    v_mad_u32_u24 v1, v27, 12, v1
    v_sub_u32 v2, v2, v24
    """.replace('s_mov_b32 s21, 0x4000', f's_mov_b32 s21, 0x4000\ns_movk_i32 s23, {TAG}'))
    stamp(A, prof, 1)
    A(f'k_loadrec:\ns_mov_b32 s79, {4*R_}\nv_cmp_lt_i32 s[{MK}:{MK+1}], 0, v2')
    for q in range(R_):
        if q + 1 < R_: A(f'v_cmp_lt_i32 s[{MK+2*q+2}:{MK+2*q+3}], {4*q+4}, v2')
        A(f's_mov_b64 exec, s[{MK+2*q}:{MK+2*q+1}]')
        A(f's_cbranch_execz k_ldiss')
        A(f'buffer_load_dwordx3 v[{RC+4*q}:{RC+4*q+2}], v1, s[44:47], 0 offen offset:{48*q}{SC}')
    A('k_ldiss:\ns_mov_b64 exec, -1')
    stamp(A, prof, 16)
    A('s_cmp_eq_u32 s100, 0\ns_cbranch_scc1 k_later')
    A(f"""
    v_lshlrev_b32 v25, 1, v3
    v_add_u32 v25, {WC}, v25
    v_lshrrev_b32 v74, 3, v0
    v_bfe_u32 v4, v0, 2, 1
    v_lshl_or_b32 v4, s5, 3, v4
    v_xor_b32 v4, v4, v74
    v_and_b32 v4, 15, v4
    v_lshlrev_b32 v74, 8, v74
    v_lshl_or_b32 v4, v4, 4, v74
    v_lshl_or_b32 v4, v24, 2, v4
    v_add_u32 v4, {XB}, v4
    v_xor_b32 v5, 32, v4
    v_xor_b32 v6, 64, v4
    v_xor_b32 v7, 96, v4
    """)
    spin('k_sp7', 12, 10)
    A(f"""
    ds_read_u16 v14, v25
    ds_read_u16 v15, v25 offset:128
    ds_read_u16 v16, v25 offset:256
    ds_read_u16 v17, v25 offset:384
    s_cmp_ge_u32 s4, 10
    s_cbranch_scc1 k_noxr
    ds_read_b32 v4, v4
    ds_read_b32 v5, v5
    ds_read_b32 v6, v6
    ds_read_b32 v7, v7
    k_noxr:
    v_and_b32 v78, 1, v3
    v_lshlrev_b32 v78, 4, v78
    v_mov_b32 v79, 0x3f80
    v_lshlrev_b32 v79, v78, v79
    v_and_b32 v78, 2, v3
    v_cmp_eq_u32 vcc, 0, v78
    v_mov_b64 v[74:75], 0
    v_mov_b64 v[76:77], 0
    v_cndmask_b32 v12, 0, v79, vcc
    v_cndmask_b32 v13, v79, v74, vcc
    s_mov_b32 s56, {hex(C60)}
    s_mov_b32 s57, {hex(C60)}
    s_mov_b32 s58, 0x22221111
    s_mov_b32 s59, 0x88884444
    s_mov_b32 s20, {hex(NLOG2E)}
    v_lshlrev_b32 v78, 4, v0
    """)
    spin('k_sp8', 16, 5)
    A(f"""
    ds_write_b128 v78, v[74:77] offset:{ACC}
    ds_write_b128 v78, v[74:77] offset:{ACC + 16384}
    s_cmp_ge_u32 s4, 8
    s_cbranch_scc1 k_noz
    v_add_u32 v78, 32768, v78
    ds_write_b128 v78, v[74:77] offset:{ACC}
    k_noz:
    """)
    for k in range(4):
        A(f'v_lshlrev_b32 v{14+k}, 16, v{14+k}')
    for k in range(4):
        A(f'v_mul_f32 v{14+k}, s20, v{14+k}')
    A('v_cvt_pk_bf16_f32 v8, v14, v15\nv_cvt_pk_bf16_f32 v9, v16, v17')
    A(f"""
    s_cmp_lg_u32 s4, 15
    s_cbranch_scc1 k_later
    v_lshlrev_b32 v14, 7, v3
    s_mov_b32 s21, 0x4000
    s_movk_i32 s20, 8192
    k_sp9:
    buffer_load_dwordx2 v[16:17], v14, s[80:83], 0 offen sc1
    buffer_load_dwordx2 v[18:19], v14, s[80:83], s20 offen sc1
    s_waitcnt vmcnt(0)
    v_cmp_ne_u32 vcc, s101, v16
    v_cmp_ne_u32 s[16:17], s101, v18
    s_or_b64 vcc, vcc, s[16:17]
    v_cmp_ne_u32 s[16:17], s23, v17
    s_or_b64 vcc, vcc, s[16:17]
    v_cmp_ne_u32 s[16:17], s23, v19
    s_or_b64 vcc, vcc, s[16:17]
    s_cbranch_scc0 k_later
    s_sleep {SLP}
    s_sub_u32 s21, s21, 1
    s_cbranch_scc0 k_sp9
    k_later:
    """)
    stamp(A, prof, 3)
    TP = 102
    A(f"""
    v_and_b32 v23, 15, v3
    v_lshlrev_b32 v23, 4, v23
    v_mov_b32 v25, v23
    v_lshrrev_b32 v122, 4, v3
    s_lshl_b32 s89, s4, 2
    v_add_u32 v21, s89, v122
    v_lshl_add_u32 v24, v21, 9, v23
    v_add_u32 v24, {HEAD - ACC}, v24
    v_add_u32 v22, 1, v21
    v_bfe_u32 v121, v3, 2, 2
    v_mov_b32 v10, 32
    v_cndmask_b32 v11, 0, 64, s[58:59]
    v_mov_b64 v[34:35], 0
    v_mov_b64 v[36:37], 0
    v_mov_b64 v[38:39], 0
    v_mov_b64 v[40:41], 0
    s_mov_b64 s[84:85], 0
    s_mov_b64 s[86:87], 0
    v_mov_b32 v15, {CNT}
    """)
    for k in range(8):
        A(f'v_mov_b32 v{TP+2*k+1}, v23')
    if PF:
        A(f"""
        s_mul_i32 s20, s78, 313
        s_mul_i32 s21, s4, {PF // 2}
        s_add_u32 s20, s20, s21
        v_lshrrev_b32 v118, 1, v3
        v_add_u32 v118, s20, v118
        v_and_b32 v119, 1, v3
        v_lshlrev_b32 v119, 7, v119
        """)
    A('s_waitcnt vmcnt(0)')
    stamp(A, prof, 4)
    A('k_rank:')
    for r in range(R_):
        A(f's_mov_b64 exec, s[{MK+2*r}:{MK+2*r+1}]')
        A(f's_cbranch_execz k_rankdone')
        A(f'v_lshrrev_b32 v{TA+r}, 14, v{RC+4*r+2}')
        A(f'v_add_u32 v{TA+r}, v15, v{TA+r}')
        A(f'ds_add_rtn_u32 v{RC+4*r+3}, v{TA+r}, v123')
    A(f"""
    v_cmp_lt_i32 vcc, {4*R_}, v2
    s_and_b64 exec, exec, vcc
    s_cbranch_execz k_rankdone
    ds_write_b32 v15, v123 offset:{MISC - CNT}
    k_rankdone:
    s_mov_b64 exec, -1
    s_waitcnt lgkmcnt(0)
    s_barrier
    """)
    if PF:
        A(f's_mov_b32 exec_lo, {hex(((1 << PF) - 1) & 0xffffffff)}\ns_mov_b32 exec_hi, {hex(((1 << PF) - 1) >> 32)}')
        A(f'buffer_load_dword v120, v[118:119], s[48:51], 0 idxen offen{SC}\ns_mov_b64 exec, -1')
    stamp(A, prof, 5)
    A(f"""
    s_cmp_lg_u32 s4, 0
    s_cbranch_scc1 k_noscan
    v_lshl_add_u32 v16, v3, 3, v15
    ds_read_b64 v[18:19], v16
    s_waitcnt lgkmcnt(0)
    v_add_u32 v18, 1, v18
    v_add_u32 v19, 1, v19
    v_and_b32 v18, -2, v18
    v_and_b32 v19, -2, v19
    v_add_u32 v26, v18, v19
    v_mov_b32 v27, v26
    """)
    scan64(A, 26)
    A(f"""
    v_sub_u32 v26, v26, v27
    v_add_u32 v27, v26, v18
    ds_write_b64 v16, v[26:27] offset:{STA - CNT}
    s_waitcnt lgkmcnt(0)
    k_noscan:
    s_barrier
    """)
    stamp(A, prof, 6)
    A(f"""
    ds_read_b32 v16, v15 offset:{STA - CNT + 4*100}
    ds_read_b32 v17, v15 offset:{MISC - CNT}
    """)
    for r in range(R_):
        A(f's_mov_b64 exec, s[{MK+2*r}:{MK+2*r+1}]')
        A(f's_cbranch_execz k_st')
        A(f'ds_read_b32 v{TB+r}, v{TA+r} offset:{STA - CNT}')
    A(f"""
    k_st:
    s_mov_b64 exec, -1
    v_lshl_add_u32 v18, v0, 2, v15
    s_cmp_ge_u32 s4, 2
    s_cbranch_scc1 k_nopad0
    ds_read_b32 v19, v18
    ds_read_b32 v20, v18 offset:{STA - CNT}
    k_nopad0:
    s_mov_b32 s20, {EL}
    s_mov_b32 s21, {PL}
    s_waitcnt lgkmcnt(0)
    v_readfirstlane_b32 s22, v16
    v_readfirstlane_b32 s88, v17
    s_cmp_gt_u32 s22, {CAPT}
    s_cbranch_scc1 k_shrink
    s_cmp_ge_u32 s4, 2
    s_cbranch_scc1 k_nopad
    v_subrev_u32 v26, 80, v0
    v_cmp_gt_u32 vcc, 80, v0
    v_min_u32 v27, 79, v0
    v_lshlrev_b32 v27, 16, v27
    v_or_b32 v27, {N}, v27
    v_cndmask_b32 v28, v26, v19, vcc
    v_add_u32 v20, v20, v28
    v_and_b32 v19, 1, v19
    v_cmp_eq_u32 vcc, 1, v19
    v_cmp_gt_u32 s[76:77], 8, v26
    s_or_b64 exec, vcc, s[76:77]
    s_cbranch_execz k_nopad
    v_lshl_add_u32 v28, v20, 3, s20
    v_lshl_add_u32 v20, v20, 2, s21
    ds_write_b64 v28, v[34:35]
    ds_write_b32 v20, v27
    k_nopad:
    """)
    for r in range(R_):
        A(f's_mov_b64 exec, s[{MK+2*r}:{MK+2*r+1}]')
        A(f's_cbranch_execz k_scat')
        A(f'v_add_u32 v{TB+r}, v{TB+r}, v{RC+4*r+3}')
        A(f'v_lshl_add_u32 v{TA+r}, v{TB+r}, 3, s20')
        A(f'v_lshl_add_u32 v{TB+r}, v{TB+r}, 2, s21')
        A(f'ds_write_b64 v{TA+r}, v[{RC+4*r}:{RC+4*r+1}]')
        A(f'ds_write_b32 v{TB+r}, v{RC+4*r+2}')
    A(f"""
    k_scat:
    s_mov_b64 exec, -1
    s_add_u32 s22, s22, 6
    s_lshr_b32 s22, s22, 3
    s_lshr_b32 s23, s22, 4
    s_and_b32 s22, s22, 15
    s_mul_i32 s16, s23, s4
    s_min_u32 s17, s4, s22
    s_add_u32 s16, s16, s17
    s_cmp_lt_u32 s4, s22
    s_addc_u32 s23, s23, 0
    s_lshl_b32 s16, s16, 5
    s_add_u32 s21, s21, s16
    s_lshl_b32 s16, s16, 1
    s_add_u32 s20, s20, s16
    v_mul_u32_u24 v16, s23, v122
    v_mul_u32_u24 v17, s23, v121
    v_mov_b32 v26, {ZER}
    v_lshl_add_u32 v14, v16, 3, s21
    v_lshl_add_u32 v15, v17, 4, s20
    v_mov_b32 v18, v24
    v_mov_b32 v21, v22
    v_cndmask_b32 v15, v26, v15, s[58:59]
    s_mov_b32 s76, 0x00010001
    s_mov_b32 s77, 0x00010001
    s_waitcnt lgkmcnt(0)
    s_barrier
    """)
    stamp(A, prof, 7)
    RB = 70; DD = [42, 102]; ND = [16, 17, 19, 119]; MS = [84, 86]
    Ha = 50; Hb = 54; P = 58; Sg = 62; Q = 66; DEN = 34; NUM = 38
    def y1(d): return f'v_mfma_f32_16x16x16_bf16 v[{d}:{d+3}], v[26:27], v[8:9], v[30:33]'
    def y2(d): return f'v_mfma_f32_16x16x16_bf16 v[{d+4}:{d+7}], v[28:29], v[8:9], v[30:33]'
    def y3(d, r): return f'v_mfma_f32_4x4x4_16b_bf16 v[{d}:{d+3}], v[12:13], v[{r}:{r+1}], v[{d}:{d+3}]'
    def y4(d, r): return f'v_mfma_f32_4x4x4_16b_bf16 v[{d+4}:{d+7}], v[12:13], v[{r+4}:{r+5}], v[{d+4}:{d+7}]'
    A('s_setprio 3\ns_sub_u32 s23, s23, 1\ns_cbranch_scc1 k_loopdone')
    for k in range(8):
        A(f'ds_read_u16 v{TP+2*k}, v14 offset:{4*k}')
    A(f"""
    ds_read_u16 v{ND[0]}, v14 offset:2
    ds_read_b128 v[26:29], v15
    ds_read_u16 v{ND[1]}, v14 offset:10
    ds_read_u16 v{ND[2]}, v14 offset:18
    ds_read_u16 v22, v14 offset:32
    ds_read_u16 v24, v14 offset:36
    """)
    def Gt(k):
        A(f'buffer_load_dwordx4 v[{RB+8*k}:{RB+8*k+3}], v[{TP+4*k}:{TP+4*k+1}], s[48:51], 0 idxen offen{SC}')
        A(f'buffer_load_dwordx4 v[{RB+8*k+4}:{RB+8*k+7}], v[{TP+4*k+2}:{TP+4*k+3}], s[48:51], 0 idxen offen{SC}')
    NG0 = int(opt('g0', '2'))
    for k in range(NG0):
        A(f's_waitcnt lgkmcnt({12-2*k})')
        Gt(k)
    A(f"""
    s_waitcnt lgkmcnt(5)
    v_lshl_add_u32 v118, v{ND[0]}, 9, v23
    ds_read_b128 v[30:33], v118
    v_lshlrev_b32 v118, 3, v{ND[0]}
    v_add_u32 v118, {HIN}, v118
    s_mov_b64 exec, s[76:77]
    ds_add_u32 v118, v123
    ds_max_u32 v118, v21 offset:4
    s_mov_b64 exec, -1
    s_waitcnt lgkmcnt(2)
    {y1(DD[0])}
    v_cmp_ne_u32 s[{MS[0]}:{MS[0]+1}], v{ND[0]}, v{ND[1]}
    v_lshl_add_u32 v118, v{ND[1]}, 9, v23
    {y2(DD[0])}
    ds_read_b128 v[26:29], v15 offset:16
    ds_read_b128 v[30:33], v118
    s_waitcnt vmcnt({2*NG0-2})
    s_nop 2
    {y3(DD[0], RB)}
    {y4(DD[0], RB)}
    """)
    for k in range(NG0, 4): Gt(k)
    A('s_waitcnt lgkmcnt(0)\ns_nop 1')
    stamp(A, prof, 17)
    A('k_loop:')
    TH = [int(x) for x in opt('th', '12_8_4').split('_')]
    for u in range(4):
        D = DD[u & 1]; Dn = DD[(u + 1) & 1]; Da = D; Db = D + 4
        Rc = RB + 8 * u; Rn = RB + 8 * ((u + 1) % 4)
        g0 = f'buffer_load_dwordx4 v[{Rc}:{Rc+3}], v[22:23], s[48:51], 0 idxen offen{SC}'
        g1 = f'buffer_load_dwordx4 v[{Rc+4}:{Rc+7}], v[24:25], s[48:51], 0 idxen offen{SC}'
        e = [f'v_exp_f32_e64 v{D+i}, v{D+i} clamp' for i in range(8)]
        if u == 0:
            A(f's_cmp_lt_u32 s23, {TH[0]}\ns_cbranch_scc1 k_setp\nk_bkp:')
        A(f"""
        v_mfma_f32_4x4x4_16b_bf16 v[{Ha}:{Ha+3}], v[12:13], v[{Rc+2}:{Rc+3}], 0
        {e[0]}
        v_mfma_f32_4x4x4_16b_bf16 v[{Hb}:{Hb+3}], v[12:13], v[{Rc+6}:{Rc+7}], 0
        {e[1]}
        {y1(Dn)}
        {e[2]}
        {g0}
        {e[3]}
        {g1}
        {e[4]}
        {y2(Dn)}
        {e[5]}
        ds_read_b128 v[26:29], v15 offset:{(u+2)*16}
        ds_read_u16 v22, v14 offset:{(u+5)*8}
        {e[6]}
        ds_read_u16 v24, v14 offset:{(u+5)*8+4}
        ds_read_u16 v{ND[(u+3)%4]}, v14 offset:{(u+3)*8+2}
        v_cmp_ne_u32 vcc, v{ND[(u+1)%4]}, v{ND[(u+2)%4]}
        {e[7]}
        s_cbranch_vccnz k_eva{u}
        k_bka{u}:
        v_pk_add_f32 {pr(Da)}, {pr(Da)}, s[56:57]
        v_pk_add_f32 {pr(Db)}, {pr(Db)}, s[56:57]
        v_pk_add_f32 {pr(Da+2)}, {pr(Da+2)}, s[56:57]
        v_pk_add_f32 {pr(Db+2)}, {pr(Db+2)}, s[56:57]
        v_pk_mul_f32 {pr(P)}, {pr(Da)}, {pr(Db)}
        v_pk_mul_f32 {pr(P+2)}, {pr(Da+2)}, {pr(Db+2)}
        v_pk_mul_f32 {pr(Q)}, {pr(Db)}, {pr(Ha)}
        s_waitcnt vmcnt(6) lgkmcnt(4)
        {y3(Dn, Rn)}
        v_rcp_f32 v{P}, v{P}
        {y4(Dn, Rn)}
        v_rcp_f32 v{P+1}, v{P+1}
        v_rcp_f32 v{P+2}, v{P+2}
        v_rcp_f32 v{P+3}, v{P+3}
        v_pk_mul_f32 {pr(Q+2)}, {pr(Db+2)}, {pr(Ha+2)}
        v_pk_add_f32 {pr(Sg)}, {pr(Da)}, {pr(Db)}
        v_pk_add_f32 {pr(Sg+2)}, {pr(Da+2)}, {pr(Db+2)}
        v_pk_fma_f32 {pr(Q)}, {pr(Da)}, {pr(Hb)}, {pr(Q)}
        v_pk_fma_f32 {pr(Q+2)}, {pr(Da+2)}, {pr(Hb+2)}, {pr(Q+2)}
        """)
        if u == 3:
            A('v_lshl_add_u64 v[14:15], v[14:15], 0, v[10:11]')
        A(f"""
        v_pk_fma_f32 {pr(DEN)}, {pr(Sg)}, {pr(P)}, {pr(DEN)}
        v_pk_fma_f32 {pr(DEN+2)}, {pr(Sg+2)}, {pr(P+2)}, {pr(DEN+2)}
        v_pk_fma_f32 {pr(NUM)}, {pr(Q)}, {pr(P)}, {pr(NUM)}
        v_pk_fma_f32 {pr(NUM+2)}, {pr(Q+2)}, {pr(P+2)}, {pr(NUM+2)}
        s_sub_u32 s23, s23, 1
        s_cbranch_scc1 k_flush
        s_waitcnt lgkmcnt(0)
        s_cmp_lg_u64 s[{MS[u&1]}:{MS[u&1]+1}], 0
        """)
        if u == 3:
            A('s_cbranch_scc0 k_loop')
        else:
            A(f's_cbranch_scc1 k_evb{u}\nk_bkb{u}:')
    for u in (3, 0, 1, 2):
        m = MS[u & 1]
        A(f"""
        k_evb{u}:
        s_mov_b64 exec, s[{m}:{m+1}]
        ds_write_b128 v18, v[34:37] offset:{ACC}
        ds_write_b128 v18, v[38:41] offset:{ACC+256}
        v_lshl_add_u32 v18, v{ND[(u+1)%4]}, 9, v23
        s_mov_b64 s[{m}:{m+1}], 0
        ds_read_b128 v[34:37], v18 offset:{ACC}
        ds_read_b128 v[38:41], v18 offset:{ACC+256}
        s_mov_b64 exec, -1
        s_branch {'k_loop' if u == 3 else f'k_bkb{u}'}
        """)
    for u in range(4):
        m = MS[(u + 1) & 1]
        A(f"""
        k_eva{u}:
        s_mov_b64 exec, vcc
        v_lshl_add_u32 v118, v{ND[(u+2)%4]}, 9, v23
        s_mov_b64 s[{m}:{m+1}], vcc
        ds_read_b128 v[30:33], v118
        s_mov_b64 exec, -1
        s_branch k_bka{u}
        """)
    A(f"""
    k_setp:
    s_setprio 2
    s_cmp_ge_u32 s23, {TH[1]}
    s_cbranch_scc1 k_bkp
    s_setprio 1
    s_cmp_ge_u32 s23, {TH[2]}
    s_cbranch_scc1 k_bkp
    s_setprio 0
    s_branch k_bkp
    k_flush:
    ds_write_b128 v18, v[34:37] offset:{ACC}
    ds_write_b128 v18, v[38:41] offset:{ACC+256}
    k_loopdone:
    s_setprio 0
    """)
    stamp(A, prof, 8)
    A(f"""
    v_lshrrev_b32 v14, 3, v0
    v_and_b32 v15, 7, v0
    v_lshlrev_b32 v17, 5, v15
    v_lshl_or_b32 v16, v14, 9, v17
    s_cmp_ge_u32 s4, 10
    s_cbranch_scc1 k_nostat
    ds_read_b128 v[36:39], v16 offset:256
    ds_read_b128 v[40:43], v16 offset:272
    v_lshlrev_b32 v15, 2, v15
    v_lshl_or_b32 v15, v14, 8, v15
    v_lshlrev_b32 v14, 3, v14
    v_add_u32 v14, {HIN}, v14
    v_add_u32 v17, {HEAD - 512}, v17
    s_mov_b32 s20, {hex(EPS60)}
    s_mov_b32 s21, {hex(EPS60)}
    """)
    for k in range(4):
        A(f'v_lshlrev_b32 v{60+k}, 16, v{4+k}')
        A(f'v_and_b32 v{64+k}, 0xffff0000, v{4+k}')
    A('k_nostat:\ns_waitcnt lgkmcnt(0)\ns_barrier')
    stamp(A, prof, 9)
    A(f"""
    s_cmp_ge_u32 s4, 10
    s_cbranch_scc1 k_merged
    ds_read_b64 v[18:19], v14
    ds_read_b128 v[20:23], v16 offset:{ACC}
    ds_read_b128 v[24:27], v16 offset:{ACC+16}
    ds_read_b128 v[28:31], v16 offset:{ACC+256}
    ds_read_b128 v[32:35], v16 offset:{ACC+272}
    s_waitcnt lgkmcnt(4)
    v_cmp_lt_u32 vcc, 0, v18
    v_lshl_add_u32 v19, v19, 9, v17
    s_and_b64 exec, exec, vcc
    s_cbranch_execz k_mdone
    k_mloop:
    ds_read_b128 v[44:47], v19
    ds_read_b128 v[48:51], v19 offset:16
    ds_read_b128 v[52:55], v19 offset:256
    ds_read_b128 v[56:59], v19 offset:272
    v_cmp_lt_u32 vcc, 1, v18
    v_subrev_u32 v18, 1, v18
    v_subrev_u32 v19, 512, v19
    s_waitcnt lgkmcnt(2)
    """)
    for k in range(8):
        if k == 4: A('s_waitcnt lgkmcnt(0)')
        A(f'v_pk_add_f32 {pr(20+2*k)}, {pr(20+2*k)}, {pr(44+2*k)}')
    A(f"""
    s_and_b64 exec, exec, vcc
    s_cbranch_execnz k_mloop
    k_mdone:
    s_mov_b64 exec, -1
    s_waitcnt lgkmcnt(0)
    k_merged:
    s_cmp_lg_u32 s88, 0
    s_cbranch_scc1 k_more
    s_cmp_ge_u32 s4, 10
    s_cbranch_scc1 k_fin
    """)
    for k in range(4):
        A(f'v_pk_add_f32 {pr(20+2*k)}, {pr(20+2*k)}, s[20:21]')
    for k in range(8):
        A(f'v_rcp_f32 v{20+k}, v{20+k}')
    A('s_nop 0')
    for k in range(4):
        A(f'v_pk_fma_f32 {pr(28+2*k)}, {pr(28+2*k)}, {pr(20+2*k)}, {pr(36+2*k)}')
    for k in range(8):
        A(f'v_max_f32 v{28+k}, 0, v{28+k}')
    for k in range(4):
        A(f'v_pk_add_f32 {pr(28+2*k)}, {pr(28+2*k)}, {pr(60+2*k)}')
    for k in range(4):
        A(f'v_cvt_pk_bf16_f32 v{20+k}, v{28+k}, v{32+k}')
        A(f'buffer_store_dword v{20+k}, v15, s[52:55], 0 offen offset:{32*k}')
    A('k_fin:')
    stamp(A, prof, 10)
    if prof:
        A('s_waitcnt vmcnt(0)')
        stamp(A, prof, 11)
        stamp_out(A, prof, 18, 19, 4, 1)
    A('k_exit:\ns_endpgm')
    zero_misc = f"""
    v_mov_b64 v[74:75], 0
    v_mov_b64 v[76:77], 0
    v_lshlrev_b32 v78, 4, v0
    v_add_u32 v78, {CNT}, v78
    v_cmp_gt_u32 vcc, {NZ1}, v0
    s_and_saveexec_b64 s[20:21], vcc
    ds_write_b128 v78, v[74:77]
    s_mov_b64 exec, s[20:21]
    """
    A(f"""
    k_more:
    s_waitcnt vmcnt(0)
    s_cmp_ge_u32 s4, 10
    s_cbranch_scc1 k_more1
    ds_write_b128 v16, v[20:23] offset:{ACC}
    ds_write_b128 v16, v[24:27] offset:{ACC+16}
    ds_write_b128 v16, v[28:31] offset:{ACC+256}
    ds_write_b128 v16, v[32:35] offset:{ACC+272}
    k_more1:
    s_waitcnt lgkmcnt(0)
    s_barrier
    """)
    A(zero_misc)
    A(f"""
    s_mul_i32 s20, s79, 12
    v_add_u32 v1, s20, v1
    v_subrev_u32 v2, s79, v2
    s_mov_b32 s100, 0
    s_waitcnt lgkmcnt(0)
    s_barrier
    s_branch k_loadrec
    k_shrink:
    s_barrier
    """)
    A(zero_misc)
    A(f"""
    s_mov_b64 s[{MK+6}:{MK+7}], 0
    s_mov_b32 s79, 12
    s_waitcnt lgkmcnt(0)
    s_barrier
    ds_write_b32 v15, v123 offset:{MISC - CNT}
    s_branch k_rank
    k_end:
    """)
    return A.text(), LDS

def build(prof=False):
    body, lds = gen(prof)
    head = open('standalone__edge_featured_mpnn_gatedgcn__graph.s.ref').read().split('\n')[:15]
    la = f'; @launch kernel={NAME} grid=(256,1,1) block=(1024,1,1) lds={lds}' if 'list' in OPT or prof else f'; @launch grid=(256,1,1) block=(1024,1,1) lds={lds}'
    out = head + [la, '.amdgcn_target "amdgcn-amd-amdhsa--gfx950"', '.text', f'.globl {NAME}', '.p2align 8', f'.type {NAME},@function', body,
                  '.section .rodata,"a"', '.p2align 6', G.KD.format(name=NAME, vgpr=128, sgpr=102, acc=128)]
    return '\n'.join(out) + '\n'

if __name__ == '__main__':
    prof = '--prof' in sys.argv
    for a in sys.argv[2:]:
        if a.startswith('-O'): OPT.add(a[2:])
    open(sys.argv[1], 'w').write(build(prof))
```
